```python
import torch

def _softmax(x, axis=-1):
    return torch.softmax(x, dim=axis)
def _gelu(x):
    return torch.nn.functional.gelu(x, approximate="tanh")
def _silu(x):
    return torch.nn.functional.silu(x)
def _sigmoid(x):
    return torch.sigmoid(x)
def _layernorm(x, axis=-1, eps=1e-5):
    m = x.mean(dim=axis, keepdim=True)
    v = x.var(dim=axis, keepdim=True, unbiased=False)
    return (x - m) / torch.sqrt(v + eps)
def _scatter_add(tgt, idx, src, axis=0):
    return tgt.clone().index_add_(axis, idx, src)
def _segment_sum(src, seg, n):
    out = torch.zeros((n,) + src.shape[1:], dtype=src.dtype)
    return out.index_add_(0, seg, src)
def _pad(x, pw):
    flat = tuple(v for pair in reversed(pw) for v in pair)
    return torch.nn.functional.pad(x, flat)

kernel_name = 'standalone__cheap_equivariant_egnn__graph'

def setup_inputs():

    _w = (lambda a: (lambda t: t.to(torch.bfloat16) if t.is_floating_point() else t)(torch.as_tensor(a)))
    N, deg, D, De = 25000, 16, 128, max(0, 1)
    E = N * deg
    return {
        "h": _w((lambda *s: torch.randn(*s, dtype=torch.bfloat16) * 0.2)(N, D)),
        "pos": _w((lambda *s: torch.randn(*s, dtype=torch.bfloat16) * 0.8)(N, 3)),
        "e_attr": _w((lambda *s: torch.randn(*s, dtype=torch.bfloat16) * 0.8)(E, De)),
        "src": _w((lambda lo, hi, *s: torch.randint(lo, hi, s))(0, N, E).to(torch.int64)),
        "dst": _w((lambda lo, hi, *s: torch.randint(lo, hi, s))(0, N, E).to(torch.int64)),
        "w_e": _w(0.1 * (lambda *s: torch.randn(*s, dtype=torch.bfloat16) * 0.8)(2 * D + 1 + De, D)),
        "w_x": _w(0.1 * (lambda *s: torch.randn(*s, dtype=torch.bfloat16) * 0.2)(D, 1)),
        "w_h": _w(0.1 * (lambda *s: torch.randn(*s, dtype=torch.bfloat16) * 0.2)(2 * D, D)),
    }

def reference(h, pos, e_attr, src, dst, w_e, w_x, w_h):
    N, D = h.shape[0], h.shape[1]
    diff = pos[dst] - pos[src]
    dist2 = torch.sum(diff * diff, axis=-1, keepdims=True)
    e_in = torch.concatenate([h[dst], h[src], dist2, e_attr], axis=-1)
    m_ij = _silu(e_in @ w_e)
    coord_scale = m_ij @ w_x
    pos_new = pos + _segment_sum(diff * coord_scale, dst, N)
    m_i = _segment_sum(m_ij, dst, N)
    h_new = h + _silu(torch.concatenate([h, m_i], axis=-1) @ w_h)
    return h_new, pos_new
```

```python
import re


class Regs:
    def __init__(self, prefix, start, limit):
        self.p, self.n, self.limit = prefix, start, limit
        self.hi = start

    def get(self, count=1, align=None):
        if align is None:
            align = 1 if count == 1 else (2 if self.p == 'v' or count == 2 else 4)
        self.n = (self.n + align - 1) // align * align
        r = R(self.p, self.n, count)
        self.n += count
        self.hi = max(self.hi, self.n)
        assert self.n <= self.limit, "out of %s registers: %d" % (self.p, self.n)
        return r

    def mark(self):
        return self.n

    def reset(self, m):
        self.n = m


class R:
    def __init__(self, p, i, n=1):
        self.p, self.i, self.n = p, i, n

    def __str__(self):
        return "%s%d" % (self.p, self.i) if self.n == 1 else "%s[%d:%d]" % (self.p, self.i, self.i + self.n - 1)

    __repr__ = __str__

    def __getitem__(self, k):
        if isinstance(k, slice):
            a = k.start or 0
            b = self.n if k.stop is None else k.stop
            assert 0 <= a < b <= self.n, (a, b, self.n)
            return R(self.p, self.i + a, b - a)
        assert 0 <= k < self.n, (k, self.n)
        return R(self.p, self.i + k, 1)

    def sub(self, a, n):
        return self[a:a + n]


class Asm:
    def __init__(self):
        self.lines = []

    def __call__(self, fmt, *args):
        s = fmt % tuple(args) if args else fmt
        for ln in s.split("\n"):
            ln = ln.strip()
            if ln:
                self.lines.append(ln)

    def label(self, name):
        self.lines.append(name + ":")

    def text(self):
        out = []
        for ln in self.lines:
            out.append(ln if (ln.endswith(":") or ln.startswith(".") or ln.startswith(";")) else "    " + ln)
        return "\n".join(out) + "\n"


_REG = re.compile(r"(?<![\w.])([vs])(?:\[(\d+):(\d+)\]|(\d+))(?![\w])")
TRANS = ("v_exp_f32", "v_rcp_f32", "v_log_f32", "v_rsq_f32", "v_sqrt_f32", "v_sin_f32", "v_cos_f32")


def _regs(tok):
    out = set()
    for m in _REG.finditer(tok):
        if m.group(2) is not None:
            for i in range(int(m.group(2)), int(m.group(3)) + 1):
                out.add((m.group(1), i))
        else:
            out.add((m.group(1), int(m.group(4))))
    if re.search(r"\bvcc\b", tok):
        out |= {("s", "vcc")}
    if re.search(r"\bexec(_lo|_hi)?\b", tok):
        out |= {("s", "exec")}
    if re.search(r"\bm0\b", tok):
        out |= {("s", "m0")}
    return out


class Ins:
    def __init__(self, text):
        self.text = text
        t = text.split(";")[0].strip()
        parts = t.split(None, 1)
        self.op = parts[0]
        rest = parts[1] if len(parts) > 1 else ""
        ops = [x.strip() for x in re.split(r",(?![^\[]*\])", rest)] if rest else []
        self.ops = ops
        op = self.op
        self.mfma = op.startswith("v_mfma") or op.startswith("v_smfmac")
        self.valu = op.startswith("v_") and not self.mfma
        self.trans = op.replace("_e32", "").replace("_e64", "") in TRANS
        self.dot = op.startswith("v_dot")
        self.ds = op.startswith("ds_")
        self.vmem = op.startswith("buffer_") or op.startswith("global_")
        self.salu = op.startswith("s_")
        self.dpp = "_dpp" in op or "row_" in rest or "quad_perm" in rest
        self.sdwa = "_sdwa" in op
        self.w, self.r = set(), set()
        self.A = self.B = self.C = set()
        allr = [_regs(o) for o in ops]
        U = lambda l: set().union(*l) if l else set()
        if self.mfma:
            self.w = allr[0]
            self.A, self.B = allr[1], allr[2]
            if op.startswith("v_smfmac"):
                self.C = allr[0]
                self.A = self.A | allr[3]
            else:
                self.C = allr[3]
            self.r = self.A | self.B | self.C
            self.passes = 16 if "_2b_" in op else 2 if "_16b_" in op else (4 if "16x16" in op and "_4b_" not in op else 8)
        elif self.valu:
            if op.startswith("v_cmpx"):
                self.w = allr[0] | {("s", "exec")}
                self.r = U(allr[1:])
            elif op.startswith("v_permlane") and "swap" in op:
                self.w = allr[0] | allr[1]
                self.r = allr[0] | allr[1]
            elif re.match(r"v_(add|sub|subrev)_co_u32", op) or re.match(r"v_(addc|subb)_co_u32", op):
                self.w = allr[0] | allr[1]
                self.r = U(allr[2:])
            else:
                self.w = allr[0]
                self.r = U(allr[1:])
                if op.startswith("v_fmac") or op.startswith("v_dot2c") or self.dpp or op.startswith("v_writelane"):
                    self.r = self.r | allr[0]
        elif self.ds:
            if "read" in op or "_rtn" in op or "permute" in op or "swizzle" in op:
                self.w = allr[0]
                self.r = U(allr[1:])
            else:
                self.r = U(allr)
            if "addtid" in op:
                self.r = self.r | {("s", "m0")}
        elif self.vmem:
            if "load" in op and not re.search(r"\blds\b", rest):
                self.w = allr[0]
                self.r = U(allr[1:])
            else:
                self.r = U(allr)
                if re.search(r"\blds\b", rest):
                    self.r = self.r | {("s", "m0")}
            self.widestore = "store" in op and ("x3" in op or "x4" in op)
            if self.widestore:
                self.sdata = allr[0] if op.startswith("buffer") else allr[1]
        elif self.salu:
            if op.startswith("s_cmp") or op.startswith("s_bitcmp") or op.startswith("s_cbranch") or op in (
                    "s_branch", "s_waitcnt", "s_nop", "s_barrier", "s_endpgm", "s_setprio", "s_sleep"):
                self.r = U(allr)
            else:
                self.w = allr[0] if allr else set()
                self.r = U(allr[1:])
                if "saveexec" in op:
                    self.w = self.w | {("s", "exec")}
        self.states = 1
        if op == "s_nop":
            self.states = int(ops[0], 0) + 1


def need(p, c):
    n = 0
    V = lambda s: {x for x in s if x[0] == 'v'}
    S = lambda s: {x for x in s if x[0] == 's'}
    if p.mfma:
        k = {2: 0, 4: 1, 8: 2, 16: 3}[p.passes]
        if c.mfma:
            if p.w & (c.A | c.B):
                n = max(n, (5, 8, 12, 20)[k])
            if p.w & c.C:
                if p.w == c.C and p.passes == c.passes:
                    n = max(n, (2, 0, 0, 0)[k])
                else:
                    n = max(n, (4, 6, 10, 18)[k])
            elif p.w & c.w and p.passes != c.passes:
                n = max(n, (4, 6, 10, 18)[k])
        elif c.valu or c.ds or c.vmem:
            if p.w & (c.r | c.w):
                n = max(n, (5, 8, 12, 20)[k])
            if c.valu and (p.C & c.w):
                n = max(n, (1, 3, 7, 15)[k])
    if p.valu:
        if c.mfma and (V(p.w) & c.r):
            n = max(n, 3 if p.dot else 2)
        if c.mfma and ("s", "exec") in p.w:
            n = max(n, 4)
        if p.trans and c.valu and not c.trans and (p.w & c.r):
            n = max(n, 1)
        if p.dot and (c.valu or c.ds or c.vmem) and (p.w & (c.r | c.w)):
            same = c.op == p.op
            if not (same and not (p.w & (_regs(c.ops[1]) | _regs(c.ops[2])))):
                n = max(n, 3)
        if c.valu and c.dpp and (V(p.w) & c.r):
            n = max(n, 2)
        if c.valu and c.dpp and ("s", "exec") in p.w:
            n = max(n, 5)
        if c.op.startswith("v_permlane") and (V(p.w) & c.r):
            n = max(n, 2)
        lane = c.op.startswith("v_readlane") or c.op.startswith("v_readfirstlane") or c.op.startswith("v_writelane")
        if lane or c.op.startswith("v_permlane"):
            if ("s", "exec") in p.w:
                n = max(n, 4)
        if lane:
            if V(p.w) & c.r:
                n = max(n, 1)
            if S(p.w) & c.r:
                n = max(n, 4)
        if c.valu and (S(p.w) & c.r):
            n = max(n, 2)
        if c.vmem and (S(p.w) & c.r):
            n = max(n, 5)
        if p.sdwa and "dst_sel:DWORD" not in p.text and c.valu and (p.w & (c.r | c.w)):
            n = max(n, 1)
    if p.salu and ("s", "m0") in p.w and (c.ds or c.vmem) and ("s", "m0") in c.r:
        n = max(n, 1)
    if p.vmem and getattr(p, "widestore", False) and (p.sdata & c.w):
        n = max(n, 2 if c.valu or c.mfma else 1)
    return n


def check_hazards(lines):
    ins, labels = [], {}
    for ln in lines:
        if ln.endswith(":"):
            labels[ln[:-1]] = len(ins)
        elif ln.startswith(".") or ln.startswith(";"):
            continue
        else:
            ins.append(Ins(ln))
    def succ(i):
        x = ins[i]
        if x.op == "s_endpgm":
            return []
        if x.op == "s_branch":
            return [labels[x.ops[0]]]
        out = [i + 1] if i + 1 < len(ins) else []
        if x.op.startswith("s_cbranch"):
            out.append(labels[x.ops[0]])
        return out
    bad = []
    for i, p in enumerate(ins):
        if not (p.mfma or p.valu or p.vmem or (p.salu and ("s", "m0") in p.w)):
            continue
        horizon = 20 if p.mfma else 5
        best = {}
        stack = [(j, 0) for j in succ(i)]
        while stack:
            j, d = stack.pop()
            if d >= horizon or best.get(j, 99) <= d:
                continue
            best[j] = d
            n = need(p, ins[j])
            if n > d:
                bad.append((i, j, n, d))
            for k in succ(j):
                stack.append((k, d + ins[j].states))
    for i, j, n, d in sorted(set(bad)):
        print("HAZARD need %d have %d:\n   [%d] %s\n   [%d] %s" % (n, d, i, ins[i].text, j, ins[j].text))
    return len(bad), len(ins)
```

```python
import struct, sys, os
sys.path.insert(0, os.path.dirname(os.path.abspath(__file__)))
from asmlib import Asm, Regs, R, check_hazards

N, E = 25000, 400000
BN, CH = 98, 1564
CHB = CH * 8
BIAS = 0x0C000000
WS_BP = BIAS
POS_BASE = 0x00800000
WS_ENT = 0x0D000000
WS_OFF = 0x0D400000
WS_WF = 0x0D480000
WS_W3 = WS_WF + 98304
WS_WX = WS_W3 + 1024
WS_TS = 0x0E000000
WS_SIZE = 268435456
OOR = 0x40000000
LOG2E = 0x3FB8AA3B
LN2 = 0x3F317218
CAP = 2048
DUMMY_S = 0x437F0000

OPT = dict(ts=0, exactd=0, k1_gemm_first=0, st1="", st2="")


def f32(x):
    return struct.unpack("<I", struct.pack("<f", x))[0]


def srd(a, d, base, off, size):
    if isinstance(off, int) and off == 0:
        a("s_mov_b32 %s, %s", d[0], base[0])
        a("s_mov_b32 %s, %s", d[1], base[1])
    else:
        a("s_add_u32 %s, %s, %s", d[0], base[0], hex(off) if isinstance(off, int) else off)
        a("s_addc_u32 %s, %s, 0", d[1], base[1])
    a("s_mov_b32 %s, %s", d[2], hex(size))
    a("s_mov_b32 %s, 0x20000", d[3])


def wave_scan(a, t):
    for sh in (1, 2, 4, 8):
        a("s_nop 1")
        a("v_add_u32_dpp %s, %s, %s row_shr:%d row_mask:0xf bank_mask:0xf", t, t, t, sh)
    a("s_nop 1")
    a("v_add_u32_dpp %s, %s, %s row_bcast:15 row_mask:0xa bank_mask:0xf", t, t, t)
    a("s_nop 1")
    a("v_add_u32_dpp %s, %s, %s row_bcast:31 row_mask:0xc bank_mask:0xf", t, t, t)


class TS:
    def __init__(self, a, S, n, kern):
        self.a, self.on, self.kern = a, OPT["ts"], kern
        if self.on:
            self.r = S.get(2 * n, 2)
            self.srd = S.get(4, 4)
            self.tmp = S.get(1)
            self.n = n

    def init(self):
        if self.on:
            for i in range(self.n):
                self.a("s_mov_b64 %s, 0", self.r.sub(2 * i, 2))

    def stamp(self, i):
        if self.on:
            self.a("s_memrealtime %s", self.r.sub(2 * i, 2))
            self.a("s_waitcnt lgkmcnt(0)")

    def dump(self, ws, swave, v0, v1):
        if not self.on:
            return
        a = self.a
        srd(a, self.srd, ws, WS_TS + self.kern * 0x100000, 0x100000)
        a("s_mov_b64 exec, -1")
        a("s_lshl_b32 %s, s2, 3", self.tmp)
        a("s_add_u32 %s, %s, %s", self.tmp, self.tmp, swave)
        a("s_lshl_b32 %s, %s, 6", self.tmp, self.tmp)
        a("v_mov_b32 %s, 0", v0)
        for i in range(self.n):
            a("v_mov_b32 %s, %s", v1, self.r[2 * i])
            a("buffer_store_dword %s, %s, %s, %s offen offset:%d", v1, v0, self.srd, self.tmp, 4 * i)


def kernel_head(a, name):
    a(".globl %s", name)
    a(".p2align 8")
    a(".type %s,@function", name)
    a.label(name)


def load_ptrs(a):
    a("s_load_dwordx16 s[4:19], s[0:1], 0")
    a("s_load_dwordx2 s[20:21], s[0:1], 64")
    a("s_load_dwordx2 s[22:23], s[0:1], 80")
    P = {}
    for i, n in enumerate(["h", "pos", "ea", "src", "dst", "we", "wx", "wh", "out", "ws"]):
        P[n] = R("s", 4 + 2 * i, 2)
    return P


K1_LW, K1_LH = 0, 128 * 320
K1_LDS = K1_LH + 128 * 272
K1_HIST, K1_START, K1_STAGE = 0, 1024, 2048


def gen_k1(a):
    S = Regs("s", 24, 96)
    V = Regs("v", 1, 128)
    kernel_head(a, "egnn_part_kernel")
    ts = TS(a, S, 8, 0)
    a("s_cmp_ge_u32 s2, 512")
    a("s_cbranch_scc1 K1_END")
    P = load_ptrs(a)
    ts.init()
    ts.stamp(0)
    tid = R("v", 0)
    lane, t0, t1 = V.get(), V.get(), V.get()
    sw, sc, s0, s1, s2_, s3 = (S.get() for _ in range(6))
    r0, r1, r2, r3, r4 = (S.get(4, 4) for _ in range(5))
    sv = S.get(2, 2)
    a("v_lshrrev_b32 %s, 6, %s", t0, tid)
    a("v_and_b32 %s, 63, %s", lane, tid)
    a("v_readfirstlane_b32 %s, %s", sw, t0)
    a("s_and_b32 %s, s2, 255", sc)
    a("s_cmp_ge_u32 s2, 256")
    a("s_waitcnt lgkmcnt(0)")
    a("s_cbranch_scc%d K1_GEMM", 0 if OPT["k1_gemm_first"] else 1)
    a("s_cmp_eq_u32 %s, 7", sw)
    a("s_cbranch_scc1 K1_PREP")
    m = V.mark()
    dst, src, ea = V.get(4), V.get(4), V.get(2)
    b4, rk, ent = V.get(4), V.get(4), V.get(8)
    cnt, st, z4 = V.get(4), V.get(4), V.get(4)
    off16, one = V.get(), V.get()
    srd(a, r0, P["dst"], 0, E * 4)
    srd(a, r1, P["src"], 0, E * 4)
    srd(a, r2, P["ea"], 0, E * 2)
    a("s_mul_i32 %s, %s, %d", s0, sc, CH * 4)
    a("s_lshr_b32 %s, %s, 1", s1, s0)
    a("v_lshlrev_b32 %s, 4, %s", off16, tid)
    a("v_lshlrev_b32 %s, 3, %s", t0, tid)
    a("buffer_load_dwordx4 %s, %s, %s, %s offen", dst, off16, r0, s0)
    a("buffer_load_dwordx4 %s, %s, %s, %s offen", src, off16, r1, s0)
    a("buffer_load_dwordx2 %s, %s, %s, %s offen", ea, t0, r2, s1)
    for i in range(4):
        a("v_mov_b32 %s, 0", z4[i])
    a("v_lshlrev_b32 %s, 4, %s", t1, lane)
    a("ds_write_b128 %s, %s offset:%d", t1, z4, K1_HIST)
    a("v_mov_b32 %s, 1", one)
    a("s_sub_u32 %s, %d, %s", s2_, E * 4, s0)
    a("s_min_u32 %s, %s, %d", s2_, s2_, CH * 4)
    a("v_cmp_gt_u32 %s, %s, %s", sv, s2_, off16)
    a("s_mul_i32 %s, %s, %d", s0, sc, CHB)
    a("s_add_u32 %s, %s, %s", s0, s0, hex(WS_ENT))
    srd(a, r3, P["ws"], s0, CHB)
    srd(a, r4, P["ws"], WS_OFF, 8 * 256 * 128)
    a("s_mov_b32 %s, 42800", s0)
    a("s_mov_b32 %s, -49", s1)
    a("s_mov_b32 %s, 0xffff0000", s3)
    a("s_waitcnt lgkmcnt(0)")
    a("s_barrier")
    a("s_waitcnt vmcnt(2)")
    ts.stamp(1)
    for k in range(4):
        a("v_mul_u32_u24 %s, %s, %s", b4[k], s0, dst[k])
    for k in range(4):
        a("v_lshrrev_b32 %s, 22, %s", b4[k], b4[k])
    for k in range(4):
        a("v_lshlrev_b32 %s, 2, %s", b4[k], b4[k])
    a("s_mov_b64 exec, %s", sv)
    a("s_cbranch_execz K1_P1")
    for k in range(4):
        a("ds_add_rtn_u32 %s, %s, %s offset:%d", rk[k], b4[k], one, K1_HIST)
    a.label("K1_P1")
    a("s_mov_b64 exec, -1")
    for k in range(4):
        a("v_lshlrev_b32 %s, 1, %s", dst[k], dst[k])
        a("v_mad_i32_i24 %s, %s, %s, %s", dst[k], b4[k], s1, dst[k])
    a("s_waitcnt lgkmcnt(0)")
    a("s_barrier")
    a("ds_read_b128 %s, %s offset:%d", cnt, t1, K1_HIST)
    a("s_waitcnt vmcnt(0)")
    for k in range(4):
        a("v_cvt_f32_ubyte0 %s, %s", ent[2 * k], src[k])
        a("v_or_b32 %s, 0x8000, %s", src[k], src[k])
        a("v_cvt_f32_ubyte1 %s, %s", src[k], src[k])
        a("v_cvt_pk_bf16_f32 %s, %s, %s", ent[2 * k], ent[2 * k], src[k])
        if k % 2 == 0:
            a("v_lshl_or_b32 %s, %s, 16, %s", ent[2 * k + 1], ea[k // 2], dst[k])
        else:
            a("v_and_or_b32 %s, %s, %s, %s", ent[2 * k + 1], ea[k // 2], s3, dst[k])
    a("s_waitcnt lgkmcnt(0)")
    a("v_add_u32 %s, %s, %s", st[2], cnt[0], cnt[1])
    a("v_add_u32 %s, %s, %s", st[3], st[2], cnt[2])
    a("v_add_u32 %s, %s, %s", st[1], st[3], cnt[3])
    a("v_mov_b32 %s, %s", t0, st[1])
    wave_scan(a, t0)
    a("v_sub_u32 %s, %s, %s", st[0], t0, st[1])
    a("v_add_u32 %s, %s, %s", st[1], st[0], cnt[0])
    a("v_add_u32 %s, %s, %s", st[2], st[0], st[2])
    a("v_add_u32 %s, %s, %s", st[3], st[0], st[3])
    a("ds_write_b128 %s, %s offset:%d", t1, st, K1_START)
    for k in range(4):
        a("ds_read_b32 %s, %s offset:%d", dst[k], b4[k], K1_START)
    a("s_cmp_lg_u32 %s, 0", sw)
    a("s_cbranch_scc1 K1_P2")
    for k in range(4):
        a("v_lshl_or_b32 %s, %s, 16, %s", cnt[k], cnt[k], st[k])
    a("v_lshrrev_b32 %s, 3, %s", t0, lane)
    a("v_lshlrev_b32 %s, 15, %s", t0, t0)
    a("v_and_b32 %s, 0x70, %s", src[0], t1)
    a("v_or_b32 %s, %s, %s", t0, t0, src[0])
    a("s_lshl_b32 %s, %s, 7", s0, sc)
    a("buffer_store_dwordx4 %s, %s, %s, %s offen %s", cnt, t0, r4, s0, OPT["st1"])
    a.label("K1_P2")
    a("s_waitcnt lgkmcnt(0)")
    for k in range(4):
        a("v_add_lshl_u32 %s, %s, %s, 3", dst[k], dst[k], rk[k])
    a("s_mov_b64 exec, %s", sv)
    a("s_cbranch_execz K1_P3")
    for k in range(4):
        a("ds_write_b64 %s, %s offset:%d", dst[k], ent.sub(2 * k, 2), K1_STAGE)
    a.label("K1_P3")
    a("s_mov_b64 exec, -1")
    a("s_waitcnt lgkmcnt(0)")
    a("s_barrier")
    a("ds_read_b128 %s, %s offset:%d", dst, off16, K1_STAGE)
    a("ds_read_b128 %s, %s offset:%d", src, off16, K1_STAGE + 448 * 16)
    a("s_mov_b32 %s, %d", s0, 448 * 16)
    a("s_waitcnt lgkmcnt(1)")
    a("buffer_store_dwordx4 %s, %s, %s, 0 offen %s", dst, off16, r3, OPT["st1"])
    a("s_waitcnt lgkmcnt(0)")
    a("buffer_store_dwordx4 %s, %s, %s, %s offen %s", src, off16, r3, s0, OPT["st1"])
    ts.stamp(2)
    if OPT["ts"]:
        a("s_waitcnt vmcnt(0)")
        ts.stamp(3)
        ts.dump(P["ws"], sw, t0, t1)
    a("s_endpgm")

    V.reset(m)
    a.label("K1_PREP")
    pa, pb, w = V.get(4), V.get(4), V.get(8)
    col, kh, ad, ad2, ks, o16 = (V.get() for _ in range(6))
    srd(a, r0, P["pos"], 0, N * 6)
    srd(a, r1, P["ws"], POS_BASE + BIAS, N * 16)
    srd(a, r4, P["ws"], WS_WF, 98304 + 2048)
    a("s_mul_i32 %s, %s, %d", s0, sc, BN * 6)
    a("v_mul_u32_u24 %s, 6, %s", t0, lane)
    for j in range(3):
        a("buffer_load_ushort %s, %s, %s, %s offen offset:%d", pa[j], t0, r0, s0, 2 * j)
    for j in range(3):
        a("buffer_load_ushort %s, %s, %s, %s offen offset:%d", pb[j], t0, r0, s0, 384 + 2 * j)
    a("v_and_b32 %s, 31, %s", col, lane)
    a("v_lshrrev_b32 %s, 5, %s", kh, lane)
    a("v_lshlrev_b32 %s, 4, %s", o16, lane)
    a("v_mov_b32 %s, 0", pa[3])
    a("v_mov_b32 %s, 0", pb[3])
    a("s_cmp_ge_u32 %s, 96", sc)
    a("s_cbranch_scc1 K1_PREP_X")
    a("s_and_b32 %s, %s, 7", s1, sc)
    a("s_bfe_u32 %s, %s, 0x20003", s2_, sc)
    a("s_cmp_ge_u32 %s, 32", sc)
    a("s_cbranch_scc1 K1_PREP_H")
    srd(a, r2, P["we"], 0, 258 * 256)
    a("s_lshl_b32 %s, %s, 6", s2_, s2_)
    a("v_lshlrev_b32 %s, 1, %s", ad, col)
    a("s_branch K1_PREP_K")
    a.label("K1_PREP_H")
    srd(a, r2, P["wh"], 0, 256 * 256)
    a("s_and_b32 %s, %s, 1", s3, s2_)
    a("s_lshr_b32 %s, %s, 1", s2_, s2_)
    a("s_lshl_b32 %s, %s, 6", s2_, s2_)
    a("s_add_u32 %s, %s, %s", s2_, s2_, s3)
    a("s_lshl_b32 %s, %s, 1", s2_, s2_)
    a("v_lshlrev_b32 %s, 2, %s", ad, col)
    a("s_cmp_ge_u32 %s, 64", sc)
    a("s_cbranch_scc1 K1_PREP_H2")
    a.label("K1_PREP_K")
    a("s_lshl_b32 %s, %s, 12", s1, s1)
    a("s_add_u32 %s, %s, %s", s1, s1, s2_)
    a("v_lshl_add_u32 %s, %s, 11, %s", ad, kh, ad)
    for j in range(8):
        a("buffer_load_ushort %s, %s, %s, %s offen offset:%d", w[j], ad, r2, s1, 256 * j)
    a("s_branch K1_PREP_W")
    a.label("K1_PREP_H2")
    a("s_lshr_b32 %s, %s, 2", s3, s1)
    a("s_lshl_b32 %s, %s, 6", s3, s3)
    a("s_and_b32 %s, %s, 3", s1, s1)
    a("s_lshl_b32 %s, %s, 3", s1, s1)
    a("s_add_u32 %s, %s, %s", s1, s1, s3)
    a("s_add_u32 %s, %s, 128", s1, s1)
    a("s_lshl_b32 %s, %s, 8", s1, s1)
    a("s_add_u32 %s, %s, %s", s1, s1, s2_)
    a("v_lshl_add_u32 %s, %s, 10, %s", ad, kh, ad)
    a("v_add_u32 %s, 8192, %s", ad2, ad)
    for j in range(8):
        a("buffer_load_ushort %s, %s, %s, %s offen offset:%d", w[j], ad2 if j & 1 else ad, r2, s1, 256 * (j >> 1))
    a.label("K1_PREP_W")
    a("s_waitcnt vmcnt(0)")
    for j in range(4):
        a("v_lshl_or_b32 %s, %s, 16, %s", w[j], w[2 * j + 1], w[2 * j])
    a("s_lshl_b32 %s, %s, 10", s1, sc)
    a("buffer_store_dwordx4 %s, %s, %s, %s offen %s", w.sub(0, 4), o16, r4, s1, OPT["st1"])
    a("s_branch K1_PREP_P")
    a.label("K1_PREP_X")
    a("s_cmp_gt_u32 %s, 97", sc)
    a("s_cbranch_scc1 K1_PREP_P")
    a("s_cmp_eq_u32 %s, 97", sc)
    a("s_cbranch_scc1 K1_PREP_WX")
    srd(a, r2, P["we"], 0, 258 * 256)
    a("v_lshlrev_b32 %s, 1, %s", ad, lane)
    a("s_mov_b32 %s, 65536", s1)
    for xy in range(2):
        a("buffer_load_ushort %s, %s, %s, %s offen offset:%d", w[4 + 2 * xy], ad, r2, s1, 128 * xy)
        a("buffer_load_ushort %s, %s, %s, %s offen offset:%d", w[5 + 2 * xy], ad, r2, s1, 256 + 128 * xy)
    a("s_waitcnt vmcnt(0)")
    for j in range(4, 8):
        a("v_lshlrev_b32 %s, 16, %s", w[j], w[j])
        a("v_mul_f32 %s, %s, %s", w[j], hex(LOG2E), w[j])
    for xy in range(2):
        d_, a_ = w[4 + 2 * xy], w[5 + 2 * xy]
        a("v_cvt_pk_bf16_f32 %s, %s, %s", w[2 * xy], d_, a_)
        a("v_lshlrev_b32 %s, 16, %s", t0, w[2 * xy])
        a("v_and_b32 %s, 0xffff0000, %s", t1, w[2 * xy])
        a("v_sub_f32 %s, %s, %s", d_, d_, t0)
        a("v_sub_f32 %s, %s, %s", a_, a_, t1)
        a("v_cvt_pk_bf16_f32 %s, %s, %s", w[2 * xy + 1], d_, a_)
    a("s_mov_b32 %s, 98304", s1)
    a("buffer_store_dwordx4 %s, %s, %s, %s offen %s", w.sub(0, 4), o16, r4, s1, OPT["st1"])
    a("s_branch K1_PREP_P")
    a.label("K1_PREP_WX")
    srd(a, r2, P["wx"], 0, 256)
    a("v_lshlrev_b32 %s, 1, %s", ad, col)
    for j in range(4):
        a("buffer_load_ushort %s, %s, %s, 0 offen offset:%d", w[j], ad, r2, 64 * j)
    a("s_waitcnt vmcnt(0)")
    for j in range(4):
        a("v_lshlrev_b32 %s, 16, %s", w[j], w[j])
        a("v_mul_f32 %s, %s, %s", w[j], hex(LN2), w[j])
    a("s_mov_b32 %s, %d", s1, 98304 + 1024)
    a("buffer_store_dwordx4 %s, %s, %s, %s offen %s", w.sub(0, 4), o16, r4, s1, OPT["st1"])
    a.label("K1_PREP_P")
    a("s_waitcnt vmcnt(0)")
    for j in range(3):
        a("v_lshlrev_b32 %s, 16, %s", pa[j], pa[j])
        a("v_lshlrev_b32 %s, 16, %s", pb[j], pb[j])
    a("s_mul_i32 %s, %s, %d", s0, sc, BN * 16)
    a("buffer_store_dwordx4 %s, %s, %s, %s offen %s", pa, o16, r1, s0, OPT["st1"])
    a("s_mov_b32 exec_hi, 3")
    a("buffer_store_dwordx4 %s, %s, %s, %s offen offset:1024 %s", pb, o16, r1, s0, OPT["st1"])
    a("s_endpgm")

    V.reset(m)
    a.label("K1_GEMM")
    hv, wv = V.get(16, 4), V.get(16, 4)
    acc = [V.get(16, 4), V.get(16, 4)]
    bf = [V.get(8, 4), V.get(8, 4)]
    af = hv
    o16, aw, ah, ar, br, so = (V.get() for _ in range(6))
    srd(a, r0, P["h"], 0, N * 256)
    srd(a, r1, P["we"], 0, 258 * 256)
    srd(a, r2, P["ws"], WS_BP, N * 256)
    a("v_lshlrev_b32 %s, 4, %s", o16, tid)
    a("s_mul_i32 %s, %s, %d", s0, sc, BN * 256)
    for i in range(4):
        if i:
            a("s_add_u32 %s, %s, %d", s1, s0, 8192 * i)
        if i == 3:
            a("s_cmp_lt_u32 %s, 2", sw)
            a("s_cselect_b32 %s, %s, %s", s1, s1, hex(OOR))
        a("buffer_load_dwordx4 %s, %s, %s, %s offen", hv.sub(4 * i, 4), o16, r0, s1 if i else s0)
    for i in range(4):
        a("s_mov_b32 %s, %d", s1, 32768 + 8192 * i)
        a("buffer_load_dwordx4 %s, %s, %s, %s offen", wv.sub(4 * i, 4), o16, r1, s1)
    a("v_lshrrev_b32 %s, 4, %s", t0, tid)
    a("v_lshl_add_u32 %s, %s, 6, %s", aw, t0, o16)
    a("v_lshl_add_u32 %s, %s, 4, %s", ah, t0, o16)
    a("v_add_u32 %s, %d, %s", ah, K1_LH, ah)
    a("s_lshr_b32 %s, %s, 1", s2_, sw)
    a("s_and_b32 %s, %s, 1", s3, sw)
    a("v_and_b32 %s, 31, %s", t0, lane)
    a("v_lshrrev_b32 %s, 5, %s", t1, lane)
    a("v_mul_u32_u24 %s, 272, %s", ar, t0)
    a("v_lshl_add_u32 %s, %s, 4, %s", ar, t1, ar)
    a("s_mul_i32 %s, %s, %d", s1, s2_, 24 * 272)
    a("s_add_u32 %s, %s, %d", s1, s1, K1_LH)
    a("v_add_u32 %s, %s, %s", ar, s1, ar)
    a("v_lshlrev_b32 %s, 2, %s", so, t0)
    a("v_lshl_add_u32 %s, %s, 10, %s", so, t1, so)
    a("v_bfe_u32 %s, %s, 2, 2", br, lane)
    a("v_lshl_add_u32 %s, %s, 3, %s", br, t1, br)
    a("v_mul_u32_u24 %s, 320, %s", br, br)
    a("v_bfe_u32 %s, %s, 4, 1", t0, lane)
    a("v_lshl_add_u32 %s, %s, 5, %s", br, t0, br)
    a("v_and_b32 %s, 3, %s", t0, lane)
    a("v_lshl_add_u32 %s, %s, 3, %s", br, t0, br)
    a("s_lshl_b32 %s, %s, 7", s3, s3)
    a("v_add_u32 %s, %s, %s", br, s3, br)
    a("s_mul_i32 %s, %s, %d", s1, s2_, 24 * 256)
    a("s_add_u32 %s, %s, %s", s0, s0, s1)
    a("s_add_u32 %s, %s, %s", s0, s0, s3)
    a("s_add_u32 %s, %s, 4096", s1, s0)
    for i in range(4):
        a("s_waitcnt vmcnt(%d)", 7 - i)
        a("ds_write_b128 %s, %s offset:%d", ah, hv.sub(4 * i, 4), 32 * 272 * i)
    for i in range(4):
        a("s_waitcnt vmcnt(%d)", 3 - i)
        a("ds_write_b128 %s, %s offset:%d", aw, wv.sub(4 * i, 4), K1_LW + 32 * 320 * i)
    a("s_waitcnt lgkmcnt(0)")
    ts.stamp(1)
    a("s_barrier")

    def rd(ks):
        a("ds_read_b128 %s, %s offset:%d", af.sub(4 * (ks & 1), 4), ar, 32 * ks)
        for lh in range(2):
            for i in range(2):
                a("ds_read_b64_tr_b16 %s, %s offset:%d", bf[ks & 1].sub(4 * lh + 2 * i, 2), br,
                  K1_LW + (16 * ks + 4 * i) * 320 + 64 * lh)
    rd(0)
    for ks in range(8):
        if ks < 7:
            rd(ks + 1)
            a("s_waitcnt lgkmcnt(5)")
        else:
            a("s_waitcnt lgkmcnt(0)")
        for lh in range(2):
            a("v_mfma_f32_32x32x16_bf16 %s, %s, %s, %s", acc[lh], af.sub(4 * (ks & 1), 4), bf[ks & 1].sub(4 * lh, 4),
              acc[lh] if ks else "0")
    a("s_mov_b32 %s, %s", sv[0], hex(LOG2E))
    a("s_mov_b32 %s, %s", sv[1], hex(LOG2E))
    a("s_nop 9")

    def fin(r0_, r1_):
        for r in range(r0_, r1_, 2):
            for lh in range(2):
                a("v_pk_mul_f32 %s, %s, %s", acc[lh].sub(r, 2), acc[lh].sub(r, 2), sv)
            for q in (r, r + 1):
                a("v_cvt_pk_bf16_f32 %s, %s, %s", acc[0][q], acc[0][q], acc[1][q])
                row = 8 * (q // 4) + q % 4
                a("buffer_store_dword %s, %s, %s, %s offen offset:%d %s", acc[0][q], so, r2, s1 if row >= 16 else s0,
                  (row % 16) * 256, OPT["st1"])
    fin(0, 12)
    a("s_cmp_lg_u32 %s, 3", s2_)
    a("s_cbranch_scc1 K1_G_END")
    fin(12, 14)
    a.label("K1_G_END")
    ts.stamp(2)
    if OPT["ts"]:
        a("s_waitcnt vmcnt(0)")
        ts.stamp(3)
        ts.dump(P["ws"], sw, t0, t1)
    a.label("K1_END")
    a("s_endpgm")
    return V.hi, S.hi


L_AT = 0
L_S = 49 * 512
L_E = L_S + (CAP + 128) * 4
L_HIST = L_E + (CAP + 128) * 4
L_START = L_HIST + 512
L_POS = L_START + 512
L_GT = L_POS + 2048
L_RING = L_GT + 49 * 512
PS = 1088
RS = 1024 + 4 * PS
L_MACC = L_RING + 8 * RS
PB = 928
K2_LDS = L_MACC + 49 * PB
L_H = L_RING
assert L_S % 256 == 0 and L_E % 256 == 0 and K2_LDS <= 163840 and 128 * 272 <= 8 * RS
LOOR = 0x80000


def gen_k2(a):
    S = Regs("s", 24, 102)
    V = Regs("v", 1, 256)
    kernel_head(a, "egnn_main_kernel")
    ts = TS(a, S, 8, 1)
    a("s_cmp_ge_u32 s2, 256")
    a("s_cbranch_scc1 K2_END")
    P = load_ptrs(a)
    ts.init()
    ts.stamp(0)
    tid = R("v", 0)
    lane, vh, fbase, tbase, bS4, bOH, pS4, pOH, win, bE, bS, one, posc = (V.get() for _ in range(13))
    Q = [V.get(16, 4) for _ in range(4)]
    Qall = R("v", Q[0].i, 64)
    y = [V.get(16, 4), V.get(16, 4)]
    yall = R("v", y[0].i, 32)
    e = [V.get(16, 4), V.get(16, 4)]
    eall = R("v", e[0].i, 32)
    adr = V.get(16, 4)
    m = [adr.sub(8, 8), V.get(8, 4)]
    ldall = V.get(16, 4)
    ld = [ldall.sub(0, 8), ldall.sub(8, 8)]
    sel = [V.get(4, 4), V.get(4, 4)]
    zero = V.get(4, 4)
    Ap = [V.get(4, 4), V.get(4, 4)]
    W3, WX = V.get(4, 4), V.get(4, 4)
    oh, S4 = V.get(4, 4), V.get(4, 4)
    psrc, pdst = V.get(4, 4), V.get(4, 4)
    ones, aB, aA, da = V.get(2), V.get(2), V.get(2), V.get(2)
    T = V.get(16, 4)
    rBP, rPOS, rWS, rH = (S.get(4, 4) for _ in range(4))
    sw, sb, snb, sJ, sq, sfirst, smore, stot, sU, snu, su0, su, swend, spi, spn, spc, sret, snr = (S.get() for _ in range(18))
    s0, s1, s2_, s3, s4, sdot = (S.get() for _ in range(6))
    sval, sx = S.get(2, 2), S.get(2, 2)
    t0, t1, t2, t3 = T[0], T[1], T[2], T[3]

    a("v_lshrrev_b32 %s, 6, %s", t0, tid)
    a("v_and_b32 %s, 63, %s", lane, tid)
    a("v_readfirstlane_b32 %s, %s", sw, t0)
    a("s_and_b32 %s, s2, 7", s0)
    a("s_lshr_b32 %s, s2, 3", s1)
    a("s_lshl_b32 %s, %s, 5", sb, s0)
    a("s_add_u32 %s, %s, %s", sb, sb, s1)
    a("s_mul_i32 %s, %s, %d", snb, sb, BN)
    hst = Qall.sub(0, 16)
    acc = Q
    Wf = yall
    ent = eall.sub(0, 24)
    voff, vrem, vea, o16, l16 = eall[24], eall[25], eall[26], eall[27], eall[28]
    rk = adr
    dl4 = ldall
    a("v_lshrrev_b32 %s, 1, %s", t0, tid)
    a("v_lshlrev_b32 %s, 7, %s", t0, t0)
    a("v_lshlrev_b32 %s, 4, %s", o16, tid)
    a("v_lshlrev_b32 %s, 4, %s", l16, lane)
    a("s_lshl_b32 %s, %s, 15", s0, s0)
    a("s_lshl_b32 %s, %s, 2", s1, s1)
    a("s_add_u32 %s, %s, %s", s0, s0, s1)
    a("s_add_u32 %s, %s, %s", s0, s0, hex(WS_OFF))
    a("s_waitcnt lgkmcnt(0)")
    srd(a, rWS, P["ws"], 0, WS_SIZE)
    a("buffer_load_dword %s, %s, %s, %s offen", voff, t0, rWS, s0)
    srd(a, rH, P["h"], 0, N * 256)
    a("s_lshl_b32 %s, %s, 8", s0, snb)
    for i in range(4):
        if i:
            a("s_add_u32 %s, %s, %d", s1, s0, 8192 * i)
        if i == 3:
            a("s_cmp_lt_u32 %s, 2", sw)
            a("s_cselect_b32 %s, %s, %s", s1, s1, hex(OOR))
        a("buffer_load_dwordx4 %s, %s, %s, %s offen", hst.sub(4 * i, 4), o16, rH, s1 if i else s0)
    srd(a, rPOS, P["ws"], POS_BASE, BIAS + N * 16)
    a("s_lshl_b32 %s, %s, 4", s1, snb)
    a("s_add_u32 %s, %s, %s", s1, s1, hex(BIAS))
    a("s_cmp_lt_u32 %s, 2", sw)
    a("s_cselect_b32 %s, %s, %s", s1, s1, hex(OOR))
    a("buffer_load_dwordx4 %s, %s, %s, %s offen", psrc, o16, rPOS, s1)
    a("s_lshl_b32 %s, %s, 13", s0, sw)
    a("s_add_u32 %s, %s, %s", s0, s0, hex(WS_WF))
    a("s_add_u32 %s, %s, 4096", s1, s0)
    for ks in range(8):
        a("buffer_load_dwordx4 %s, %s, %s, %s offen offset:%d", Wf.sub(4 * ks, 4), l16, rWS, s1 if ks >= 4 else s0, (ks & 3) * 1024)
    a("s_mov_b32 %s, %s", s0, hex(WS_W3))
    a("buffer_load_dwordx4 %s, %s, %s, %s offen", W3, l16, rWS, s0)
    a("buffer_load_dwordx4 %s, %s, %s, %s offen offset:1024", WX, l16, rWS, s0)
    srd(a, rBP, P["ws"], 0, BIAS + N * 256)
    for i in range(4):
        a("v_mov_b32 %s, 0", zero[i])
    a("v_add_u32 %s, %d, %s", t0, L_MACC, o16)
    for i in range(6):
        a("ds_write_b128 %s, %s offset:%d", t0, zero, 8192 * i)
    a("v_lshrrev_b32 %s, 5, %s", vh, lane)
    a("v_and_b32 %s, 31, %s", t0, lane)
    a("v_lshlrev_b32 %s, 2, %s", t1, t0)
    a("v_add_u32 %s, %d, %s", fbase, L_MACC, t1)
    a("v_mov_b32 %s, 0x3f80", one)
    a("v_mov_b32 %s, 0x3f003f00", ones[0])
    a("v_mov_b32 %s, 0", ones[1])
    a("v_mov_b32 %s, 0x3f80", aA[1])
    a("v_mov_b32 %s, %s", posc, hex(f32((2.0 ** 23 - 2.0 ** 19) * 2.0 ** -126)))
    a("s_mov_b32 %s, %s", sdot, hex((5 << 7) | (13 << 23)))
    a("v_cvt_f32_u32 %s, %s", t1, t1)
    a("v_mul_f32 %s, 0x00800000, %s", t1, t1)
    a("v_lshrrev_b32 %s, 16, %s", t1, t1)
    a("v_cmp_gt_u32 vcc, 32, %s", lane)
    a("v_mov_b32 %s, %s", t2, hex((9 << 7) | (17 << 23)))
    a("s_mul_i32 %s, %s, %d", s0, sw, RS)
    a("s_add_u32 %s, %s, %d", s0, s0, L_RING)
    a("v_cndmask_b32 %s, 0, %s, vcc", aB[0], t2)
    a("v_cndmask_b32 %s, 0, %s, vcc", aB[1], t1)
    a("v_add_u32 %s, %s, %s", tbase, s0, l16)
    a("v_and_b32 %s, 0xf0, %s", t1, l16)
    a("v_add_u32 %s, %s, %s", t1, s0, t1)
    a("v_add_u32 %s, -16, %s", t2, lane)
    a("v_cmp_gt_u32 vcc, 32, %s", t2)
    a("v_mov_b32 %s, %s", t2, hex(LOOR))
    a("v_bfe_u32 %s, %s, 2, 2", t3, lane)
    a("v_cndmask_b32 %s, %s, %s, vcc", bOH, t1, t2)
    a("v_lshl_add_u32 %s, %s, 2, %s", t3, vh, t3)
    a("v_lshlrev_b32 %s, 4, %s", t3, t3)
    a("v_and_b32 %s, 1, %s", t1, lane)
    a("v_lshl_add_u32 %s, %s, 3, %s", t3, t1, t3)
    a("v_bfe_u32 %s, %s, 1, 1", t1, lane)
    a("v_bfe_u32 %s, %s, 4, 1", t2, lane)
    a("v_lshl_add_u32 %s, %s, 1, %s", t1, t2, t1)
    a("v_mul_u32_u24 %s, %d, %s", t1, PS, t1)
    a("s_add_u32 %s, %s, 1024", s1, s0)
    a("v_add3_u32 %s, %s, %s, %s", bS4, t1, t3, s1)
    a("v_lshlrev_b32 %s, 4, %s", t2, t2)
    a("v_lshlrev_b32 %s, %s, %s", t2, t2, one)
    a("v_and_b32 %s, 15, %s", t1, lane)
    a("v_lshlrev_b32 %s, 2, %s", t3, vh)
    a("v_xor_b32 %s, %s, %s", t1, t1, t3)
    for i in range(2):
        for t in range(4):
            a("v_cmp_eq_u32 vcc, %d, %s", 8 * i + t, t1)
            a("s_nop 1")
            a("v_cndmask_b32 %s, 0, %s, vcc", sel[i][t], t2)
    a("s_mov_b32 %s, 0", sJ)
    a("s_mov_b32 %s, 24", sq)
    a("s_mov_b32 %s, 1", sfirst)
    a("s_waitcnt vmcnt(15)")
    ts.stamp(1)
    a.label("K2_ROUND")
    a("v_lshlrev_b32 %s, 4, %s", l16, lane)
    a("ds_write_b128 %s, %s offset:%d", l16, zero, L_HIST)
    a("v_lshrrev_b32 %s, 16, %s", vrem, voff)
    a("v_and_b32 %s, 0xffff, %s", t0, voff)
    a("v_subrev_u32 %s, %s, %s", vrem, sJ, vrem)
    a("v_and_b32 %s, 1, %s", t1, tid)
    a("v_cmp_lt_i32 %s, %s, %s", sx, sq, vrem)
    a("v_lshlrev_b32 %s, 1, %s", t1, t1)
    a("v_min_i32 %s, %s, %s", vrem, sq, vrem)
    a("v_add3_u32 %s, %s, %s, %s", t0, t0, t1, sJ)
    a("v_sub_u32 %s, %s, %s", vrem, vrem, t1)
    a("v_lshrrev_b32 %s, 1, %s", t2, tid)
    a("v_mul_u32_u24 %s, %d, %s", t2, CHB, t2)
    a("v_lshl_add_u32 %s, %s, 3, %s", vea, t0, t2)
    a("v_mov_b32 %s, %s", t3, hex(OOR))
    a("s_mov_b32 %s, %s", s0, hex(WS_ENT))
    for i in range(6):
        a("v_cmp_lt_i32 vcc, %d, %s", 4 * i, vrem)
        a("s_nop 1")
        a("v_cndmask_b32 %s, %s, %s, vcc", t0, t3, vea)
        a("buffer_load_dwordx4 %s, %s, %s, %s offen offset:%d", ent.sub(4 * i, 4), t0, rWS, s0, 32 * i)
    a("s_cmp_eq_u32 %s, 0", sfirst)
    a("s_cbranch_scc1 K2_R1")
    a("v_lshrrev_b32 %s, 4, %s", t0, tid)
    a("v_lshl_add_u32 %s, %s, 4, %s", t0, t0, o16)
    a("v_add_u32 %s, %d, %s", t0, L_H, t0)
    for i in range(4):
        a("s_waitcnt vmcnt(%d)", 20 - i)
        a("ds_write_b128 %s, %s offset:%d", t0, hst.sub(4 * i, 4), 32 * 272 * i)
    a("s_cmp_ge_u32 %s, 2", sw)
    a("s_cbranch_scc1 K2_R1")
    a("s_waitcnt vmcnt(16)")
    a("ds_write_b128 %s, %s offset:%d", o16, psrc, L_POS)
    a.label("K2_R1")
    a("v_mov_b32 %s, 1", t1)
    a("s_waitcnt lgkmcnt(0)")
    a("s_barrier")
    a("s_mov_b64 exec, %s", sx)
    a("s_cbranch_execz K2_R2")
    a("ds_write_b32 %s, %s offset:%d", zero[0], t1, L_HIST + 127 * 4)
    a.label("K2_R2")
    a("s_mov_b64 exec, -1")
    a("s_mov_b32 %s, 0", snr)
    a("s_waitcnt vmcnt(0)")
    ts.stamp(2)
    for i in range(6):
        for t in range(2):
            k = 2 * i + t
            a("v_cmpx_lt_i32 vcc, %d, %s", 4 * i + t, vrem)
            a("s_cbranch_execz K2_R3")
            a("s_mov_b32 %s, %d", snr, k + 1)
            a("v_lshlrev_b32_sdwa %s, 1, %s dst_sel:DWORD dst_unused:UNUSED_PAD src0_sel:DWORD src1_sel:WORD_0",
              dl4[k], ent[2 * k + 1])
            a("ds_add_rtn_u32 %s, %s, %s offset:%d", rk[k], dl4[k], t1, L_HIST)
    a.label("K2_R3")
    a("s_mov_b64 exec, -1")
    a("s_cmp_eq_u32 %s, 0", sfirst)
    a("s_cbranch_scc1 K2_R4")
    a("s_mov_b32 %s, 0", sfirst)
    ar, wa = eall[29], eall[30]
    a("v_and_b32 %s, 31, %s", t0, lane)
    a("v_mul_u32_u24 %s, 272, %s", ar, t0)
    a("v_lshl_add_u32 %s, %s, 4, %s", ar, vh, ar)
    a("v_add_u32 %s, %d, %s", ar, L_H, ar)
    a("v_lshlrev_b32 %s, 2, %s", wa, t0)
    a("v_lshl_add_u32 %s, %s, 10, %s", wa, vh, wa)
    a("s_and_b32 %s, %s, 3", s0, sw)
    a("s_lshl_b32 %s, %s, 7", s0, s0)
    a("s_cmp_lt_u32 %s, 4", sw)
    a("s_cselect_b32 %s, %d, %d", s1, L_AT, L_GT)
    a("s_add_u32 %s, %s, %s", s0, s0, s1)
    a("v_add_u32 %s, %s, %s", wa, s0, wa)
    a("s_mov_b32 %s, %s", sval[0], hex(LOG2E))
    a("s_mov_b32 %s, %s", sval[1], hex(LOG2E))
    a("s_waitcnt lgkmcnt(0)")
    seq = [(rt, ks) for rt in range(4) for ks in range(8)]
    afb = lambda n: T.sub(4 * (n & 3), 4)
    rdA = lambda n: a("ds_read_b128 %s, %s offset:%d", afb(n), ar, seq[n][0] * 24 * 272 + 32 * seq[n][1])
    for n in range(3):
        rdA(n)
    for n, (rt, ks) in enumerate(seq):
        if n + 3 < 32:
            rdA(n + 3)
        a("s_waitcnt lgkmcnt(%d)", min(3, 31 - n))
        a("v_mfma_f32_32x32x16_bf16 %s, %s, %s, %s", acc[rt], afb(n), Wf.sub(4 * ks, 4), acc[rt] if ks else "0")
    for rt in range(4):
        for i in range(7 if rt == 3 else 6):
            a("v_pk_mul_f32 %s, %s, %s", acc[rt].sub(2 * i, 2), acc[rt].sub(2 * i, 2), sval)
            a("v_cvt_pk_bf16_f32 %s, %s, %s", acc[rt][2 * i], acc[rt][2 * i], acc[rt][2 * i + 1])
            if i == 6:
                a("s_mov_b32 exec_hi, 0")
            a("ds_write_b32 %s, %s offset:%d", wa, acc[rt][2 * i], (12 * rt + 4 * (i // 2) + i % 2) * 512)
    a("s_mov_b64 exec, -1")
    a.label("K2_R4")
    a("v_lshlrev_b32 %s, 3, %s", t3, lane)
    a("s_waitcnt lgkmcnt(0)")
    a("s_barrier")
    ts.stamp(3)
    cn, mx, st = T.sub(4, 2), T.sub(6, 2), T.sub(8, 2)
    a("ds_read_b64 %s, %s offset:%d", cn, t3, L_HIST)
    a("s_mov_b32 %s, -1", sx[0])
    a("s_mov_b32 %s, 0x1ffff", sx[1])
    a("s_waitcnt lgkmcnt(0)")
    a("v_readlane_b32 %s, %s, 63", smore, cn[1])
    for i in range(2):
        a("v_max_u32 %s, 3, %s", mx[i], cn[i])
        a("v_cndmask_b32 %s, 0, %s, %s", mx[i], mx[i], sx)
    a("v_add_u32 %s, %s, %s", t1, mx[0], mx[1])
    a("v_mov_b32 %s, %s", t0, t1)
    wave_scan(a, t0)
    a("v_sub_u32 %s, %s, %s", st[0], t0, t1)
    a("v_readlane_b32 %s, %s, 63", stot, t0)
    a("v_add_u32 %s, %s, %s", st[1], st[0], mx[0])
    a("s_cmp_gt_u32 %s, %d", stot, CAP)
    a("s_cbranch_scc1 K2_RETRY")
    a("s_add_u32 %s, %s, 15", sU, stot)
    a("s_lshr_b32 %s, %s, 4", sU, sU)
    a("s_lshl_b32 %s, %s, 6", s0, sU)
    a("v_mov_b32 %s, %s", t0, s0)
    for i in range(2):
        a("v_lshlrev_b32 %s, 2, %s", st[i], st[i])
        a("v_cndmask_b32 %s, %s, %s, %s", st[i], t0, st[i], sx)
    a("ds_write_b64 %s, %s offset:%d", t3, st, L_START)
    stv = Qall.sub(0, 12)
    for k in range(12):
        if k % 2 == 0:
            a("s_cmp_le_u32 %s, %d", snr, k)
            a("s_cbranch_scc1 K2_R5")
        a("ds_read_b32 %s, %s offset:%d", stv[k], dl4[k], L_START)
    a.label("K2_R5")
    a("v_mov_b32 %s, %s", t2, hex(DUMMY_S))
    a("s_cmp_lt_u32 %s, 6", sw)
    a("s_cbranch_scc1 K2_R6")
    a("s_cmp_eq_u32 %s, 6", sw)
    a("s_cbranch_scc1 K2_R5B")
    a("v_add_lshl_u32 %s, %s, %s, 2", t0, lane, stot)
    a("v_mov_b32 %s, 194", t1)
    a("ds_write2st64_b32 %s, %s, %s offset0:%d offset1:%d", t0, t2, t1, L_S // 256, L_E // 256)
    a("ds_write2st64_b32 %s, %s, %s offset0:%d offset1:%d", t0, t2, t1, L_S // 256 + 1, L_E // 256 + 1)
    a("s_branch K2_R6")
    a.label("K2_R5B")
    a("v_min_u32 %s, %s, %s", t0, cn[0], cn[1])
    a("v_cmp_gt_u32 vcc, 3, %s", t0)
    a("s_and_b64 vcc, vcc, %s", sx)
    a("s_cbranch_scc0 K2_R6")
    for i in range(2):
        a("v_lshlrev_b32 %s, 2, %s", t1, lane)
        a("v_add_u32 %s, %d, %s", t1, 2 * i, t1)
        for k in range(3):
            a("v_add_u32 %s, %d, %s", t0, 4 * k, st[i])
            a("v_cmp_ge_u32 vcc, %d, %s", k, cn[i])
            a("s_and_b64 exec, vcc, %s", sx)
            a("ds_write2st64_b32 %s, %s, %s offset0:%d offset1:%d", t0, t2, t1, L_S // 256, L_E // 256)
            a("s_mov_b64 exec, -1")
    a.label("K2_R6")
    a("s_waitcnt lgkmcnt(0)")
    for k in range(12):
        a("v_cmpx_lt_i32 vcc, %d, %s", 4 * (k // 2) + k % 2, vrem)
        a("s_cbranch_execz K2_R7")
        a("v_lshl_add_u32 %s, %s, 2, %s", stv[k], rk[k], stv[k])
        a("ds_write2st64_b32 %s, %s, %s offset0:%d offset1:%d", stv[k], ent[2 * k], ent[2 * k + 1], L_S // 256, L_E // 256)
    a.label("K2_R7")
    a("s_mov_b64 exec, -1")
    a("s_lshr_b32 %s, %s, 3", s0, sU)
    a("s_and_b32 %s, %s, 7", s1, sU)
    a("s_mul_i32 %s, %s, %s", su0, s0, sw)
    a("s_min_u32 %s, %s, %s", s2_, s1, sw)
    a("s_add_u32 %s, %s, %s", su0, su0, s2_)
    a("s_cmp_lt_u32 %s, %s", sw, s1)
    a("s_addc_u32 %s, %s, 0", snu, s0)
    a("v_add_lshl_u32 %s, %s, %s, 6", t0, lane, su0)
    a("s_lshl_b32 %s, %s, 6", s0, su0)
    a("s_mov_b32 m0, %s", s0)
    a("s_waitcnt lgkmcnt(0)")
    a("s_barrier")
    ts.stamp(4)
    MF16 = "v_mfma_f32_32x32x16_bf16 %s, %s, %s, %s"
    MF8 = "v_mfma_f32_32x32x8_bf16 %s, %s, %s, %s"

    def stageA0():
        a("ds_read_addtid_b32 %s offset:%d", bS, L_S)
        a("ds_read_addtid_b32 %s offset:%d", bE, L_E)

    def stageA1(x0, x1):
        a("v_dot2_f32_bf16 %s, %s, %s, %s", x0, bS, sdot, posc)
        a("v_lshlrev_b32_sdwa %s, 3, %s dst_sel:DWORD dst_unused:UNUSED_PAD src0_sel:DWORD src1_sel:WORD_0", x1, bE)
        a("v_cmp_gt_u32 vcc, %s, %s", hex(DUMMY_S), bS)
        a("ds_read_b96 %s, %s offset:%d", pdst.sub(0, 3), x1, L_POS)
        a("buffer_load_dwordx3 %s, %s, %s, 0 offen", psrc.sub(0, 3), x0, rPOS)
        a("s_mov_b64 %s, vcc", sval)

    def stageB(x0, x1, x2, x3):
        for c in range(4):
            a("ds_write_b128 %s, %s offset:%d", tbase, zero, 1024 + PS * c)
        for c in range(3):
            a("v_sub_f32 %s, %s, %s", pdst[c], pdst[c], psrc[c])
        a("v_cvt_pk_bf16_f32 %s, %s, %s", x0, pdst[0], pdst[1])
        a("v_cvt_pk_bf16_f32 %s, %s, 0", x1, pdst[2])
        a("v_and_or_b32 %s, %s, 14, %s", x3, bE, tbase)
        if OPT["exactd"]:
            a("v_lshlrev_b32 %s, 16, %s", pdst[0], x0)
            a("v_and_b32 %s, 0xffff0000, %s", pdst[1], x0)
            a("v_lshlrev_b32 %s, 16, %s", pdst[2], x1)
            for c in range(3):
                a("v_mul_f32 %s, %s, %s", pdst[c], pdst[c], pdst[c])
            a("v_cvt_pk_bf16_f32 %s, %s, %s", pdst[0], pdst[0], pdst[1])
            a("v_cvt_pk_bf16_f32 %s, %s, 0", pdst[2], pdst[2])
            a("s_mov_b32 %s, 0x3f803f80", s4)
            a("v_dot2_f32_bf16 %s, %s, %s, 0", x2, pdst[2], s4)
            a("v_dot2_f32_bf16 %s, %s, %s, %s", x2, pdst[0], s4, x2)
        else:
            a("v_dot2_f32_bf16 %s, %s, %s, 0", x2, x1, x1)
            a("v_dot2_f32_bf16 %s, %s, %s, %s", x2, x0, x0, x2)
        a("s_mov_b64 exec, %s", sval)
        a("ds_write_b16 %s, %s offset:%d", x3, one, 1024)
        a("ds_write_b16 %s, %s offset:%d", x3, x0, 1024 + PS)
        a("ds_write_b16_d16_hi %s, %s offset:%d", x3, x0, 1024 + 2 * PS)
        a("ds_write_b16 %s, %s offset:%d", x3, x1, 1024 + 3 * PS)
        a("s_mov_b64 exec, -1")
        a("v_cvt_pk_bf16_f32 %s, %s, %s", x2, x2, bE)
        a("ds_write_b32 %s, %s", tbase, x2)

    def loadAp():
        a("s_and_b32 %s, %s, 0xff", spi, s0)
        a("s_lshr_b32 %s, %s, 8", swend, s0)
        for i in range(4):
            a("s_sub_u32 %s, %d, %s", s1, i, spi)
            a("s_and_b32 %s, %s, 3", s1, s1)
            a("s_add_u32 %s, %s, %s", s1, s1, spi)
            a("s_min_u32 %s, %s, 48", s1, s1)
            a("s_lshl_b32 m0, %s, 9", s1)
            a("s_nop 0")
            a("ds_read_addtid_b32 %s offset:%d", Ap[0][i], L_AT)
            a("ds_read_addtid_b32 %s offset:%d", Ap[1][i], L_AT + 256)

    def gld(xy, r):
        a("buffer_load_dword %s, %s, %s, 0 offen offset:%d", ld[xy][r], adr[r], rBP, 128 * xy)

    def dmaWh2():
        a("s_mul_i32 %s, %s, %d", s1, sw, RS)
        a("s_add_u32 m0, %s, %d", s1, L_RING)
        a("s_lshl_b32 %s, %s, 12", s1, sw)
        a("s_add_u32 %s, %s, %s", s1, s1, hex(WS_WF + 65536))
        a("v_lshlrev_b32 %s, 4, %s", t0, lane)
        a("s_waitcnt lgkmcnt(0)")
        for i in range(4):
            a("buffer_load_dwordx4 %s, %s, %s offen offset:%d lds", t0, rWS, s1, 1024 * i)

    a("ds_read_addtid_b32 %s offset:%d", aA[0], L_S)
    stageA0()
    a("ds_read_b32 %s, %s offset:%d", win, t0, L_E)
    a("s_waitcnt lgkmcnt(3)")
    a(MF8, adr, aA, aB, "0")
    a("ds_read_addtid_b32 %s offset:%d", aA[0], L_S + 64)
    a("s_waitcnt lgkmcnt(1)")
    stageA1(t0, t1)
    a("v_and_b32 %s, 0xfc, %s", win, win)
    a("v_lshlrev_b32 %s, 1, %s", t2, win)
    a("ds_read_b32 %s, %s offset:%d", t2, t2, L_START + 32)
    a("v_lshrrev_b32 %s, 2, %s", win, win)
    for xy in range(2):
        for r in range(8):
            gld(xy, r)
    a("s_waitcnt lgkmcnt(0)")
    a(MF8, adr, aA, aB, "0")
    a("v_lshrrev_b32 %s, 6, %s", t2, t2)
    a("v_subrev_u32 %s, %s, %s", t2, su0, t2)
    a("v_lshl_or_b32 %s, %s, 8, %s", win, t2, win)
    for b in range(4):
        a(MF8, Q[b], zero.sub(0, 2), zero.sub(0, 2), "0")
    a("v_readfirstlane_b32 %s, %s", s0, win)
    loadAp()
    for i in range(8):
        a("v_mov_b32 %s, 0", m[0][i])
        a("v_mov_b32 %s, 0", m[1][i])
    for i in range(4):
        a("v_mov_b32 %s, 0", S4[i])
    a("s_mov_b32 %s, 0", su)
    a("s_mov_b32 %s, -1", spn)
    a("s_mov_b32 %s, -1", spc)
    a("s_mov_b32 %s, 0", sret)
    a("s_lshl_b32 %s, %s, 6", s0, su0)
    a("s_add_u32 m0, %s, 256", s0)
    a("s_waitcnt vmcnt(16)")
    stageB(t0, t1, t2, t3)
    a("ds_read_b128 %s, %s offset:1024", oh, bOH)
    a("ds_read2_b32 %s, %s", da, bOH)
    stageA0()
    a("s_waitcnt vmcnt(12)")
    a(MF16, y[0], sel[0], ld[0].sub(0, 4), "0")
    a("s_waitcnt vmcnt(8)")
    a(MF16, y[0], sel[1], ld[0].sub(4, 4), y[0])
    for r in range(8):
        gld(0, r)
    a("s_waitcnt lgkmcnt(0)")
    a(MF16, y[0], oh, Ap[0], y[0])
    a(MF8, y[0], da, W3.sub(0, 2), y[0])
    a("s_waitcnt vmcnt(12)")
    a(MF16, y[1], sel[0], ld[1].sub(0, 4), "0")
    a("s_nop 7")
    ts.stamp(5)

    EXP = lambda xy, r: a("v_exp_f32 %s, -%s", e[xy][r], y[xy][r])
    RCP = lambda xy, r: a("v_rcp_f32 %s, %s", e[xy][r], e[xy][r])
    SEG = lambda b: a(MF16, Q[b], S4, m[b >> 1].sub(4 * (b & 1), 4), Q[b])

    def rng(f, xy, r0, r1):
        for r in range(r0, r1):
            f(xy, r)

    def MUL(xy):
        for r in range(0, 16, 2):
            a("v_pk_mul_f32 %s, %s, %s", e[xy].sub(r, 2), e[xy].sub(r, 2), y[xy].sub(r, 2))

    def CVT(xy):
        for r in range(8):
            a("v_cvt_pk_bf16_f32 %s, %s, %s", m[xy][r], e[xy][2 * r], e[xy][2 * r + 1])

    a(".p2align 6")
    a.label("K2_LOOP")
    a("s_waitcnt vmcnt(8)")
    a(MF16, y[1], sel[1], ld[1].sub(4, 4), y[1])
    rng(gld, 1, 0, 4)
    rng(EXP, 0, 0, 4)
    a(MF16, y[1], oh, Ap[1], y[1])
    rng(EXP, 0, 4, 8)
    a(MF8, y[1], da, W3.sub(2, 2), y[1])
    rng(gld, 1, 4, 8)
    rng(EXP, 0, 8, 16)
    a("s_add_u32 %s, %s, 2", s0, su)
    a("s_add_u32 %s, %s, %s", s1, s0, su0)
    a("s_cmp_lt_u32 %s, %s", s0, snu)
    a("s_cselect_b32 %s, %s, %s", s1, s1, sU)
    a("s_lshl_b32 m0, %s, 6", s1)
    rng(EXP, 1, 0, 2)
    a(MF8, e[0], ones, ones, e[0])
    a("ds_read_addtid_b32 %s offset:%d", aA[0], L_S)
    rng(EXP, 1, 2, 6)
    SEG(0)
    a("s_and_b32 %s, %s, 3", s0, su)
    a("s_lshl_b32 %s, %s, 8", s0, s0)
    a("s_add_u32 %s, %s, 1", su, su)
    a("s_and_b32 %s, %s, 3", s3, su)
    a("s_lshl_b32 %s, %s, 8", s1, s3)
    rng(EXP, 1, 6, 10)
    SEG(1)
    a("v_add_u32 %s, %s, %s", pS4, s0, bS4)
    a("v_add_u32 %s, %s, %s", pOH, s1, bOH)
    rng(EXP, 1, 10, 13)
    SEG(2)
    rng(EXP, 1, 13, 16)
    rng(RCP, 0, 0, 2)
    a(MF8, e[1], ones, ones, e[1])
    rng(RCP, 0, 2, 6)
    SEG(3)
    a("s_waitcnt lgkmcnt(0)")
    a("ds_read_b64_tr_b16 %s, %s", S4.sub(0, 2), pS4)
    a("ds_read_b64_tr_b16 %s, %s offset:128", S4.sub(2, 2), pS4)
    a("s_cmp_eq_u32 %s, %s", su, snu)
    a("s_cbranch_scc1 K2_LAST")
    a("s_cmp_le_u32 %s, 1", s3)
    a("s_cbranch_scc1 K2_BATCH")
    a.label("K2_L1")
    a("s_cmp_eq_u32 %s, %s", su, swend)
    a("s_cbranch_scc1 K2_WIN")
    a.label("K2_L2")
    a("ds_read_b128 %s, %s offset:1024", oh, pOH)
    a("ds_read2_b32 %s, %s", da, pOH)
    rng(RCP, 0, 6, 10)
    a(MF8, adr, aA, aB, "0")
    rng(RCP, 0, 10, 16)
    MUL(0)
    a("s_cmp_ge_i32 %s, 0", spc)
    a("s_cbranch_scc1 K2_FLUSH")
    a.label("K2_L3")
    a("s_waitcnt vmcnt(12)")
    a(MF16, y[0], sel[0], ld[0].sub(0, 4), "0")
    CVT(0)
    a("s_waitcnt vmcnt(8)")
    a(MF16, y[0], sel[1], ld[0].sub(4, 4), y[0])
    rng(gld, 0, 0, 4)
    rng(RCP, 1, 0, 4)
    a("s_waitcnt lgkmcnt(0)")
    a(MF16, y[0], oh, Ap[0], y[0])
    rng(RCP, 1, 4, 8)
    a(MF8, y[0], da, W3.sub(0, 2), y[0])
    rng(gld, 0, 4, 8)
    rng(RCP, 1, 8, 16)
    MUL(1)
    a("s_waitcnt vmcnt(12)")
    a(MF16, y[1], sel[0], ld[1].sub(0, 4), "0")
    a("s_mov_b32 %s, %s", spc, spn)
    a("s_mov_b32 %s, -1", spn)
    a("s_cmp_lt_u32 %s, %s", su, snu)
    CVT(1)
    a("s_cbranch_scc1 K2_LOOP")
    SEG(0)
    SEG(1)
    SEG(2)
    SEG(3)
    a("s_mov_b32 %s, %s", spc, spi)
    a("s_mov_b32 %s, 1", sret)
    a.label("K2_FLUSH")
    sc4 = [s0, s1, s2_, s4]
    for i in range(4):
        a("s_sub_u32 %s, %d, %s", sc4[i], i, spc)
        a("s_and_b32 %s, %s, 3", sc4[i], sc4[i])
        a("s_add_u32 %s, %s, %s", sc4[i], sc4[i], spc)
        a("s_min_u32 %s, %s, 48", sc4[i], sc4[i])
        a("s_mul_i32 %s, %s, %d", sc4[i], sc4[i], PB)
    a("s_sub_u32 %s, %s, %s", s2_, s2_, s0)
    a("s_sub_u32 %s, %s, %s", s4, s4, s1)
    fa = [T[14], T[15]]
    a("v_mad_i32_i24 %s, %s, %s, %s", fa[0], vh, s2_, fbase)
    a("v_mad_i32_i24 %s, %s, %s, %s", fa[1], vh, s4, fbase)
    a("v_add_u32 %s, %s, %s", fa[0], s0, fa[0])
    a("v_add_u32 %s, %s, %s", fa[1], s1, fa[1])
    for b in range(4):
        o = "op_sel:[0,%d,0] op_sel_hi:[1,%d,1]" % (b & 1, b & 1)
        for r in range(4, 16, 2):
            if b == 0:
                a("v_pk_mul_f32 %s, %s, %s op_sel_hi:[1,0]", Q[0].sub(r, 2), Q[0].sub(r, 2), WX.sub(0, 2))
            else:
                a("v_pk_fma_f32 %s, %s, %s, %s %s", Q[0].sub(r, 2), Q[b].sub(r, 2), WX.sub(b & 2, 2), Q[0].sub(r, 2), o)
    n = 0
    for xy in (1, 0):
        for r in range(4):
            a("v_cvt_pk_bf16_f32 %s, %s, %s", T[n], Q[2 * xy][r], Q[2 * xy + 1][r])
            a("ds_pk_add_bf16 %s, %s offset:%d", fa[r // 2], T[n], (r % 2) * 272 + xy * 128)
            n += 1
        a(MF8, Q[2 * xy + 1], zero.sub(0, 2), zero.sub(0, 2), "0")
    for r in range(4, 16, 2):
        a("v_cvt_pk_bf16_f32 %s, %s, %s", T[n], Q[0][r], Q[0][r + 1])
        a("ds_pk_add_bf16 %s, %s offset:%d", fa[(r % 4) // 2], T[n], 528 + (r // 4 - 1) * 128)
        n += 1
    a(MF8, Q[2], zero.sub(0, 2), zero.sub(0, 2), "0")
    a("s_cmp_eq_u32 %s, 0", sret)
    a(MF8, Q[0], zero.sub(0, 2), zero.sub(0, 2), "0")
    a("s_cbranch_scc1 K2_L3")
    a("s_cmp_eq_u32 %s, 0", smore)
    a("s_cbranch_scc1 K2_FIN")
    a("s_add_u32 %s, %s, %s", sJ, sJ, sq)
    a("s_mov_b32 %s, 24", sq)
    a("s_branch K2_AGAIN")
    a.label("K2_RETRY")
    a("s_mov_b32 %s, 6", sq)
    a.label("K2_AGAIN")
    a("s_nop 7")
    a("s_and_b32 %s, s2, 7", s0)
    a("s_lshr_b32 %s, s2, 3", s1)
    a("s_lshl_b32 %s, %s, 15", s0, s0)
    a("s_lshl_b32 %s, %s, 2", s1, s1)
    a("s_add_u32 %s, %s, %s", s0, s0, s1)
    a("s_add_u32 %s, %s, %s", s0, s0, hex(WS_OFF))
    a("v_lshrrev_b32 %s, 1, %s", t0, tid)
    a("v_lshlrev_b32 %s, 7, %s", t0, t0)
    a("s_waitcnt vmcnt(0)")
    a("buffer_load_dword %s, %s, %s, %s offen", voff, t0, rWS, s0)
    a("s_waitcnt vmcnt(0) lgkmcnt(0)")
    a("s_barrier")
    a("s_branch K2_ROUND")

    a.label("K2_LAST")
    a("s_cmp_lg_u32 %s, 0", smore)
    a("s_cbranch_scc1 K2_L2")
    dmaWh2()
    a("s_branch K2_L2")
    a.label("K2_BATCH")
    a("s_cmp_eq_u32 %s, 1", s3)
    a("s_cbranch_scc1 K2_BATCH1")
    a("s_add_u32 %s, %s, %s", s0, su, su0)
    a("s_lshl_b32 %s, %s, 6", s0, s0)
    a("s_add_u32 m0, %s, 256", s0)
    stageB(t0, t1, t2, t3)
    stageA0()
    a("s_branch K2_L1")
    a.label("K2_BATCH1")
    a("s_add_u32 %s, %s, 3", s0, su)
    a("s_cmp_ge_u32 %s, %s", s0, snu)
    a("s_cbranch_scc1 K2_L1")
    stageA1(t0, t1)
    a("s_branch K2_L1")
    a.label("K2_WIN")
    a("v_readlane_b32 %s, %s, %s", s0, win, su)
    a("s_mov_b32 %s, %s", spn, spi)
    loadAp()
    a("s_branch K2_L2")

    a.label("K2_FIN")
    ts.stamp(6)
    rO, rP = rBP, rPOS
    fac = [y[0], y[1]]
    g = [e[0].sub(0, 8), e[0].sub(8, 8)]
    hr = e[1]
    ga, ra, rb, so, pa, pp = T[4], T[5], T[6], T[7], T[8], T[9]
    col = T[10]
    a("s_lshr_b32 %s, %s, 1", s2_, sw)
    a("s_and_b32 %s, %s, 1", s3, sw)
    a("v_and_b32 %s, 31, %s", col, lane)
    a("v_lshlrev_b32 %s, 2, %s", so, col)
    a("v_lshl_add_u32 %s, %s, 10, %s", so, vh, so)
    a("s_mul_i32 %s, %s, 24", s4, s2_)
    a("s_add_u32 %s, %s, %s", s0, s4, snb)
    a("s_lshl_b32 %s, %s, 1", s0, s0)
    a("s_add_u32 %s, %s, %s", s0, s0, s3)
    a("s_lshl_b32 %s, %s, 7", su0, s0)
    a("s_add_u32 %s, %s, 4096", snu, su0)
    rowof = lambda r: 8 * (r // 4) + r % 4
    for r in range(14):
        a("buffer_load_dword %s, %s, %s, %s offen offset:%d", hr[r], so, rH, snu if rowof(r) >= 16 else su0, (rowof(r) % 16) * 256)
    a("s_add_u32 %s, %s, %s", s0, s4, s3)
    a("s_lshl_b32 %s, %s, 8", s0, s0)
    a("s_add_u32 %s, %s, %d", s0, s0, L_GT)
    a("v_add_u32 %s, %s, %s", ga, s0, so)
    a("v_add_u32 %s, 128, %s", t3, ga)
    for par in range(2):
        for ip in range(3):
            a("ds_read2st64_b32 %s, %s offset0:%d offset1:%d", g[par].sub(2 * ip, 2), t3 if par else ga, 8 * ip, 8 * ip + 2)
        a("ds_read_b32 %s, %s offset:%d", g[par][6], t3 if par else ga, 24 * 256)
    a("v_add_u32 %s, %s, %s", t0, s4, col)
    a("v_min_u32 %s, 97, %s", t0, t0)
    a("v_lshrrev_b32 %s, 1, %s", t1, t0)
    a("v_and_b32 %s, 1, %s", t0, t0)
    a("v_mul_u32_u24 %s, %d, %s", t1, PB, t1)
    a("v_mul_u32_u24 %s, 272, %s", t0, t0)
    a("v_lshlrev_b32 %s, 4, %s", t2, vh)
    a("v_add_u32 %s, %d, %s", t2, L_MACC, t2)
    a("v_add3_u32 %s, %s, %s, %s", ra, t0, t1, t2)
    a("s_mul_i32 %s, %s, %d", s0, s3, 4 * RS)
    a("s_add_u32 %s, %s, %d", s0, s0, L_RING)
    a("v_lshl_add_u32 %s, %s, 4, %s", rb, lane, s0)
    a("s_lshl_b32 %s, %s, 5", s0, sw)
    a("v_add_u32 %s, %s, %s", t0, s0, col)
    a("v_mul_u32_u24 %s, 171, %s", t1, t0)
    a("v_lshrrev_b32 %s, 9, %s", t1, t1)
    a("v_cmp_gt_u32 vcc, 147, %s", t0)
    a("v_mad_i32_i24 %s, %s, -3, %s", t0, t1, t0)
    a("s_mov_b32 %s, vcc_lo", sval[0])
    a("s_mov_b32 %s, 0", sval[1])
    a("v_mul_u32_u24 %s, %d, %s", pa, PB, t1)
    a("v_lshl_add_u32 %s, %s, 7, %s", pa, t0, pa)
    a("v_add_u32 %s, %s, %s", pa, pa, t2)
    a("v_lshlrev_b32 %s, 5, %s", t3, t1)
    a("v_lshl_add_u32 %s, %s, 2, %s", t3, t0, t3)
    px = psrc.sub(0, 2)
    a("v_add_u32 %s, %d, %s", t3, L_POS, t3)
    a("ds_read2_b32 %s, %s offset0:0 offset1:4", px, t3)
    a("v_mul_u32_u24 %s, 12, %s", pp, t1)
    a("v_lshl_add_u32 %s, %s, 1, %s", pp, t0, pp)
    a("v_lshlrev_b32 %s, 4, %s", t0, col)
    a("v_cmp_gt_u32 vcc, 2, %s", col)
    a("v_lshlrev_b32 %s, %s, %s", t0, t0, one)
    srd(a, rO, P["out"], 0, N * 256)
    for i in range(4):
        a("v_cndmask_b32 %s, 0, %s, vcc", S4[i], t0)
    srd(a, rP, P["out"], N * 256, N * 6)
    a("s_waitcnt lgkmcnt(0)")
    for par in range(2):
        for i in range(7):
            a("v_lshlrev_b32 %s, 16, %s", fac[par][2 * i], g[par][i])
            a("v_and_b32 %s, 0xffff0000, %s", fac[par][2 * i + 1], g[par][i])
    a("s_waitcnt vmcnt(14)")
    a("s_barrier")
    Af = lambda ks: ldall.sub(4 * (ks & 3), 4)
    Bf = lambda ks, par: Qall.sub(8 * ks + 4 * par, 4)

    def rdF(ks):
        a("ds_read_b128 %s, %s offset:%d", Af(ks), ra, 32 * ks)
        for par in range(2):
            a("ds_read_b128 %s, %s offset:%d", Bf(ks, par), rb, (2 * par + ks // 4) * RS + (ks % 4) * 1024)
    for ks in range(3):
        rdF(ks)
    for ks in range(8):
        if ks + 3 < 8:
            rdF(ks + 3)
        a("s_waitcnt lgkmcnt(%d)", 3 * min(3, 7 - ks))
        for par in range(2):
            a(MF16, fac[par], Af(ks), Bf(ks, par), fac[par])
    a("s_mov_b32 %s, %s", sx[0], hex(LN2))
    a("s_mov_b32 %s, %s", sx[1], hex(LN2))
    a("s_cmp_gt_u32 %s, 4", sw)
    a("s_cbranch_scc1 K2_F1")
    for ks in range(4):
        a("ds_read_b128 %s, %s offset:%d", Af(ks), pa, 528 + 32 * ks)
    for ks in range(4):
        a("s_waitcnt lgkmcnt(%d)", 3 - ks)
        a(MF16, adr, S4, Af(ks), adr if ks else "0")
    a.label("K2_F1")
    a("s_nop 7")
    ee = [Q[0], Q[1]]
    hh = [Q[2], Q[3]]

    def fin(r0, r1):
        for par in range(2):
            for r in range(r0, r1):
                a("v_exp_f32 %s, -%s", ee[par][r], fac[par][r])
        if r0 == 0:
            a("s_waitcnt vmcnt(0)")
        for r in range(r0, r1):
            a("v_lshlrev_b32 %s, 16, %s", hh[0][r], hr[r])
            a("v_and_b32 %s, 0xffff0000, %s", hh[1][r], hr[r])
        for par in range(2):
            for r in range(r0, r1, 2):
                a("v_pk_add_f32 %s, %s, 1.0 op_sel_hi:[1,0]", ee[par].sub(r, 2), ee[par].sub(r, 2))
                a("v_pk_mul_f32 %s, %s, %s", fac[par].sub(r, 2), fac[par].sub(r, 2), sx)
        for r in range(r0, r1, 2):
            for par in range(2):
                a("v_rcp_f32 %s, %s", ee[par][r], ee[par][r])
                a("v_rcp_f32 %s, %s", ee[par][r + 1], ee[par][r + 1])
            a("s_nop 0")
            for par in range(2):
                a("v_pk_fma_f32 %s, %s, %s, %s", fac[par].sub(r, 2), fac[par].sub(r, 2), ee[par].sub(r, 2), hh[par].sub(r, 2))
            for q in (r, r + 1):
                a("v_cvt_pk_bf16_f32 %s, %s, %s", fac[0][q], fac[0][q], fac[1][q])
                a("buffer_store_dword %s, %s, %s, %s offen offset:%d %s", fac[0][q], so, rO, snu if rowof(q) >= 16 else su0,
                  (rowof(q) % 16) * 256, OPT["st2"])
    fin(0, 12)
    a("s_cmp_lg_u32 %s, 3", s2_)
    a("s_cbranch_scc1 K2_F2")
    a("s_mov_b32 exec_hi, 0")
    fin(12, 14)
    a.label("K2_F2")
    a("s_cmp_gt_u32 %s, 4", sw)
    a("s_cbranch_scc1 K2_F3")
    a("v_add_f32 %s, %s, %s", px[0], px[0], adr[0])
    a("v_add_f32 %s, %s, %s", px[1], px[1], adr[1])
    a("v_cvt_pk_bf16_f32 %s, %s, %s", px[0], px[0], px[1])
    a("s_mul_i32 %s, %s, 6", s0, snb)
    a("s_mov_b64 exec, %s", sval)
    a("buffer_store_short %s, %s, %s, %s offen %s", px[0], pp, rP, s0, OPT["st2"])
    a("buffer_store_short_d16_hi %s, %s, %s, %s offen offset:6 %s", px[0], pp, rP, s0, OPT["st2"])
    a.label("K2_F3")
    if OPT["ts"]:
        a("s_waitcnt vmcnt(0)")
        ts.stamp(7)
        ts.dump(P["ws"], sw, t0, t1)
    a.label("K2_END")
    a("s_endpgm")
    return V.hi, S.hi


def descriptor(name, nv, ns):
    return """.p2align 6
.amdhsa_kernel %s
  .amdhsa_next_free_vgpr %d
  .amdhsa_next_free_sgpr %d
  .amdhsa_accum_offset %d
  .amdhsa_group_segment_fixed_size 0
  .amdhsa_kernarg_size 88
  .amdhsa_user_sgpr_count 2
  .amdhsa_user_sgpr_kernarg_segment_ptr 1
  .amdhsa_system_sgpr_workgroup_id_x 1
.end_amdhsa_kernel
""" % (name, nv, ns, (nv + 3) // 4 * 4)


def build():
    ref = open("standalone__cheap_equivariant_egnn__graph.s.ref").read().split("\n")
    head = [l for l in ref if l.startswith(";") and "@launch" not in l and "Override" not in l and "grid=ceil" not in l]
    head.append("; @launch kernel=egnn_part_kernel grid=(512,1,1) block=(512,1,1) lds=%d" % K1_LDS)
    head.append("; @launch kernel=egnn_main_kernel grid=(256,1,1) block=(512,1,1) lds=%d" % K2_LDS)
    a1, a2 = Asm(), Asm()
    v1, s1 = gen_k1(a1)
    v2, s2 = gen_k2(a2)
    nb = 0
    for nm, x in (("k1", a1), ("k2", a2)):
        bad, n = check_hazards(x.lines)
        nb += bad
        print("%s: %d instructions, %d hazards" % (nm, n, bad), file=sys.stderr)
    print("k1 v%d s%d lds %d; k2 v%d s%d lds %d" % (v1, s1, K1_LDS, v2, s2, K2_LDS), file=sys.stderr)
    txt = "\n".join(head) + "\n.amdgcn_target \"amdgcn-amd-amdhsa--gfx950\"\n.text\n" + a1.text() + a2.text()
    txt += ".section .rodata,\"a\"\n" + descriptor("egnn_part_kernel", v1, s1) + descriptor("egnn_main_kernel", v2, s2)
    return txt, nb


if __name__ == "__main__":
    out = "standalone__cheap_equivariant_egnn__graph.s"
    for arg in sys.argv[1:]:
        if "=" in arg:
            k, v = arg.split("=", 1)
            if k == "out":
                out = v
            else:
                assert k in OPT, k
                OPT[k] = int(v) if isinstance(OPT[k], int) else v.replace("_", " ")
    txt, nb = build()
    open(out, "w").write(txt)
    sys.exit(1 if nb else 0)
```

```python
import struct, sys, os
sys.path.insert(0, os.path.dirname(os.path.abspath(__file__)))
from asmlib import Asm, Regs, R, check_hazards

N, E = 25000, 400000
BN, CH = 98, 1564
CHB = CH * 8
BIAS = 0x0C000000
WS_BP = BIAS
POS_BASE = 0x00800000
WS_ENT = 0x0D000000
WS_OFF = 0x0D400000
WS_WF = 0x0D480000
WS_W3 = WS_WF + 98304
WS_WX = WS_W3 + 1024
WS_TS = 0x0E000000
WS_SIZE = 268435456
OOR = 0x40000000
LOG2E = 0x3FB8AA3B
LN2 = 0x3F317218
CAP = 2048
DUMMY_S = 0x437F0000

DELTA = 0.0027
OPT = dict(x="", prio=0, ts=0, exactd=0, k1_gemm_first=0, st1="", st2="")


def f32(x):
    return struct.unpack("<I", struct.pack("<f", x))[0]


def srd(a, d, base, off, size):
    if isinstance(off, int) and off == 0:
        a("s_mov_b32 %s, %s", d[0], base[0])
        a("s_mov_b32 %s, %s", d[1], base[1])
    else:
        a("s_add_u32 %s, %s, %s", d[0], base[0], hex(off) if isinstance(off, int) else off)
        a("s_addc_u32 %s, %s, 0", d[1], base[1])
    a("s_mov_b32 %s, %s", d[2], hex(size))
    a("s_mov_b32 %s, 0x20000", d[3])


def wave_scan(a, t):
    for sh in (1, 2, 4, 8):
        a("s_nop 1")
        a("v_add_u32_dpp %s, %s, %s row_shr:%d row_mask:0xf bank_mask:0xf", t, t, t, sh)
    a("s_nop 1")
    a("v_add_u32_dpp %s, %s, %s row_bcast:15 row_mask:0xa bank_mask:0xf", t, t, t)
    a("s_nop 1")
    a("v_add_u32_dpp %s, %s, %s row_bcast:31 row_mask:0xc bank_mask:0xf", t, t, t)


class TS:
    def __init__(self, a, S, n, kern):
        self.a, self.on, self.kern = a, OPT["ts"], kern
        if self.on:
            self.r = S.get(2 * n, 2)
            self.srd = S.get(4, 4)
            self.tmp = S.get(1)
            self.n = n

    def init(self):
        if self.on:
            for i in range(self.n):
                self.a("s_mov_b64 %s, 0", self.r.sub(2 * i, 2))

    def stamp(self, i):
        if self.on:
            self.a("s_memrealtime %s" if self.on == 1 else "s_memtime %s", self.r.sub(2 * i, 2))
            self.a("s_waitcnt lgkmcnt(0)")

    def dump(self, ws, swave, v0, v1):
        if not self.on:
            return
        a = self.a
        srd(a, self.srd, ws, WS_TS + self.kern * 0x100000, 0x100000)
        a("s_mov_b64 exec, -1")
        a("s_lshl_b32 %s, s2, 3", self.tmp)
        a("s_add_u32 %s, %s, %s", self.tmp, self.tmp, swave)
        a("s_lshl_b32 %s, %s, 6", self.tmp, self.tmp)
        a("v_mov_b32 %s, 0", v0)
        for i in range(self.n):
            a("v_mov_b32 %s, %s", v1, self.r[2 * i])
            a("buffer_store_dword %s, %s, %s, %s offen offset:%d", v1, v0, self.srd, self.tmp, 4 * i)


def kernel_head(a, name):
    a(".globl %s", name)
    a(".p2align 8")
    a(".type %s,@function", name)
    a.label(name)


def load_ptrs(a):
    a("s_load_dwordx16 s[4:19], s[0:1], 0")
    a("s_load_dwordx2 s[20:21], s[0:1], 64")
    a("s_load_dwordx2 s[22:23], s[0:1], 80")
    P = {}
    for i, n in enumerate(["h", "pos", "ea", "src", "dst", "we", "wx", "wh", "out", "ws"]):
        P[n] = R("s", 4 + 2 * i, 2)
    return P


K1_LW, K1_LH = 0, 128 * 320
K1_LDS = K1_LH + 128 * 272
K1_HIST, K1_START, K1_STAGE = 0, 1024, 2048


def gen_k1(a):
    S = Regs("s", 24, 96)
    V = Regs("v", 1, 128)
    kernel_head(a, "egnn_part_kernel")
    ts = TS(a, S, 8, 0)
    a("s_cmp_ge_u32 s2, 512")
    a("s_cbranch_scc1 K1_END")
    P = load_ptrs(a)
    ts.init()
    ts.stamp(0)
    tid = R("v", 0)
    lane, t0, t1 = V.get(), V.get(), V.get()
    sw, sc, s0, s1, s2_, s3 = (S.get() for _ in range(6))
    r0, r1, r2, r3, r4 = (S.get(4, 4) for _ in range(5))
    sv = S.get(2, 2)
    a("v_lshrrev_b32 %s, 6, %s", t0, tid)
    a("v_and_b32 %s, 63, %s", lane, tid)
    a("v_readfirstlane_b32 %s, %s", sw, t0)
    a("s_and_b32 %s, s2, 255", sc)
    a("s_cmp_ge_u32 s2, 256")
    a("s_waitcnt lgkmcnt(0)")
    a("s_cbranch_scc%d K1_GEMM", 0 if OPT["k1_gemm_first"] else 1)
    a("s_cmp_eq_u32 %s, 7", sw)
    a("s_cbranch_scc1 K1_PREP")
    m = V.mark()
    dst, src, ea = V.get(4), V.get(4), V.get(2)
    b4, rk, ent = V.get(4), V.get(4), V.get(8)
    cnt, st, z4 = V.get(4), V.get(4), V.get(4)
    off16, one = V.get(), V.get()
    srd(a, r0, P["dst"], 0, E * 4)
    srd(a, r1, P["src"], 0, E * 4)
    srd(a, r2, P["ea"], 0, E * 2)
    a("s_mul_i32 %s, %s, %d", s0, sc, CH * 4)
    a("s_lshr_b32 %s, %s, 1", s1, s0)
    a("v_lshlrev_b32 %s, 4, %s", off16, tid)
    a("v_lshlrev_b32 %s, 3, %s", t0, tid)
    a("buffer_load_dwordx4 %s, %s, %s, %s offen", dst, off16, r0, s0)
    a("buffer_load_dwordx4 %s, %s, %s, %s offen", src, off16, r1, s0)
    a("buffer_load_dwordx2 %s, %s, %s, %s offen", ea, t0, r2, s1)
    for i in range(4):
        a("v_mov_b32 %s, 0", z4[i])
    a("v_lshlrev_b32 %s, 4, %s", t1, lane)
    a("ds_write_b128 %s, %s offset:%d", t1, z4, K1_HIST)
    a("v_mov_b32 %s, 1", one)
    a("s_sub_u32 %s, %d, %s", s2_, E * 4, s0)
    a("s_min_u32 %s, %s, %d", s2_, s2_, CH * 4)
    a("v_cmp_gt_u32 %s, %s, %s", sv, s2_, off16)
    a("s_mul_i32 %s, %s, %d", s0, sc, CHB)
    a("s_add_u32 %s, %s, %s", s0, s0, hex(WS_ENT))
    srd(a, r3, P["ws"], s0, CHB)
    srd(a, r4, P["ws"], WS_OFF, 8 * 256 * 128)
    a("s_mov_b32 %s, 42800", s0)
    a("s_mov_b32 %s, -49", s1)
    a("s_mov_b32 %s, 0xffff0000", s3)
    a("s_waitcnt lgkmcnt(0)")
    a("s_barrier")
    a("s_waitcnt vmcnt(2)")
    ts.stamp(1)
    for k in range(4):
        a("v_mul_u32_u24 %s, %s, %s", b4[k], s0, dst[k])
    for k in range(4):
        a("v_lshrrev_b32 %s, 22, %s", b4[k], b4[k])
    for k in range(4):
        a("v_lshlrev_b32 %s, 2, %s", b4[k], b4[k])
    a("s_mov_b64 exec, %s", sv)
    a("s_cbranch_execz K1_P1")
    for k in range(4):
        a("ds_add_rtn_u32 %s, %s, %s offset:%d", rk[k], b4[k], one, K1_HIST)
    a.label("K1_P1")
    a("s_mov_b64 exec, -1")
    for k in range(4):
        a("v_lshlrev_b32 %s, 1, %s", dst[k], dst[k])
        a("v_mad_i32_i24 %s, %s, %s, %s", dst[k], b4[k], s1, dst[k])
        a("v_and_b32 %s, 12, %s", st[k], dst[k])
        a("v_and_b32 %s, 14, %s", cnt[k], dst[k])
        a("v_add_u32 %s, %s, %s", st[k], st[k], cnt[k])
        a("v_lshl_or_b32 %s, %s, 8, %s", dst[k], st[k], dst[k])
    a("s_waitcnt lgkmcnt(0)")
    a("s_barrier")
    a("ds_read_b128 %s, %s offset:%d", cnt, t1, K1_HIST)
    a("s_waitcnt vmcnt(0)")
    for k in range(4):
        a("v_cvt_f32_ubyte0 %s, %s", ent[2 * k], src[k])
        a("v_or_b32 %s, 0x8000, %s", src[k], src[k])
        a("v_cvt_f32_ubyte1 %s, %s", src[k], src[k])
        a("v_cvt_pk_bf16_f32 %s, %s, %s", ent[2 * k], ent[2 * k], src[k])
        if k % 2 == 0:
            a("v_lshl_or_b32 %s, %s, 16, %s", ent[2 * k + 1], ea[k // 2], dst[k])
        else:
            a("v_and_or_b32 %s, %s, %s, %s", ent[2 * k + 1], ea[k // 2], s3, dst[k])
    a("s_waitcnt lgkmcnt(0)")
    a("v_add_u32 %s, %s, %s", st[2], cnt[0], cnt[1])
    a("v_add_u32 %s, %s, %s", st[3], st[2], cnt[2])
    a("v_add_u32 %s, %s, %s", st[1], st[3], cnt[3])
    a("v_mov_b32 %s, %s", t0, st[1])
    wave_scan(a, t0)
    a("v_sub_u32 %s, %s, %s", st[0], t0, st[1])
    a("v_add_u32 %s, %s, %s", st[1], st[0], cnt[0])
    a("v_add_u32 %s, %s, %s", st[2], st[0], st[2])
    a("v_add_u32 %s, %s, %s", st[3], st[0], st[3])
    a("ds_write_b128 %s, %s offset:%d", t1, st, K1_START)
    for k in range(4):
        a("ds_read_b32 %s, %s offset:%d", dst[k], b4[k], K1_START)
    a("s_cmp_lg_u32 %s, 0", sw)
    a("s_cbranch_scc1 K1_P2")
    for k in range(4):
        a("v_lshl_or_b32 %s, %s, 16, %s", cnt[k], cnt[k], st[k])
    a("v_lshrrev_b32 %s, 3, %s", t0, lane)
    a("v_lshlrev_b32 %s, 15, %s", t0, t0)
    a("v_and_b32 %s, 0x70, %s", src[0], t1)
    a("v_or_b32 %s, %s, %s", t0, t0, src[0])
    a("s_lshl_b32 %s, %s, 7", s0, sc)
    a("buffer_store_dwordx4 %s, %s, %s, %s offen %s", cnt, t0, r4, s0, OPT["st1"])
    a.label("K1_P2")
    a("s_waitcnt lgkmcnt(0)")
    for k in range(4):
        a("v_add_lshl_u32 %s, %s, %s, 3", dst[k], dst[k], rk[k])
    a("s_mov_b64 exec, %s", sv)
    a("s_cbranch_execz K1_P3")
    for k in range(4):
        a("ds_write_b64 %s, %s offset:%d", dst[k], ent.sub(2 * k, 2), K1_STAGE)
    a.label("K1_P3")
    a("s_mov_b64 exec, -1")
    a("s_waitcnt lgkmcnt(0)")
    a("s_barrier")
    a("ds_read_b128 %s, %s offset:%d", dst, off16, K1_STAGE)
    a("ds_read_b128 %s, %s offset:%d", src, off16, K1_STAGE + 448 * 16)
    a("s_mov_b32 %s, %d", s0, 448 * 16)
    a("s_waitcnt lgkmcnt(1)")
    a("buffer_store_dwordx4 %s, %s, %s, 0 offen %s", dst, off16, r3, OPT["st1"])
    a("s_waitcnt lgkmcnt(0)")
    a("buffer_store_dwordx4 %s, %s, %s, %s offen %s", src, off16, r3, s0, OPT["st1"])
    ts.stamp(2)
    if OPT["ts"]:
        a("s_waitcnt vmcnt(0)")
        ts.stamp(3)
        ts.dump(P["ws"], sw, t0, t1)
    a("s_endpgm")

    V.reset(m)
    a.label("K1_PREP")
    pa, pb, w = V.get(4), V.get(4), V.get(8)
    col, kh, ad, ad2, ks, o16 = (V.get() for _ in range(6))
    srd(a, r0, P["pos"], 0, N * 6)
    srd(a, r1, P["ws"], POS_BASE + BIAS, N * 16)
    srd(a, r4, P["ws"], WS_WF, 98304 + 2048)
    a("s_mul_i32 %s, %s, %d", s0, sc, BN * 6)
    a("v_mul_u32_u24 %s, 6, %s", t0, lane)
    for j in range(3):
        a("buffer_load_ushort %s, %s, %s, %s offen offset:%d", pa[j], t0, r0, s0, 2 * j)
    for j in range(3):
        a("buffer_load_ushort %s, %s, %s, %s offen offset:%d", pb[j], t0, r0, s0, 384 + 2 * j)
    a("v_and_b32 %s, 31, %s", col, lane)
    a("v_lshrrev_b32 %s, 5, %s", kh, lane)
    a("v_lshlrev_b32 %s, 4, %s", o16, lane)
    a("v_mov_b32 %s, 0", pa[3])
    a("v_mov_b32 %s, 0", pb[3])
    a("s_barrier")
    a("s_cmp_ge_u32 %s, 96", sc)
    a("s_cbranch_scc1 K1_PREP_X")
    a("s_and_b32 %s, %s, 7", s1, sc)
    a("s_bfe_u32 %s, %s, 0x20003", s2_, sc)
    a("s_cmp_ge_u32 %s, 32", sc)
    a("s_cbranch_scc1 K1_PREP_H")
    srd(a, r2, P["we"], 0, 258 * 256)
    a("s_lshl_b32 %s, %s, 6", s2_, s2_)
    a("v_lshlrev_b32 %s, 1, %s", ad, col)
    a("s_branch K1_PREP_K")
    a.label("K1_PREP_H")
    srd(a, r2, P["wh"], 0, 256 * 256)
    a("s_and_b32 %s, %s, 1", s3, s2_)
    a("s_lshr_b32 %s, %s, 1", s2_, s2_)
    a("s_lshl_b32 %s, %s, 6", s2_, s2_)
    a("s_add_u32 %s, %s, %s", s2_, s2_, s3)
    a("s_lshl_b32 %s, %s, 1", s2_, s2_)
    a("v_lshlrev_b32 %s, 2, %s", ad, col)
    a("s_cmp_ge_u32 %s, 64", sc)
    a("s_cbranch_scc1 K1_PREP_H2")
    a.label("K1_PREP_K")
    a("s_lshl_b32 %s, %s, 12", s1, s1)
    a("s_add_u32 %s, %s, %s", s1, s1, s2_)
    a("v_lshl_add_u32 %s, %s, 11, %s", ad, kh, ad)
    for j in range(8):
        a("buffer_load_ushort %s, %s, %s, %s offen offset:%d", w[j], ad, r2, s1, 256 * j)
    a("s_branch K1_PREP_W")
    a.label("K1_PREP_H2")
    a("s_lshr_b32 %s, %s, 2", s3, s1)
    a("s_lshl_b32 %s, %s, 6", s3, s3)
    a("s_and_b32 %s, %s, 3", s1, s1)
    a("s_lshl_b32 %s, %s, 3", s1, s1)
    a("s_add_u32 %s, %s, %s", s1, s1, s3)
    a("s_add_u32 %s, %s, 128", s1, s1)
    a("s_lshl_b32 %s, %s, 8", s1, s1)
    a("s_add_u32 %s, %s, %s", s1, s1, s2_)
    a("v_lshl_add_u32 %s, %s, 10, %s", ad, kh, ad)
    a("v_add_u32 %s, 8192, %s", ad2, ad)
    for j in range(8):
        a("buffer_load_ushort %s, %s, %s, %s offen offset:%d", w[j], ad2 if j & 1 else ad, r2, s1, 256 * (j >> 1))
    a.label("K1_PREP_W")
    a("s_waitcnt vmcnt(0)")
    for j in range(4):
        a("v_lshl_or_b32 %s, %s, 16, %s", w[j], w[2 * j + 1], w[2 * j])
    a("s_lshl_b32 %s, %s, 10", s1, sc)
    a("buffer_store_dwordx4 %s, %s, %s, %s offen %s", w.sub(0, 4), o16, r4, s1, OPT["st1"])
    a("s_branch K1_PREP_P2")
    a.label("K1_PREP_X")
    a("s_cmp_gt_u32 %s, 97", sc)
    a("s_cbranch_scc1 K1_PREP_P")
    a("s_cmp_eq_u32 %s, 97", sc)
    a("s_cbranch_scc1 K1_PREP_WX")
    srd(a, r2, P["we"], 0, 258 * 256)
    a("v_lshlrev_b32 %s, 1, %s", ad, lane)
    a("s_mov_b32 %s, 65536", s1)
    for xy in range(2):
        a("buffer_load_ushort %s, %s, %s, %s offen offset:%d", w[4 + 2 * xy], ad, r2, s1, 128 * xy)
        a("buffer_load_ushort %s, %s, %s, %s offen offset:%d", w[5 + 2 * xy], ad, r2, s1, 256 + 128 * xy)
    a("s_waitcnt vmcnt(0)")
    for j in range(4, 8):
        a("v_lshlrev_b32 %s, 16, %s", w[j], w[j])
        a("v_mul_f32 %s, %s, %s", w[j], hex(LOG2E), w[j])
    for xy in range(2):
        d_, a_ = w[4 + 2 * xy], w[5 + 2 * xy]
        a("v_cvt_pk_bf16_f32 %s, %s, %s", w[2 * xy], d_, a_)
        a("v_lshlrev_b32 %s, 16, %s", t0, w[2 * xy])
        a("v_and_b32 %s, 0xffff0000, %s", t1, w[2 * xy])
        a("v_sub_f32 %s, %s, %s", d_, d_, t0)
        a("v_sub_f32 %s, %s, %s", a_, a_, t1)
        a("v_cvt_pk_bf16_f32 %s, %s, %s", w[2 * xy + 1], d_, a_)
    a("s_mov_b32 %s, 98304", s1)
    a("buffer_store_dwordx4 %s, %s, %s, %s offen %s", w.sub(0, 4), o16, r4, s1, OPT["st1"])
    a("s_branch K1_PREP_P2")
    a.label("K1_PREP_WX")
    srd(a, r2, P["wx"], 0, 256)
    a("v_lshlrev_b32 %s, 1, %s", ad, col)
    for j in range(4):
        a("buffer_load_ushort %s, %s, %s, 0 offen offset:%d", w[j], ad, r2, 64 * j)
    a("s_waitcnt vmcnt(0)")
    for j in range(4):
        a("v_lshlrev_b32 %s, 16, %s", w[j], w[j])
        a("v_mul_f32 %s, %s, %s", w[j], hex(f32(0.6931471805599453 * (1 + DELTA))), w[j])
    a("s_mov_b32 %s, %d", s1, 98304 + 1024)
    a("buffer_store_dwordx4 %s, %s, %s, %s offen %s", w.sub(0, 4), o16, r4, s1, OPT["st1"])
    a("s_branch K1_PREP_P2")
    a.label("K1_PREP_P")
    a("s_waitcnt vmcnt(0)")
    a.label("K1_PREP_P2")
    for j in range(3):
        a("v_lshlrev_b32 %s, 16, %s", pa[j], pa[j])
        a("v_lshlrev_b32 %s, 16, %s", pb[j], pb[j])
    a("s_mul_i32 %s, %s, %d", s0, sc, BN * 16)
    a("buffer_store_dwordx4 %s, %s, %s, %s offen %s", pa, o16, r1, s0, OPT["st1"])
    a("s_mov_b32 exec_hi, 3")
    a("buffer_store_dwordx4 %s, %s, %s, %s offen offset:1024 %s", pb, o16, r1, s0, OPT["st1"])
    a("s_endpgm")

    V.reset(m)
    a.label("K1_GEMM")
    hv, wv = V.get(16, 4), V.get(16, 4)
    acc = [V.get(16, 4), V.get(16, 4)]
    bf = [V.get(8, 4), V.get(8, 4)]
    af = hv
    o16, aw, ah, ar, br, so = (V.get() for _ in range(6))
    srd(a, r0, P["h"], 0, N * 256)
    srd(a, r1, P["we"], 0, 258 * 256)
    srd(a, r2, P["ws"], WS_BP, N * 256)
    a("v_lshlrev_b32 %s, 4, %s", o16, tid)
    a("s_mul_i32 %s, %s, %d", s0, sc, BN * 256)
    for i in range(4):
        if i:
            a("s_add_u32 %s, %s, %d", s1, s0, 8192 * i)
        if i == 3:
            a("s_cmp_lt_u32 %s, 2", sw)
            a("s_cselect_b32 %s, %s, %s", s1, s1, hex(OOR))
        a("buffer_load_dwordx4 %s, %s, %s, %s offen", hv.sub(4 * i, 4), o16, r0, s1 if i else s0)
    for i in range(4):
        a("s_mov_b32 %s, %d", s1, 32768 + 8192 * i)
        a("buffer_load_dwordx4 %s, %s, %s, %s offen", wv.sub(4 * i, 4), o16, r1, s1)
    a("v_lshrrev_b32 %s, 4, %s", t0, tid)
    a("v_lshl_add_u32 %s, %s, 6, %s", aw, t0, o16)
    a("v_lshl_add_u32 %s, %s, 4, %s", ah, t0, o16)
    a("v_add_u32 %s, %d, %s", ah, K1_LH, ah)
    a("s_lshr_b32 %s, %s, 1", s2_, sw)
    a("s_and_b32 %s, %s, 1", s3, sw)
    a("v_and_b32 %s, 31, %s", t0, lane)
    a("v_lshrrev_b32 %s, 5, %s", t1, lane)
    a("v_mul_u32_u24 %s, 272, %s", ar, t0)
    a("v_lshl_add_u32 %s, %s, 4, %s", ar, t1, ar)
    a("s_mul_i32 %s, %s, %d", s1, s2_, 24 * 272)
    a("s_add_u32 %s, %s, %d", s1, s1, K1_LH)
    a("v_add_u32 %s, %s, %s", ar, s1, ar)
    a("v_lshlrev_b32 %s, 2, %s", so, t0)
    a("v_lshl_add_u32 %s, %s, 10, %s", so, t1, so)
    a("v_bfe_u32 %s, %s, 2, 2", br, lane)
    a("v_lshl_add_u32 %s, %s, 3, %s", br, t1, br)
    a("v_mul_u32_u24 %s, 320, %s", br, br)
    a("v_bfe_u32 %s, %s, 4, 1", t0, lane)
    a("v_lshl_add_u32 %s, %s, 5, %s", br, t0, br)
    a("v_and_b32 %s, 3, %s", t0, lane)
    a("v_lshl_add_u32 %s, %s, 3, %s", br, t0, br)
    a("s_lshl_b32 %s, %s, 7", s3, s3)
    a("v_add_u32 %s, %s, %s", br, s3, br)
    a("s_mul_i32 %s, %s, %d", s1, s2_, 24 * 256)
    a("s_add_u32 %s, %s, %s", s0, s0, s1)
    a("s_add_u32 %s, %s, %s", s0, s0, s3)
    a("s_add_u32 %s, %s, 4096", s1, s0)
    for i in range(4):
        a("s_waitcnt vmcnt(%d)", 7 - i)
        a("ds_write_b128 %s, %s offset:%d", ah, hv.sub(4 * i, 4), 32 * 272 * i)
    for i in range(4):
        a("s_waitcnt vmcnt(%d)", 3 - i)
        a("ds_write_b128 %s, %s offset:%d", aw, wv.sub(4 * i, 4), K1_LW + 32 * 320 * i)
    a("s_waitcnt lgkmcnt(0)")
    ts.stamp(1)
    a("s_barrier")

    def rd(ks):
        a("ds_read_b128 %s, %s offset:%d", af.sub(4 * (ks & 1), 4), ar, 32 * ks)
        for lh in range(2):
            for i in range(2):
                a("ds_read_b64_tr_b16 %s, %s offset:%d", bf[ks & 1].sub(4 * lh + 2 * i, 2), br,
                  K1_LW + (16 * ks + 4 * i) * 320 + 64 * lh)
    rd(0)
    for ks in range(8):
        if ks < 7:
            rd(ks + 1)
            a("s_waitcnt lgkmcnt(5)")
        else:
            a("s_waitcnt lgkmcnt(0)")
        for lh in range(2):
            a("v_mfma_f32_32x32x16_bf16 %s, %s, %s, %s", acc[lh], af.sub(4 * (ks & 1), 4), bf[ks & 1].sub(4 * lh, 4),
              acc[lh] if ks else "0")
    a("s_mov_b32 %s, %s", sv[0], hex(LOG2E))
    a("s_mov_b32 %s, %s", sv[1], hex(LOG2E))
    a("s_nop 9")

    def fin(r0_, r1_):
        for r in range(r0_, r1_, 2):
            for lh in range(2):
                a("v_pk_mul_f32 %s, %s, %s", acc[lh].sub(r, 2), acc[lh].sub(r, 2), sv)
            for q in (r, r + 1):
                a("v_cvt_pk_bf16_f32 %s, %s, %s", acc[0][q], acc[0][q], acc[1][q])
                row = 8 * (q // 4) + q % 4
                a("buffer_store_dword %s, %s, %s, %s offen offset:%d %s", acc[0][q], so, r2, s1 if row >= 16 else s0,
                  (row % 16) * 256, OPT["st1"])
    fin(0, 12)
    a("s_cmp_lg_u32 %s, 3", s2_)
    a("s_cbranch_scc1 K1_G_END")
    fin(12, 14)
    a.label("K1_G_END")
    ts.stamp(2)
    if OPT["ts"]:
        a("s_waitcnt vmcnt(0)")
        ts.stamp(3)
        ts.dump(P["ws"], sw, t0, t1)
    a.label("K1_END")
    a("s_endpgm")
    return V.hi, S.hi


L_AT = 0
L_S = 49 * 512
L_E = L_S + (CAP + 128) * 4
L_HIST = L_E + (CAP + 128) * 4
L_FLAG = L_HIST + 256
L_START = L_FLAG + 256
L_POS = L_START + 256
L_GT = L_POS + 2048
L_RING = L_GT + 49 * 512
PS = 2048 + 128
RS = 1024 + PS + 2048
L_MACC = L_RING + 8 * RS
PB = 928
K2_LDS = L_MACC + 50 * PB
L_H = L_MACC
assert L_S % 256 == 0 and L_E % 256 == 0 and K2_LDS <= 163840 and 112 * 272 <= 49 * PB
LOOR = 0x80000
QF, QS = 24, 4
assert 256 * QS + 49 * 16 <= CAP
SDWA = "dst_sel:DWORD dst_unused:UNUSED_PAD src0_sel:DWORD src1_sel:%s"
MF16 = "v_mfma_f32_32x32x16_bf16 %s, %s, %s, %s"
MF8 = "v_mfma_f32_32x32x8_bf16 %s, %s, %s, %s"
SMF = "v_smfmac_f32_32x32x32_bf16 %s, %s, %s, %s"


def gen_k2(a):
    S = Regs("s", 24, 102)
    V = Regs("v", 1, 256)
    kernel_head(a, "egnn_main_kernel")
    ts = TS(a, S, 8, 1)
    a("s_cmp_ge_u32 s2, 256")
    a("s_cbranch_scc1 K2_END")
    P = load_ptrs(a)
    ts.init()
    ts.stamp(0)
    tid = R("v", 0)
    lane, vh, fbase, tb16, tb32, bS4, bOH, pS4, pOH, bE, bS, bP, posc, isel, iseg, vflag = (V.get() for _ in range(16))
    Q = [V.get(16, 4) for _ in range(4)]
    Qall = R("v", Q[0].i, 64)
    y = [V.get(16, 4), V.get(16, 4)]
    yall = R("v", y[0].i, 32)
    e = [V.get(16, 4), V.get(16, 4)]
    eall = R("v", e[0].i, 32)
    adr = V.get(16, 4)
    ldall = V.get(16, 4)
    ld = [ldall.sub(0, 8), ldall.sub(8, 8)]
    sel, zero = V.get(4, 4), V.get(4, 4)
    Bop = [V.get(4, 4), V.get(4, 4)]
    WX, oh, S4 = V.get(4, 4), V.get(4, 4), V.get(4, 4)
    psrc, pdst = V.get(4, 4), V.get(4, 4)
    ones, aB, aA, c64 = V.get(2), V.get(2), V.get(2), V.get(2)
    one = c64[0]
    T = V.get(24, 4)
    rBP, rPOS, rWS, rH = (S.get(4, 4) for _ in range(4))
    (sw, snb, sJ, sq, sfirst, smore, stot, sU, snu, su0, su, spa, sinc, sflu, sfq, sret, srmw, srnd, sql, sshr,
     snr) = (S.get() for _ in range(21))
    s0, s1, s2_, s3, s4, sdot, slo, shi = (S.get() for _ in range(8))
    sval, sx = S.get(2, 2), S.get(2, 2)
    t0, t1, t2, t3 = T[0], T[1], T[2], T[3]
    X = OPT["x"]

    a("v_lshrrev_b32 %s, 6, %s", t0, tid)
    a("v_and_b32 %s, 63, %s", lane, tid)
    a("v_readfirstlane_b32 %s, %s", sw, t0)
    a("s_and_b32 %s, s2, 7", s0)
    a("s_lshr_b32 %s, s2, 3", s1)
    a("s_lshl_b32 %s, %s, 5", snb, s0)
    a("s_add_u32 %s, %s, %s", snb, snb, s1)
    a("s_mul_i32 %s, %s, %d", snb, snb, BN)
    ent = Qall.sub(0, 48)
    rk, bn = yall.sub(0, 24), eall.sub(0, 24)
    stv = R("v", adr.i, 24)
    voff, vrem, vea, seg = T[20], T[21], T[22], T[23]
    hst = R("v", adr.i, 28)
    Wf = [yall, eall]
    acc = Q
    o16, l16 = T[18], T[19]
    a("v_and_b32 %s, 255, %s", seg, tid)
    a("v_lshlrev_b32 %s, 7, %s", t0, seg)
    a("v_lshlrev_b32 %s, 4, %s", o16, seg)
    a("v_lshlrev_b32 %s, 4, %s", l16, lane)
    a("s_lshl_b32 %s, %s, 15", s0, s0)
    a("s_lshl_b32 %s, %s, 2", s1, s1)
    a("s_add_u32 %s, %s, %s", s0, s0, s1)
    a("s_add_u32 %s, %s, %s", s0, s0, hex(WS_OFF))
    a("s_waitcnt lgkmcnt(0)")
    srd(a, rWS, P["ws"], 0, WS_SIZE)
    srd(a, rH, P["h"], 0, N * 256)
    srd(a, rPOS, P["ws"], POS_BASE, BIAS + N * 16)
    a("s_cmp_lt_u32 %s, 4", sw)
    a("s_cbranch_scc1 K2_PG")
    a("buffer_load_dword %s, %s, %s, %s offen", voff, t0, rWS, s0)
    a("s_barrier")
    a("s_branch K2_PC")
    a.label("K2_PG")
    a("s_lshl_b32 %s, %s, 8", s0, snb)
    a("s_barrier")
    for i in range(7):
        if i:
            a("s_add_u32 %s, %s, %d", s1, s0, 4096 * i)
        if i == 6:
            a("s_cmp_lt_u32 %s, 2", sw)
            a("s_cselect_b32 %s, %s, %s", s1, s1, hex(OOR))
        a("buffer_load_dwordx4 %s, %s, %s, %s offen", hst.sub(4 * i, 4), o16, rH, s1 if i else s0)
    a("s_lshl_b32 %s, %s, 4", s1, snb)
    a("s_add_u32 %s, %s, %s", s1, s1, hex(BIAS))
    a("s_cmp_lt_u32 %s, 2", sw)
    a("s_cselect_b32 %s, %s, %s", s1, s1, hex(OOR))
    a("buffer_load_dwordx4 %s, %s, %s, %s offen", psrc, o16, rPOS, s1)
    a("s_lshl_b32 %s, %s, 13", s0, sw)
    for g in range(4):
        a("s_add_u32 %s, %s, %s", s1, s0, hex(WS_WF + (g >> 1) * 32768 + (g & 1) * 4096))
        for k in range(4):
            a("buffer_load_dwordx4 %s, %s, %s, %s offen offset:%d", Wf[g >> 1].sub(16 * (g & 1) + 4 * k, 4), l16, rWS, s1, k * 1024)
    a.label("K2_PC")
    a("s_mov_b32 %s, %s", s0, hex(WS_W3))
    a("buffer_load_dwordx2 %s, %s, %s, %s offen", Bop[0].sub(2, 2), l16, rWS, s0)
    a("buffer_load_dwordx2 %s, %s, %s, %s offen offset:8", Bop[1].sub(2, 2), l16, rWS, s0)
    a("buffer_load_dwordx4 %s, %s, %s, %s offen offset:1024", WX, l16, rWS, s0)
    srd(a, rBP, P["ws"], 0, BIAS + N * 256)
    for i in range(4):
        a("v_mov_b32 %s, 0", zero[i])
    a("v_lshrrev_b32 %s, 5, %s", vh, lane)
    a("v_and_b32 %s, 31, %s", t0, lane)
    a("v_lshlrev_b32 %s, 2, %s", t1, t0)
    a("v_mul_u32_u24 %s, %d, %s", t2, PB, vh)
    a("s_mov_b32 %s, %d", s0, L_MACC)
    a("v_add3_u32 %s, %s, %s, %s", fbase, t1, t2, s0)
    a("v_mov_b32 %s, 0x3f80", c64[0])
    a("v_mov_b32 %s, 0", c64[1])
    a("v_mov_b32 %s, 0x3f003f00", ones[0])
    a("v_mov_b32 %s, 0", ones[1])
    a("v_mov_b32 %s, 0x3f80", aA[1])
    a("v_mov_b32 %s, 0xdddd", iseg)
    a("v_mov_b32 %s, %s", posc, hex(f32((2.0 ** 23 - 2.0 ** 19) * 2.0 ** -126)))
    a("s_mov_b32 %s, %s", sdot, hex((5 << 7) | (13 << 23)))
    a("s_mov_b32 %s, 0x3f80", slo)
    a("s_mov_b32 %s, 0x3f800000", shi)
    a("v_cvt_f32_u32 %s, %s", t1, t1)
    a("v_mul_f32 %s, 0x00800000, %s", t1, t1)
    a("v_lshrrev_b32 %s, 16, %s", t1, t1)
    a("v_cmp_gt_u32 vcc, 32, %s", lane)
    a("v_mov_b32 %s, %s", t2, hex((9 << 7) | (17 << 23)))
    a("s_mul_i32 %s, %s, %d", s0, sw, RS)
    a("s_add_u32 %s, %s, %d", s0, s0, L_RING)
    a("s_add_u32 %s, %s, 1024", s1, s0)
    a("v_cndmask_b32 %s, 0, %s, vcc", aB[0], t2)
    a("v_cndmask_b32 %s, 0, %s, vcc", aB[1], t1)
    a("v_add_u32 %s, %s, %s", tb16, s0, l16)
    a("v_lshl_add_u32 %s, %s, 5, %s", tb32, lane, s1)
    a("v_and_b32 %s, 0xf0, %s", t1, l16)
    a("v_add_u32 %s, %s, %s", t1, s0, t1)
    a("v_add_u32 %s, -16, %s", t2, lane)
    a("v_cmp_gt_u32 vcc, 32, %s", t2)
    a("v_mov_b32 %s, %s", t2, hex(LOOR))
    a("v_bfe_u32 %s, %s, 2, 2", t3, lane)
    a("v_cndmask_b32 %s, %s, %s, vcc", bOH, t1, t2)
    a("v_cmp_eq_u32 vcc, 0, %s", lane)
    a("s_lshl_b32 %s, %s, 2", s2_, sw)
    a("v_mov_b32 %s, %s", t1, s2_)
    a("v_cndmask_b32 %s, %s, %s, vcc", vflag, t2, t1)
    a("v_lshl_add_u32 %s, %s, 3, %s", t3, vh, t3)
    a("v_lshlrev_b32 %s, 5, %s", t3, t3)
    a("v_and_b32 %s, 1, %s", t1, lane)
    a("v_lshl_add_u32 %s, %s, 3, %s", t3, t1, t3)
    a("v_and_b32 %s, 16, %s", t2, lane)
    a("v_add_u32 %s, %s, %s", t3, t3, t2)
    a("v_bfe_u32 %s, %s, 1, 1", t0, lane)
    a("v_mul_u32_u24 %s, %d, %s", t0, PS, t0)
    a("v_add3_u32 %s, %s, %s, %s", bS4, t0, t3, s1)
    a("v_lshrrev_b32 %s, 4, %s", t2, t2)
    a("v_lshl_add_u32 %s, %s, 1, %s", t1, t1, t2)
    a("v_mul_u32_u24 %s, 0x5555, %s", isel, t1)
    a("v_bfe_u32 %s, %s, 1, 3", t1, lane)
    a("v_lshlrev_b32 %s, 2, %s", t3, vh)
    a("v_xor_b32 %s, %s, %s", t1, t1, t3)
    for t in range(4):
        a("v_cmp_eq_u32 vcc, %d, %s", t, t1)
        a("s_nop 1")
        a("v_cndmask_b32 %s, 0, %s, vcc", sel[t], one)
    a("s_mov_b32 %s, 0", sJ)
    a("s_mov_b32 %s, %d", sq, QF)
    a("s_mov_b32 %s, 3", sfirst)
    a("s_mov_b32 %s, 0", srnd)
    a("s_cmp_lt_u32 %s, 4", sw)
    a("s_cbranch_scc1 K2_G0")
    a("s_waitcnt vmcnt(3)")
    a.label("K2_ROUND")
    ts.stamp(1)
    a("v_lshlrev_b32 %s, 3, %s", t3, lane)
    a("ds_write_b64 %s, %s offset:%d", t3, zero.sub(0, 2), L_HIST)
    a("v_lshrrev_b32 %s, 16, %s", vrem, voff)
    a("v_and_b32 %s, 0xffff, %s", t0, voff)
    a("v_subrev_u32 %s, %s, %s", vrem, sJ, vrem)
    a("v_mul_u32_u24 %s, %d, %s", t2, CHB, seg)
    a("v_cmp_lt_i32 %s, %s, %s", sx, sq, vrem)
    a("v_min_i32 %s, %s, %s", vrem, sq, vrem)
    a("v_add_u32 %s, %s, %s", t0, sJ, t0)
    a("v_lshl_add_u32 %s, %s, 3, %s", vea, t0, t2)
    a("s_mov_b32 %s, %s", s0, hex(WS_ENT))
    for i in range(QF // 2):
        a("v_cmpx_lt_i32 vcc, %d, %s", 2 * i, vrem)
        a("s_cbranch_execz K2_R1")
        a("buffer_load_dwordx4 %s, %s, %s, %s offen offset:%d", ent.sub(4 * i, 4), vea, rWS, s0, 16 * i)
    a.label("K2_R1")
    a("s_mov_b64 exec, -1")
    a("v_mov_b32 %s, 1", t1)
    a("s_waitcnt lgkmcnt(0)")
    a("s_barrier")
    a("s_mov_b64 exec, %s", sx)
    a("s_cbranch_execz K2_R2")
    a("ds_write_b32 %s, %s offset:%d", zero[0], t1, L_HIST + 63 * 4)
    a.label("K2_R2")
    a("s_mov_b64 exec, -1")
    a("s_mov_b32 %s, 0", snr)
    a("s_waitcnt vmcnt(0)")
    ts.stamp(2)
    for k in range(QF):
        a("v_cmpx_lt_i32 vcc, %d, %s", k, vrem)
        if k % 2 == 0:
            a("s_cbranch_execz K2_R3")
            a("s_mov_b32 %s, %d", snr, k + 2)
        a("v_and_b32 %s, 0xfc, %s", bn[k], ent[2 * k + 1])
        a("ds_add_rtn_u32 %s, %s, %s offset:%d", rk[k], bn[k], t1, L_HIST)
    a.label("K2_R3")
    a("s_mov_b64 exec, -1")
    a("s_branch K2_R4")

    ar, wa = T[16], T[17]

    def gemm(g):
        seq = [(rt, ks) for rt in range(4) for ks in range(8)]
        afb = lambda n: T.sub(4 * (n & 3), 4)
        rdA = lambda n: a("ds_read_b128 %s, %s offset:%d", afb(n), ar, seq[n][0] * 24 * 272 + 32 * seq[n][1])
        sc = f32(1.4426950408889634 / (1 + DELTA)) if g else LOG2E
        a("s_mov_b32 %s, %s", s4, hex(sc))
        fin = []
        for n in range(3):
            rdA(n)
        nds = 0
        pend = []
        for n, (rt, ks) in enumerate(seq):
            if n + 3 < 32:
                rdA(n + 3)
                pend.append("r")
            a("s_waitcnt lgkmcnt(%d)", min(15, youn(n)))
            a(MF16, acc[rt], afb(n), Wf[g].sub(4 * ks, 4), acc[rt] if ks else "0")
            if n == 8:
                a("s_nop 2")
            if rt > 0 and 2 <= ks < 8:
                out(g, rt - 1, ks - 2)
        a("s_nop 7")
        for i in range(7):
            out(g, 3, i)
        a("s_mov_b64 exec, -1")

    def youn(n):
        order = ["r0", "r1", "r2"]
        for k in range(n + 1):
            if k + 3 < 32:
                order.append("r%d" % (k + 3))
            if k < n and k >= 8 and 2 <= k % 8 < 8:
                order.append("w")
        return len(order) - 1 - order.index("r%d" % n)

    def out(g, rt, i):
        a("v_mul_f32 %s, %s, %s", acc[rt][2 * i], s4, acc[rt][2 * i])
        a("v_mul_f32 %s, %s, %s", acc[rt][2 * i + 1], s4, acc[rt][2 * i + 1])
        a("v_cvt_pk_bf16_f32 %s, %s, %s", acc[rt][2 * i], acc[rt][2 * i], acc[rt][2 * i + 1])
        if i == 6:
            a("s_mov_b32 exec_hi, 0")
        a("ds_write_b32 %s, %s offset:%d", wa, acc[rt][2 * i], (12 * rt + 4 * (i // 2) + i % 2) * 512)

    a.label("K2_G0")
    a("v_lshrrev_b32 %s, 4, %s", t0, tid)
    a("v_lshl_add_u32 %s, %s, 4, %s", t0, t0, o16)
    a("v_add_u32 %s, %d, %s", t0, L_H, t0)
    a("v_and_b32 %s, 31, %s", t1, lane)
    a("v_mul_u32_u24 %s, 272, %s", ar, t1)
    a("v_lshl_add_u32 %s, %s, 4, %s", ar, vh, ar)
    a("v_add_u32 %s, %d, %s", ar, L_H, ar)
    a("v_lshlrev_b32 %s, 2, %s", wa, t1)
    a("v_lshl_add_u32 %s, %s, 10, %s", wa, vh, wa)
    a("s_lshl_b32 %s, %s, 7", s0, sw)
    a("v_add_u32 %s, %s, %s", wa, s0, wa)
    for i in range(7):
        a("s_waitcnt vmcnt(%d)", 26 - i)
        a("ds_write_b128 %s, %s offset:%d", t0, hst.sub(4 * i, 4), 16 * 272 * i)
    a("s_cmp_ge_u32 %s, 2", sw)
    a("s_cbranch_scc1 K2_G1")
    a("s_waitcnt vmcnt(19)")
    a("ds_write_b128 %s, %s offset:%d", o16, psrc, L_POS)
    a.label("K2_G1")
    a("s_waitcnt lgkmcnt(0)")
    ts.stamp(1)
    a.label("K2_GROUND")
    a("s_barrier")
    a("s_bitcmp0_b32 %s, 0", sfirst)
    a("s_cbranch_scc1 K2_R4")
    a("s_mov_b32 %s, 2", sfirst)
    a("s_waitcnt vmcnt(11)")
    ts.stamp(2)
    gemm(0)
    a("v_add_u32 %s, %d, %s", wa, L_GT, wa)

    a.label("K2_R4")
    a("v_lshlrev_b32 %s, 2, %s", psrc[3], lane)
    a("s_waitcnt lgkmcnt(0)")
    a("s_barrier")
    ts.stamp(3)
    cn, mx, st, l4 = pdst[0], pdst[1], pdst[2], psrc[3]
    a("ds_read_b32 %s, %s offset:%d", cn, l4, L_HIST)
    a("s_mov_b32 %s, -1", sx[0])
    a("s_mov_b32 %s, 0x1ffff", sx[1])
    a("s_waitcnt lgkmcnt(0)")
    a("v_readlane_b32 %s, %s, 63", smore, cn)
    a("v_max_u32 %s, 16, %s", mx, cn)
    a("v_cndmask_b32 %s, 0, %s, %s", mx, mx, sx)
    a("v_mov_b32 %s, %s", st, mx)
    wave_scan(a, st)
    a("s_nop 0")
    a("v_readlane_b32 %s, %s, 63", stot, st)
    a("v_sub_u32 %s, %s, %s", st, st, mx)
    a("v_lshlrev_b32 %s, 2, %s", st, st)
    a("s_cmp_gt_u32 %s, %d", stot, CAP)
    a("s_cbranch_scc1 K2_RETRY")
    a("s_add_u32 %s, %s, 15", sU, stot)
    a("s_lshr_b32 %s, %s, 4", sU, sU)
    a("s_cmp_lt_u32 %s, 4", sw)
    a("s_cbranch_scc1 K2_G2")
    a("ds_write_b32 %s, %s offset:%d", l4, st, L_START)
    for k in range(QF):
        if k % 2 == 0:
            a("s_cmp_le_u32 %s, %d", snr, k)
            a("s_cbranch_scc1 K2_R5")
        a("ds_read_b32 %s, %s offset:%d", stv[k], bn[k], L_START)
    a.label("K2_R5")
    a("v_mov_b32 %s, %s", t2, hex(DUMMY_S))
    a("s_cmp_lt_u32 %s, 6", sw)
    a("s_cbranch_scc1 K2_R6")
    a("s_cmp_eq_u32 %s, 6", sw)
    a("s_cbranch_scc1 K2_R5B")
    a("v_add_lshl_u32 %s, %s, %s, 2", t0, lane, stot)
    a("v_mov_b32 %s, 192", t1)
    a("ds_write2st64_b32 %s, %s, %s offset0:%d offset1:%d", t0, t2, t1, L_S // 256, L_E // 256)
    a("ds_write2st64_b32 %s, %s, %s offset0:%d offset1:%d", t0, t2, t1, L_S // 256 + 1, L_E // 256 + 1)
    a("s_branch K2_R6")
    a.label("K2_R5B")
    a("v_lshl_add_u32 %s, %s, 2, %s", t0, cn, st)
    a("s_mov_b64 exec, %s", sx)
    a.label("K2_R5C")
    a("v_cmpx_gt_u32 vcc, 16, %s", cn)
    a("s_cbranch_execz K2_R6")
    a("ds_write2st64_b32 %s, %s, %s offset0:%d offset1:%d", t0, t2, l4, L_S // 256, L_E // 256)
    a("v_add_u32 %s, 4, %s", t0, t0)
    a("v_add_u32 %s, 1, %s", cn, cn)
    a("s_branch K2_R5C")
    a.label("K2_R6")
    a("s_mov_b64 exec, -1")
    a("s_waitcnt lgkmcnt(0)")
    for k in range(QF):
        a("v_cmpx_lt_i32 vcc, %d, %s", k, vrem)
        if k % 2 == 0:
            a("s_cbranch_execz K2_R7")
        a("v_lshl_add_u32 %s, %s, 2, %s", stv[k], rk[k], stv[k])
        a("ds_write2st64_b32 %s, %s, %s offset0:%d offset1:%d", stv[k], ent[2 * k], ent[2 * k + 1], L_S // 256, L_E // 256)
    a("s_branch K2_R7")
    a.label("K2_G2")
    a("s_cmp_eq_u32 %s, 0", sfirst)
    a("s_cbranch_scc1 K2_R7")
    a("s_mov_b32 %s, 0", sfirst)
    a("s_waitcnt vmcnt(0)")
    gemm(1)
    a.label("K2_R7")
    a("s_mov_b64 exec, -1")
    a("s_lshr_b32 %s, %s, 3", s0, sU)
    a("s_and_b32 %s, %s, 7", s1, sU)
    a("s_mul_i32 %s, %s, %s", su0, s0, sw)
    a("s_min_u32 %s, %s, %s", s2_, s1, sw)
    a("s_add_u32 %s, %s, %s", su0, su0, s2_)
    a("s_cmp_lt_u32 %s, %s", sw, s1)
    a("s_addc_u32 %s, %s, 0", snu, s0)
    a("v_add_lshl_u32 %s, %s, %s, 6", t0, lane, su0)
    a("v_add_u32 %s, %d, %s", t0, L_E, t0)
    a("s_lshl_b32 m0, %s, 6", su0)
    a("s_waitcnt vmcnt(0) lgkmcnt(0)")
    a("s_barrier")
    ts.stamp(4)

    def stageA0():
        a("ds_read_addtid_b32 %s offset:%d", bS, L_S)
        a("ds_read_addtid_b32 %s offset:%d", bE, L_E)

    def stageA1(x0):
        a("v_dot2_f32_bf16 %s, %s, %s, %s", x0, bS, sdot, posc)
        a("v_lshlrev_b32_sdwa %s, 3, %s " + SDWA, bP, bE, "BYTE_0")
        a("v_cmp_gt_u32 vcc, %s, %s", hex(DUMMY_S), bS)
        a("ds_read_b96 %s, %s offset:%d", pdst.sub(0, 3), bP, L_POS)
        a("buffer_load_dwordx3 %s, %s, %s, 0 offen", psrc.sub(0, 3), x0, rPOS)
        a("s_mov_b64 %s, vcc", sval)

    def stageB():
        x0, x1, x2, x3, row = T[0], T[1], T[2], T[3], T.sub(4, 4)
        for o in (1024, 2048, 1024 + PS, 2048 + PS):
            a("ds_write_b128 %s, %s offset:%d", tb16, zero, o)
        for c in range(3):
            a("v_sub_f32 %s, %s, %s", pdst[c], pdst[c], psrc[c])
        a("v_cvt_pk_bf16_f32 %s, %s, %s", x0, pdst[0], pdst[1])
        a("v_cvt_pk_bf16_f32 %s, %s, 0", x1, pdst[2])
        a("v_add_u32_sdwa %s, %s, %s " + SDWA, x3, tb32, bE, "BYTE_1")
        if OPT["exactd"]:
            a("v_lshlrev_b32 %s, 16, %s", pdst[0], x0)
            a("v_and_b32 %s, 0xffff0000, %s", pdst[1], x0)
            a("v_lshlrev_b32 %s, 16, %s", pdst[2], x1)
            for c in range(3):
                a("v_mul_f32 %s, %s, %s", pdst[c], pdst[c], pdst[c])
            a("v_cvt_pk_bf16_f32 %s, %s, %s", pdst[0], pdst[0], pdst[1])
            a("v_cvt_pk_bf16_f32 %s, %s, 0", pdst[2], pdst[2])
            a("s_mov_b32 %s, 0x3f803f80", s4)
            a("v_dot2_f32_bf16 %s, %s, %s, 0", x2, pdst[2], s4)
            a("v_dot2_f32_bf16 %s, %s, %s, %s", x2, pdst[0], s4, x2)
        else:
            a("v_dot2_f32_bf16 %s, %s, %s, 0", x2, x1, x1)
            a("v_dot2_f32_bf16 %s, %s, %s, %s", x2, x0, x0, x2)
        a("v_lshlrev_b64 %s, %s, %s", row.sub(0, 2), bP, c64)
        a("s_mov_b64 exec, %s", sval)
        a("ds_write_b16 %s, %s", x3, one)
        a("ds_write_b16 %s, %s offset:4", x3, x0)
        a("ds_write_b16_d16_hi %s, %s offset:%d", x3, x0, PS)
        a("ds_write_b16 %s, %s offset:%d", x3, x1, PS + 4)
        a("s_mov_b64 exec, -1")
        a("v_cvt_pk_bf16_f32 %s, %s, %s", row[2], x2, bE)
        a("v_cvt_pk_bf16_f32 %s, %s, %s", row[3], x2, bE)
        a("ds_write_b128 %s, %s", tb16, row)

    def loadAp(par):
        a("ds_read_addtid_b32 %s offset:%d", Bop[0][par], L_AT)
        a("ds_read_addtid_b32 %s offset:%d", Bop[1][par], L_AT + 256)

    def gld(xy, r):
        if "nogld" in X:
            a("s_nop 0")
            return
        a("buffer_load_dword %s, %s, %s, 0 offen offset:%d", ld[xy][r], adr[r], rBP, 128 * xy)

    def dmaWh2():
        a("s_mul_i32 %s, %s, %d", s1, sw, RS)
        a("s_add_u32 m0, %s, %d", s1, L_RING)
        a("s_lshl_b32 %s, %s, 12", s1, sw)
        a("s_add_u32 %s, %s, %s", s1, s1, hex(WS_WF + 65536))
        a("v_lshlrev_b32 %s, 4, %s", t0, lane)
        a("s_waitcnt lgkmcnt(0)")
        for i in range(4):
            a("buffer_load_dwordx4 %s, %s, %s offen offset:%d lds", t0, rWS, s1, 1024 * i)

    def rng(f, xy, r0, r1):
        for r in range(r0, r1):
            f(xy, r)

    ea, eb = T[8], T.sub(10, 2)
    a("ds_read_addtid_b32 %s offset:%d", aA[0], L_S)
    stageA0()
    a("ds_read_b32 %s, %s", ea, t0)
    a("ds_read2_b32 %s, %s offset0:15 offset1:16", eb, t0)
    a("s_waitcnt lgkmcnt(4)")
    a(MF8, adr, aA, aB, "0")
    a("ds_read_addtid_b32 %s offset:%d", aA[0], L_S + 64)
    a("s_waitcnt lgkmcnt(3)")
    stageA1(t1)
    a("s_sub_u32 %s, %s, 1", s4, snu)
    a("s_mov_b32 %s, 0", su)
    a("s_mov_b32 %s, -1", sflu)
    a("s_mov_b32 %s, 0", sret)
    rng(gld, 0, 0, 8)
    rng(gld, 1, 0, 8)
    a("s_waitcnt lgkmcnt(0)")
    a(MF8, adr, aA, aB, "0")
    a("v_and_b32 %s, 0xfc, %s", ea, ea)
    a("v_and_b32 %s, 0xfc, %s", eb[1], eb[1])
    a("v_readfirstlane_b32 %s, %s", spa, ea)
    a("v_readlane_b32 %s, %s, %s", sql, eb[0], s4)
    a("v_readlane_b32 %s, %s, %s", sshr, eb[1], s4)
    a("v_cmp_ne_u32 vcc, %s, %s", ea, eb[1])
    for b in range(4):
        a(MF8, Q[b], zero.sub(0, 2), zero.sub(0, 2), "0")
    a(MF8, e[1], zero.sub(0, 2), zero.sub(0, 2), "0")
    a("s_lshl_b32 %s, vcc_lo, 1", sinc)
    a("s_lshr_b32 %s, %s, 2", spa, spa)
    a("s_add_u32 %s, %s, 1", s0, spa)
    a("s_and_b32 %s, %s, -2", s0, s0)
    a("s_lshl_b32 m0, %s, 9", s0)
    a("s_or_b32 %s, %s, 1", s0, spa)
    loadAp(0)
    a("s_lshl_b32 m0, %s, 9", s0)
    a("s_bfe_u32 %s, %s, 0x50003", sql, sql)
    loadAp(1)
    a("s_lshr_b32 %s, %s, 3", sshr, sshr)
    a("s_cmp_eq_u32 %s, %s", sshr, sql)
    a("s_cselect_b32 %s, 1, 0", sshr)
    a("s_cmp_eq_u32 %s, 7", sw)
    a("s_cselect_b32 %s, 0, %s", sshr, sshr)
    a("s_mov_b32 %s, %s", srmw, srnd)
    for i in range(4):
        a("v_mov_b32 %s, 0", S4[i])
    a("s_lshl_b32 %s, %s, 6", s0, su0)
    a("s_add_u32 m0, %s, 256", s0)
    a("s_waitcnt vmcnt(16)")
    stageB()
    a("ds_read_b128 %s, %s", oh, bOH)
    stageA0()
    a("s_waitcnt lgkmcnt(2)")
    a(MF16, y[0], oh, Bop[0], "0")
    a("s_waitcnt vmcnt(8)")
    a(SMF, y[0], sel, ld[0], isel)
    rng(gld, 0, 0, 8)
    a("s_waitcnt lgkmcnt(0)")
    a("s_nop 1")
    ts.stamp(5)

    EXP = lambda xy, r: a("v_exp_f32 %s, -%s", e[xy][r], y[xy][r])
    RCP = lambda xy, r: a("v_rcp_f32 %s, %s", e[xy][r], e[xy][r])
    SEG = lambda b: a(SMF, Q[b], S4, e[b >> 1].sub(8 * (b & 1), 8), iseg)

    def MUL(xy):
        for r in range(0, 16, 2):
            a("v_pk_mul_f32 %s, %s, %s", e[xy].sub(r, 2), e[xy].sub(r, 2), y[xy].sub(r, 2))

    def half(xy, F):
        a(MF16, y[xy], oh, Bop[xy], "0")
        rng(F, 1 - xy, 0, 4)
        a("s_waitcnt vmcnt(8)")
        a(SMF, y[xy], sel, ld[xy], isel)
        rng(gld, xy, 0, 4)
        rng(F, 1 - xy, 4, 8)
        SEG(2 * xy)
        rng(gld, xy, 4, 8)
        rng(F, 1 - xy, 8, 12)
        SEG(2 * xy + 1)

    a(".p2align 6")
    a.label("K2_LOOP")
    half(1, EXP)
    a("s_and_b32 %s, %s, 3", s0, su)
    a("s_lshl_b32 %s, %s, 9", s0, s0)
    a("s_add_u32 %s, %s, 1", su, su)
    a("s_and_b32 %s, %s, 3", s3, su)
    a("s_lshl_b32 %s, %s, 8", s1, s3)
    a("v_add_u32 %s, %s, %s", pS4, s0, bS4)
    a("v_add_u32 %s, %s, %s", pOH, s1, bOH)
    rng(EXP, 0, 12, 16)
    a("s_add_u32 %s, %s, 1", s0, su)
    a("s_add_u32 %s, %s, %s", s1, s0, su0)
    a("s_cmp_lt_u32 %s, %s", s0, snu)
    a("s_cselect_b32 %s, %s, %s", s1, s1, sU)
    a("s_lshl_b32 m0, %s, 6", s1)
    rng(EXP, 1, 0, 2)
    a(MF8, e[0], ones, ones, e[0])
    a("ds_read_addtid_b32 %s offset:%d", aA[0], L_S)
    a("ds_read_b64_tr_b16 %s, %s", S4.sub(0, 2), pS4)
    a("ds_read_b64_tr_b16 %s, %s offset:128", S4.sub(2, 2), pS4)
    a("s_cmp_eq_u32 %s, %s", su, snu)
    a("s_cbranch_scc1 K2_LAST")
    a("s_cmp_le_u32 %s, 1", s3)
    a("s_cbranch_scc1 K2_BATCH")
    a.label("K2_L1")
    a("s_bitcmp1_b32 %s, %s", sinc, su)
    a("s_cbranch_scc1 K2_INC")
    a.label("K2_L2")
    a("ds_read_b128 %s, %s", oh, pOH)
    rng(EXP, 1, 2, 16)
    rng(RCP, 0, 0, 2)
    a(MF8, e[1], ones, ones, e[1])
    rng(RCP, 0, 2, 6)
    a("s_waitcnt lgkmcnt(0)")
    a(MF8, adr, aA, aB, "0")
    rng(RCP, 0, 6, 16)
    MUL(0)
    a("s_cmp_eq_u32 %s, %s", su, sflu)
    a("s_cbranch_scc1 K2_FLUSH")
    a.label("K2_L3")
    half(0, RCP)
    a("s_cmp_lt_u32 %s, %s", su, snu)
    rng(RCP, 1, 12, 16)
    MUL(1)
    a("s_cbranch_scc1 K2_LOOP")
    a("s_lshr_b32 %s, %s, 1", sfq, spa)
    SEG(2)
    SEG(3)
    a("s_mov_b32 %s, 1", sret)
    a("s_nop 7")
    a("s_cmp_lt_u32 %s, %s", sfq, sql)
    a("s_cbranch_scc1 K2_FLUSH")
    a.label("K2_D1")
    a("s_mov_b32 %s, %s", sfq, sql)
    a("s_mov_b32 %s, 2", sret)
    a("s_cmp_eq_u32 %s, 0", sshr)
    a("s_cbranch_scc1 K2_FLUSH")
    a("s_mov_b32 %s, 1", srmw)
    a.label("K2_D2")
    a("ds_read_b32 %s, %s offset:%d", t0, vflag, L_FLAG + 4)
    a("s_waitcnt lgkmcnt(0)")
    a("v_readfirstlane_b32 %s, %s", s0, t0)
    a("s_cmp_eq_u32 %s, 0", s0)
    a("s_cbranch_scc1 K2_D2")
    a.label("K2_FLUSH")
    fa, tt, Rm = T[20], T.sub(0, 6), T.sub(12, 7)
    offs = [nl * 272 + xy * 128 for nl in range(2) for xy in range(2)] + [528 + c * 128 for c in range(3)]
    a("s_mul_i32 %s, %s, %d", s0, sfq, 2 * PB)
    a("v_add_u32 %s, %s, %s", fa, s0, fbase)
    a("s_cmp_eq_u32 %s, 0", srmw)
    a("s_cbranch_scc1 K2_FL0")
    for i in range(7):
        a("ds_read_b32 %s, %s offset:%d", Rm[i], fa, offs[i])
    a.label("K2_FL0")
    a("s_bitcmp1_b32 %s, 0", sfq)
    a("s_cbranch_scc1 K2_FLP1")
    for p in range(2):
        o = 8 * p
        a.label("K2_FLP%d" % p)
        for b in range(4):
            for c in range(3):
                q = Q[b].sub(o + 2 + 2 * c, 2)
                if b == 0:
                    a("v_pk_mul_f32 %s, %s, %s op_sel_hi:[1,0]", tt.sub(2 * c, 2), q, WX.sub(0, 2))
                else:
                    a("v_pk_fma_f32 %s, %s, %s, %s op_sel:[0,%d,0] op_sel_hi:[1,%d,1]", tt.sub(2 * c, 2), q, WX.sub(b & 2, 2),
                      tt.sub(2 * c, 2), b & 1, b & 1)
        a("s_cmp_eq_u32 %s, 0", srmw)
        a("s_cbranch_scc1 K2_FLN%d", p)
        a("s_waitcnt lgkmcnt(0)")
        for nl in range(2):
            for xy in range(2):
                for lh in range(2):
                    q = Q[2 * xy + lh][o + nl]
                    a("v_dot2_f32_bf16 %s, %s, %s, %s", q, Rm[2 * nl + xy], shi if lh else slo, q)
        for c in range(3):
            for nl in range(2):
                a("v_dot2_f32_bf16 %s, %s, %s, %s", tt[2 * c + nl], Rm[4 + c], shi if nl else slo, tt[2 * c + nl])
        a.label("K2_FLN%d" % p)
        ZQ = lambda b, k: a("v_mfma_f32_16x16x16_bf16 %s, %s, %s, 0", Q[b].sub(o + 4 * k, 4), zero.sub(0, 2), zero.sub(0, 2))
        for xy in range(2):
            ZQ(2 * xy, 1)
            for nl in range(2):
                x = T[6 + 2 * nl + xy]
                a("v_cvt_pk_bf16_f32 %s, %s, %s", x, Q[2 * xy][o + nl], Q[2 * xy + 1][o + nl])
                a("ds_write_b32 %s, %s offset:%d", fa, x, offs[2 * nl + xy])
            ZQ(2 * xy + 1, 1)
        for c in range(3):
            a("v_cvt_pk_bf16_f32 %s, %s, %s", tt[2 * c], tt[2 * c], tt[2 * c + 1])
            ZQ(c, 0)
            a("ds_write_b32 %s, %s offset:%d", fa, tt[2 * c], offs[4 + c])
        a("ds_write_b32 %s, %s offset:%d", vflag, one, L_FLAG)
        a("s_cmp_eq_u32 %s, 0", sret)
        ZQ(3, 0)
        a("s_cbranch_scc1 K2_L3")
        if p == 0:
            a("s_branch K2_FLR")
    a.label("K2_FLR")
    a("s_cmp_eq_u32 %s, 1", sret)
    a("s_cbranch_scc1 K2_D1")
    a("s_cmp_eq_u32 %s, 0", smore)
    a("s_cbranch_scc1 K2_FIN")
    a("s_add_u32 %s, %s, %s", sJ, sJ, sq)
    a("s_mov_b32 %s, %d", sq, QF)
    a("s_mov_b32 %s, 1", srnd)
    a("s_branch K2_AGAIN")
    a.label("K2_RETRY")
    a("s_mov_b32 %s, %d", sq, QS)
    a.label("K2_AGAIN")
    a("s_waitcnt vmcnt(0) lgkmcnt(0)")
    a("s_barrier")
    a("s_cmp_lt_u32 %s, 4", sw)
    a("s_cbranch_scc1 K2_GROUND")
    a("s_and_b32 %s, s2, 7", s0)
    a("s_lshr_b32 %s, s2, 3", s1)
    a("s_lshl_b32 %s, %s, 15", s0, s0)
    a("s_lshl_b32 %s, %s, 2", s1, s1)
    a("s_add_u32 %s, %s, %s", s0, s0, s1)
    a("s_add_u32 %s, %s, %s", s0, s0, hex(WS_OFF))
    a("v_and_b32 %s, 255, %s", seg, tid)
    a("v_lshlrev_b32 %s, 7, %s", t0, seg)
    a("buffer_load_dword %s, %s, %s, %s offen", voff, t0, rWS, s0)
    a("s_waitcnt vmcnt(0)")
    a("s_branch K2_ROUND")

    a.label("K2_LAST")
    a("s_cmp_lg_u32 %s, 0", smore)
    a("s_cbranch_scc1 K2_L2")
    dmaWh2()
    a("s_branch K2_L2")
    a.label("K2_BATCH")
    a("s_cmp_eq_u32 %s, 1", s3)
    a("s_cbranch_scc1 K2_BATCH1")
    a("s_add_u32 %s, %s, %s", s0, su, su0)
    a("s_lshl_b32 %s, %s, 6", s0, s0)
    a("s_add_u32 m0, %s, 256", s0)
    if OPT["prio"]:
        a("s_setprio 0")
    stageB()
    stageA0()
    a("s_branch K2_L1")
    a.label("K2_BATCH1")
    if OPT["prio"]:
        a("s_cmp_lt_u32 %s, 4", sw)
        a("s_cbranch_scc1 K2_BATCH2")
        a("s_setprio 1")
        a.label("K2_BATCH2")
    a("s_add_u32 %s, %s, 3", s0, su)
    a("s_cmp_ge_u32 %s, %s", s0, snu)
    a("s_cbranch_scc1 K2_L1")
    stageA1(t0)
    a("s_branch K2_L1")
    a.label("K2_INC")
    a("s_add_u32 %s, %s, 2", s0, spa)
    a("s_lshl_b32 m0, %s, 9", s0)
    a("s_add_u32 %s, %s, 1", spa, spa)
    a("s_bitcmp1_b32 %s, 0", spa)
    a("s_cbranch_scc1 K2_INC1")
    loadAp(1)
    a("s_lshr_b32 %s, %s, 1", sfq, spa)
    a("s_sub_u32 %s, %s, 1", sfq, sfq)
    a("s_add_u32 %s, %s, 1", sflu, su)
    a("s_branch K2_L2")
    a.label("K2_INC1")
    loadAp(0)
    a("s_branch K2_L2")

    a.label("K2_FIN")
    ts.stamp(6)
    if OPT["prio"]:
        a("s_setprio 0")
    rO, rP = rBP, rPOS
    fac = [y[0], y[1]]
    g = [e[0].sub(0, 8), e[0].sub(8, 8)]
    hr = e[1]
    ga, ra, rb, so, pa, pp = T[4], T[5], T[6], T[7], T[8], T[9]
    col = T[10]
    a("s_lshr_b32 %s, %s, 1", s2_, sw)
    a("s_and_b32 %s, %s, 1", s3, sw)
    a("v_and_b32 %s, 31, %s", col, lane)
    a("v_lshlrev_b32 %s, 2, %s", so, col)
    a("v_lshl_add_u32 %s, %s, 10, %s", so, vh, so)
    a("s_mul_i32 %s, %s, 24", s4, s2_)
    a("s_add_u32 %s, %s, %s", s0, s4, snb)
    a("s_lshl_b32 %s, %s, 1", s0, s0)
    a("s_add_u32 %s, %s, %s", s0, s0, s3)
    a("s_lshl_b32 %s, %s, 7", su0, s0)
    a("s_add_u32 %s, %s, 4096", snu, su0)
    rowof = lambda r: 8 * (r // 4) + r % 4
    for r in range(14):
        a("buffer_load_dword %s, %s, %s, %s offen offset:%d", hr[r], so, rH, snu if rowof(r) >= 16 else su0, (rowof(r) % 16) * 256)
    a("s_add_u32 %s, %s, %s", s0, s4, s3)
    a("s_lshl_b32 %s, %s, 8", s0, s0)
    a("s_add_u32 %s, %s, %d", s0, s0, L_GT)
    a("v_add_u32 %s, %s, %s", ga, s0, so)
    a("v_add_u32 %s, 128, %s", t3, ga)
    for par in range(2):
        for ip in range(3):
            a("ds_read2st64_b32 %s, %s offset0:%d offset1:%d", g[par].sub(2 * ip, 2), t3 if par else ga, 8 * ip, 8 * ip + 2)
        a("ds_read_b32 %s, %s offset:%d", g[par][6], t3 if par else ga, 24 * 256)
    a("v_add_u32 %s, %s, %s", t0, s4, col)
    a("v_min_u32 %s, 97, %s", t0, t0)
    a("v_lshrrev_b32 %s, 1, %s", t1, t0)
    a("v_and_b32 %s, 1, %s", t0, t0)
    a("v_mul_u32_u24 %s, %d, %s", t1, PB, t1)
    a("v_mul_u32_u24 %s, 272, %s", t0, t0)
    a("v_lshlrev_b32 %s, 4, %s", t2, vh)
    a("v_add_u32 %s, %d, %s", t2, L_MACC, t2)
    a("v_add3_u32 %s, %s, %s, %s", ra, t0, t1, t2)
    a("s_mul_i32 %s, %s, %d", s0, s3, 4 * RS)
    a("s_add_u32 %s, %s, %d", s0, s0, L_RING)
    a("v_lshl_add_u32 %s, %s, 4, %s", rb, lane, s0)
    a("s_lshl_b32 %s, %s, 5", s0, sw)
    a("v_add_u32 %s, %s, %s", t0, s0, col)
    a("v_mul_u32_u24 %s, 171, %s", t1, t0)
    a("v_lshrrev_b32 %s, 9, %s", t1, t1)
    a("v_cmp_gt_u32 vcc, 147, %s", t0)
    a("v_mad_i32_i24 %s, %s, -3, %s", t0, t1, t0)
    a("s_mov_b32 %s, vcc_lo", sval[0])
    a("s_mov_b32 %s, 0", sval[1])
    a("v_mul_u32_u24 %s, %d, %s", pa, PB, t1)
    a("v_lshl_add_u32 %s, %s, 7, %s", pa, t0, pa)
    a("v_add_u32 %s, %s, %s", pa, pa, t2)
    a("v_lshlrev_b32 %s, 5, %s", t3, t1)
    a("v_lshl_add_u32 %s, %s, 2, %s", t3, t0, t3)
    px = psrc.sub(0, 2)
    a("v_add_u32 %s, %d, %s", t3, L_POS, t3)
    a("ds_read2_b32 %s, %s offset0:0 offset1:4", px, t3)
    a("v_mul_u32_u24 %s, 12, %s", pp, t1)
    a("v_lshl_add_u32 %s, %s, 1, %s", pp, t0, pp)
    a("v_lshlrev_b32 %s, 4, %s", t0, col)
    a("v_cmp_gt_u32 vcc, 2, %s", col)
    a("v_lshlrev_b32 %s, %s, %s", t0, t0, one)
    srd(a, rO, P["out"], 0, N * 256)
    for i in range(4):
        a("v_cndmask_b32 %s, 0, %s, vcc", S4[i], t0)
    srd(a, rP, P["out"], N * 256, N * 6)
    a("s_waitcnt lgkmcnt(0)")
    for par in range(2):
        for i in range(7):
            a("v_lshlrev_b32 %s, 16, %s", fac[par][2 * i], g[par][i])
            a("v_and_b32 %s, 0xffff0000, %s", fac[par][2 * i + 1], g[par][i])
    a("s_waitcnt vmcnt(14)")
    a("s_barrier")
    Af = lambda ks: ldall.sub(4 * (ks & 3), 4)
    Bf = lambda ks, par: Qall.sub(8 * ks + 4 * par, 4)

    def rdF(ks):
        a("ds_read_b128 %s, %s offset:%d", Af(ks), ra, 32 * ks)
        for par in range(2):
            a("ds_read_b128 %s, %s offset:%d", Bf(ks, par), rb, (2 * par + ks // 4) * RS + (ks % 4) * 1024)
    for ks in range(3):
        rdF(ks)
    for ks in range(8):
        if ks + 3 < 8:
            rdF(ks + 3)
        a("s_waitcnt lgkmcnt(%d)", 3 * min(3, 7 - ks))
        for par in range(2):
            a(MF16, fac[par], Af(ks), Bf(ks, par), fac[par])
    a("s_mov_b32 %s, %s", s1, hex(f32(1 + DELTA)))
    a("s_mov_b32 %s, %s", sx[0], hex(LOG2E))
    a("s_mov_b32 %s, %s", sx[1], hex(LOG2E))
    a("s_cmp_gt_u32 %s, 4", sw)
    a("s_cbranch_scc1 K2_F1")
    for ks in range(4):
        a("ds_read_b128 %s, %s offset:%d", Af(ks), pa, 528 + 32 * ks)
    for ks in range(4):
        a("s_waitcnt lgkmcnt(%d)", 3 - ks)
        a(MF16, adr, S4, Af(ks), adr if ks else "0")
    a.label("K2_F1")
    ee = [Q[0], Q[1]]
    hh = [Q[2], Q[3]]

    def fin(r0, r1):
        if r0 == 0:
            a("s_waitcnt vmcnt(0)")
        for r in range(r0, r1):
            a("v_lshlrev_b32 %s, 16, %s", hh[0][r], hr[r])
            a("v_and_b32 %s, 0xffff0000, %s", hh[1][r], hr[r])
        for par in range(2):
            for r in range(r0, r1):
                a("v_mul_f32 %s, %s, %s", fac[par][r], s1, fac[par][r])
        for par in range(2):
            for r in range(r0, r1):
                a("v_exp_f32 %s, -%s", ee[par][r], fac[par][r])
        a("s_nop 0")
        for par in range(2):
            for r in range(r0, r1, 2):
                a("v_pk_fma_f32 %s, %s, %s, %s", ee[par].sub(r, 2), ee[par].sub(r, 2), sx, sx)
        for r in range(r0, r1, 2):
            for par in range(2):
                a("v_rcp_f32 %s, %s", ee[par][r], ee[par][r])
                a("v_rcp_f32 %s, %s", ee[par][r + 1], ee[par][r + 1])
            a("s_nop 0")
            for par in range(2):
                a("v_pk_fma_f32 %s, %s, %s, %s", fac[par].sub(r, 2), fac[par].sub(r, 2), ee[par].sub(r, 2), hh[par].sub(r, 2))
            for q in (r, r + 1):
                a("v_cvt_pk_bf16_f32 %s, %s, %s", fac[0][q], fac[0][q], fac[1][q])
                a("buffer_store_dword %s, %s, %s, %s offen offset:%d %s", fac[0][q], so, rO, snu if rowof(q) >= 16 else su0,
                  (rowof(q) % 16) * 256, OPT["st2"])
    fin(0, 12)
    a("s_cmp_lg_u32 %s, 3", s2_)
    a("s_cbranch_scc1 K2_F2")
    a("s_mov_b32 exec_hi, 0")
    fin(12, 14)
    a.label("K2_F2")
    a("s_cmp_gt_u32 %s, 4", sw)
    a("s_cbranch_scc1 K2_F3")
    a("v_add_f32 %s, %s, %s", px[0], px[0], adr[0])
    a("v_add_f32 %s, %s, %s", px[1], px[1], adr[1])
    a("v_cvt_pk_bf16_f32 %s, %s, %s", px[0], px[0], px[1])
    a("s_mul_i32 %s, %s, 6", s0, snb)
    a("s_mov_b64 exec, %s", sval)
    a("buffer_store_short %s, %s, %s, %s offen %s", px[0], pp, rP, s0, OPT["st2"])
    a("buffer_store_short_d16_hi %s, %s, %s, %s offen offset:6 %s", px[0], pp, rP, s0, OPT["st2"])
    a.label("K2_F3")
    if OPT["ts"]:
        a("s_waitcnt vmcnt(0)")
        ts.stamp(7)
        ts.dump(P["ws"], sw, t0, t1)
    a.label("K2_END")
    a("s_endpgm")
    return V.hi, S.hi


def descriptor(name, nv, ns):
    return """.p2align 6
.amdhsa_kernel %s
  .amdhsa_next_free_vgpr %d
  .amdhsa_next_free_sgpr %d
  .amdhsa_accum_offset %d
  .amdhsa_group_segment_fixed_size 0
  .amdhsa_kernarg_size 88
  .amdhsa_user_sgpr_count 2
  .amdhsa_user_sgpr_kernarg_segment_ptr 1
  .amdhsa_system_sgpr_workgroup_id_x 1
.end_amdhsa_kernel
""" % (name, nv, ns, (nv + 3) // 4 * 4)


def build():
    ref = open("standalone__cheap_equivariant_egnn__graph.s.ref").read().split("\n")
    head = [l for l in ref if l.startswith(";") and "@launch" not in l and "Override" not in l and "grid=ceil" not in l]
    head.append("; @launch kernel=egnn_part_kernel grid=(512,1,1) block=(512,1,1) lds=%d" % K1_LDS)
    head.append("; @launch kernel=egnn_main_kernel grid=(256,1,1) block=(512,1,1) lds=%d" % K2_LDS)
    a1, a2 = Asm(), Asm()
    v1, s1 = gen_k1(a1)
    v2, s2 = gen_k2(a2)
    nb = 0
    for nm, x in (("k1", a1), ("k2", a2)):
        bad, n = check_hazards(x.lines)
        nb += bad
        print("%s: %d instructions, %d hazards" % (nm, n, bad), file=sys.stderr)
    print("k1 v%d s%d lds %d; k2 v%d s%d lds %d" % (v1, s1, K1_LDS, v2, s2, K2_LDS), file=sys.stderr)
    txt = "\n".join(head) + "\n.amdgcn_target \"amdgcn-amd-amdhsa--gfx950\"\n.text\n" + a1.text() + a2.text()
    txt += ".section .rodata,\"a\"\n" + descriptor("egnn_part_kernel", v1, s1) + descriptor("egnn_main_kernel", v2, s2)
    return txt, nb


if __name__ == "__main__":
    out = "standalone__cheap_equivariant_egnn__graph.s"
    for arg in sys.argv[1:]:
        if "=" in arg:
            k, v = arg.split("=", 1)
            if k == "out":
                out = v
            else:
                assert k in OPT, k
                OPT[k] = int(v) if isinstance(OPT[k], int) else v.replace("_", " ")
    txt, nb = build()
    open(out, "w").write(txt)
    sys.exit(1 if nb else 0)
```

```python
import struct, sys, os
sys.path.insert(0, os.path.dirname(os.path.abspath(__file__)))
from asmlib import Asm, Regs, R, check_hazards

N, E = 25000, 400000
BN, CH = 98, 1564
CHB = CH * 8
BIAS = 0x0C000000
WS_BP = BIAS
POS_BASE = 0x00800000
WS_ENT = 0x0D000000
WS_OFF = 0x0D400000
WS_WF = 0x0D480000
WS_W3 = WS_WF + 98304
WS_WX = WS_W3 + 1024
WS_TS = 0x0E000000
WS_SIZE = 268435456
OOR = 0x40000000
LOG2E = 0x3FB8AA3B
LN2 = 0x3F317218
CAP = 2048
DUMMY_S = 0x437F0000

DELTA = 0.0027
OPT = dict(probe="", x="", prio=1, ts=0, exactd=0, k1_gemm_first=0, st1="sc1", st2="sc1")

SDWA = "dst_sel:DWORD dst_unused:UNUSED_PAD src0_sel:DWORD src1_sel:%s"
MF16 = "v_mfma_f32_32x32x16_bf16 %s, %s, %s, %s"
MF8 = "v_mfma_f32_32x32x8_bf16 %s, %s, %s, %s"
SMF = "v_smfmac_f32_32x32x32_bf16 %s, %s, %s, %s"


def f32(x):
    return struct.unpack("<I", struct.pack("<f", x))[0]


def srd(a, d, base, off, size):
    if isinstance(off, int) and off == 0:
        a("s_mov_b32 %s, %s", d[0], base[0])
        a("s_mov_b32 %s, %s", d[1], base[1])
    else:
        a("s_add_u32 %s, %s, %s", d[0], base[0], hex(off) if isinstance(off, int) else off)
        a("s_addc_u32 %s, %s, 0", d[1], base[1])
    a("s_mov_b32 %s, %s", d[2], hex(size))
    a("s_mov_b32 %s, 0x20000", d[3])


def wave_scan(a, t):
    for sh in (1, 2, 4, 8):
        a("s_nop 1")
        a("v_add_u32_dpp %s, %s, %s row_shr:%d row_mask:0xf bank_mask:0xf", t, t, t, sh)
    a("s_nop 1")
    a("v_add_u32_dpp %s, %s, %s row_bcast:15 row_mask:0xa bank_mask:0xf", t, t, t)
    a("s_nop 1")
    a("v_add_u32_dpp %s, %s, %s row_bcast:31 row_mask:0xc bank_mask:0xf", t, t, t)


class TS:
    def __init__(self, a, S, n, kern):
        self.a, self.on, self.kern = a, OPT["ts"], kern
        if self.on:
            self.r = S.get(2 * n, 2)
            self.srd = S.get(4, 4)
            self.tmp = S.get(1)
            self.n = n

    def init(self):
        if self.on:
            for i in range(self.n):
                self.a("s_mov_b64 %s, 0", self.r.sub(2 * i, 2))

    def stamp(self, i):
        if self.on:
            self.a("s_memrealtime %s" if self.on == 1 else "s_memtime %s", self.r.sub(2 * i, 2))
            self.a("s_waitcnt lgkmcnt(0)")

    def dump(self, ws, swave, v0, v1):
        if not self.on:
            return
        a = self.a
        srd(a, self.srd, ws, WS_TS + self.kern * 0x100000, 0x100000)
        a("s_mov_b64 exec, -1")
        a("s_lshl_b32 %s, s2, 3", self.tmp)
        a("s_add_u32 %s, %s, %s", self.tmp, self.tmp, swave)
        a("s_lshl_b32 %s, %s, 6", self.tmp, self.tmp)
        a("v_mov_b32 %s, 0", v0)
        for i in range(self.n):
            a("v_mov_b32 %s, %s", v1, self.r[2 * i])
            a("buffer_store_dword %s, %s, %s, %s offen offset:%d", v1, v0, self.srd, self.tmp, 4 * i)


def kernel_head(a, name):
    a(".globl %s", name)
    a(".p2align 8")
    a(".type %s,@function", name)
    a.label(name)


def load_ptrs(a):
    a("s_load_dwordx16 s[4:19], s[0:1], 0")
    a("s_load_dwordx2 s[20:21], s[0:1], 64")
    a("s_load_dwordx2 s[22:23], s[0:1], 80")
    P = {}
    for i, n in enumerate(["h", "pos", "ea", "src", "dst", "we", "wx", "wh", "out", "ws"]):
        P[n] = R("s", 4 + 2 * i, 2)
    return P


K1_LW, K1_LH = 0, 128 * 320
K1_LDS = K1_LH + 128 * 272
K1_HIST, K1_START, K1_STAGE = 0, 1024, 2048


def gen_k1(a):
    S = Regs("s", 24, 96)
    V = Regs("v", 1, 128)
    kernel_head(a, "egnn_part_kernel")
    ts = TS(a, S, 8, 0)
    a("s_cmp_ge_u32 s2, 512")
    a("s_cbranch_scc1 K1_END")
    P = load_ptrs(a)
    ts.init()
    ts.stamp(0)
    tid = R("v", 0)
    lane, t0, t1 = V.get(), V.get(), V.get()
    sw, sc, s0, s1, s2_, s3 = (S.get() for _ in range(6))
    r0, r1, r2, r3, r4 = (S.get(4, 4) for _ in range(5))
    sv = S.get(2, 2)
    a("v_lshrrev_b32 %s, 6, %s", t0, tid)
    a("v_and_b32 %s, 63, %s", lane, tid)
    a("v_readfirstlane_b32 %s, %s", sw, t0)
    a("s_and_b32 %s, s2, 255", sc)
    a("s_cmp_ge_u32 s2, 256")
    a("s_waitcnt lgkmcnt(0)")
    a("s_cbranch_scc%d K1_GEMM", 0 if OPT["k1_gemm_first"] else 1)
    a("s_cmp_eq_u32 %s, 7", sw)
    a("s_cbranch_scc1 K1_PREP")
    m = V.mark()
    dst, src, ea = V.get(4), V.get(4), V.get(2)
    b4, rk, ent = V.get(4), V.get(4), V.get(8)
    cnt, st, z4 = V.get(4), V.get(4), V.get(4)
    off16, one = V.get(), V.get()
    srd(a, r0, P["dst"], 0, E * 4)
    srd(a, r1, P["src"], 0, E * 4)
    srd(a, r2, P["ea"], 0, E * 2)
    a("s_mul_i32 %s, %s, %d", s0, sc, CH * 4)
    a("s_lshr_b32 %s, %s, 1", s1, s0)
    a("v_lshlrev_b32 %s, 4, %s", off16, tid)
    a("v_lshlrev_b32 %s, 3, %s", t0, tid)
    a("buffer_load_dwordx4 %s, %s, %s, %s offen", dst, off16, r0, s0)
    a("buffer_load_dwordx4 %s, %s, %s, %s offen", src, off16, r1, s0)
    a("buffer_load_dwordx2 %s, %s, %s, %s offen", ea, t0, r2, s1)
    for i in range(4):
        a("v_mov_b32 %s, 0", z4[i])
    a("v_lshlrev_b32 %s, 4, %s", t1, lane)
    a("ds_write_b128 %s, %s offset:%d", t1, z4, K1_HIST)
    a("v_mov_b32 %s, 1", one)
    a("s_sub_u32 %s, %d, %s", s2_, E * 4, s0)
    a("s_min_u32 %s, %s, %d", s2_, s2_, CH * 4)
    a("v_cmp_gt_u32 %s, %s, %s", sv, s2_, off16)
    a("s_mul_i32 %s, %s, %d", s0, sc, CHB)
    a("s_add_u32 %s, %s, %s", s0, s0, hex(WS_ENT))
    srd(a, r3, P["ws"], s0, CHB)
    srd(a, r4, P["ws"], WS_OFF, 8 * 256 * 128)
    a("s_mov_b32 %s, 42800", s0)
    a("s_mov_b32 %s, -49", s1)
    a("s_mov_b32 %s, 0xffff0000", s3)
    a("s_waitcnt lgkmcnt(0)")
    a("s_barrier")
    a("s_waitcnt vmcnt(2)")
    ts.stamp(1)
    for k in range(4):
        a("v_mul_u32_u24 %s, %s, %s", b4[k], s0, dst[k])
    for k in range(4):
        a("v_lshrrev_b32 %s, 22, %s", b4[k], b4[k])
    for k in range(4):
        a("v_lshlrev_b32 %s, 2, %s", b4[k], b4[k])
    a("s_mov_b64 exec, %s", sv)
    a("s_cbranch_execz K1_P1")
    for k in range(4):
        a("ds_add_rtn_u32 %s, %s, %s offset:%d", rk[k], b4[k], one, K1_HIST)
    a.label("K1_P1")
    a("s_mov_b64 exec, -1")
    for k in range(4):
        a("v_lshlrev_b32 %s, 1, %s", dst[k], dst[k])
        a("v_mad_i32_i24 %s, %s, %s, %s", dst[k], b4[k], s1, dst[k])
        a("v_and_b32 %s, 12, %s", st[k], dst[k])
        a("v_and_b32 %s, 14, %s", cnt[k], dst[k])
        a("v_add_u32 %s, %s, %s", st[k], st[k], cnt[k])
        a("v_lshl_or_b32 %s, %s, 8, %s", dst[k], st[k], dst[k])
    a("s_waitcnt lgkmcnt(0)")
    a("s_barrier")
    a("ds_read_b128 %s, %s offset:%d", cnt, t1, K1_HIST)
    a("s_waitcnt vmcnt(0)")
    for k in range(4):
        a("v_cvt_f32_ubyte0 %s, %s", ent[2 * k], src[k])
        a("v_or_b32 %s, 0x8000, %s", src[k], src[k])
        a("v_cvt_f32_ubyte1 %s, %s", src[k], src[k])
        a("v_cvt_pk_bf16_f32 %s, %s, %s", ent[2 * k], ent[2 * k], src[k])
        if k % 2 == 0:
            a("v_lshl_or_b32 %s, %s, 16, %s", ent[2 * k + 1], ea[k // 2], dst[k])
        else:
            a("v_and_or_b32 %s, %s, %s, %s", ent[2 * k + 1], ea[k // 2], s3, dst[k])
    a("s_waitcnt lgkmcnt(0)")
    a("v_add_u32 %s, %s, %s", st[2], cnt[0], cnt[1])
    a("v_add_u32 %s, %s, %s", st[3], st[2], cnt[2])
    a("v_add_u32 %s, %s, %s", st[1], st[3], cnt[3])
    a("v_mov_b32 %s, %s", t0, st[1])
    wave_scan(a, t0)
    a("v_sub_u32 %s, %s, %s", st[0], t0, st[1])
    a("v_add_u32 %s, %s, %s", st[1], st[0], cnt[0])
    a("v_add_u32 %s, %s, %s", st[2], st[0], st[2])
    a("v_add_u32 %s, %s, %s", st[3], st[0], st[3])
    a("ds_write_b128 %s, %s offset:%d", t1, st, K1_START)
    for k in range(4):
        a("ds_read_b32 %s, %s offset:%d", dst[k], b4[k], K1_START)
    a("s_cmp_lg_u32 %s, 0", sw)
    a("s_cbranch_scc1 K1_P2")
    for k in range(4):
        a("v_lshl_or_b32 %s, %s, 16, %s", cnt[k], cnt[k], st[k])
    a("v_lshrrev_b32 %s, 3, %s", t0, lane)
    a("v_lshlrev_b32 %s, 15, %s", t0, t0)
    a("v_and_b32 %s, 0x70, %s", src[0], t1)
    a("v_or_b32 %s, %s, %s", t0, t0, src[0])
    a("s_lshl_b32 %s, %s, 7", s0, sc)
    a("buffer_store_dwordx4 %s, %s, %s, %s offen %s", cnt, t0, r4, s0, OPT["st1"])
    a.label("K1_P2")
    a("s_waitcnt lgkmcnt(0)")
    for k in range(4):
        a("v_add_lshl_u32 %s, %s, %s, 3", dst[k], dst[k], rk[k])
    a("s_mov_b64 exec, %s", sv)
    a("s_cbranch_execz K1_P3")
    for k in range(4):
        a("ds_write_b64 %s, %s offset:%d", dst[k], ent.sub(2 * k, 2), K1_STAGE)
    a.label("K1_P3")
    a("s_mov_b64 exec, -1")
    a("s_waitcnt lgkmcnt(0)")
    a("s_barrier")
    a("ds_read_b128 %s, %s offset:%d", dst, off16, K1_STAGE)
    a("ds_read_b128 %s, %s offset:%d", src, off16, K1_STAGE + 448 * 16)
    a("s_mov_b32 %s, %d", s0, 448 * 16)
    a("s_waitcnt lgkmcnt(1)")
    a("buffer_store_dwordx4 %s, %s, %s, 0 offen %s", dst, off16, r3, OPT["st1"])
    a("s_waitcnt lgkmcnt(0)")
    a("buffer_store_dwordx4 %s, %s, %s, %s offen %s", src, off16, r3, s0, OPT["st1"])
    ts.stamp(2)
    if OPT["ts"]:
        a("s_waitcnt vmcnt(0)")
        ts.stamp(3)
        ts.dump(P["ws"], sw, t0, t1)
    a("s_endpgm")

    V.reset(m)
    a.label("K1_PREP")
    pa, pb, w = V.get(4), V.get(4), V.get(8)
    col, kh, ad, ad2, ks, o16 = (V.get() for _ in range(6))
    srd(a, r0, P["pos"], 0, N * 6)
    srd(a, r1, P["ws"], POS_BASE + BIAS, N * 16)
    srd(a, r4, P["ws"], WS_WF, 98304 + 2048)
    a("s_mul_i32 %s, %s, %d", s0, sc, BN * 6)
    a("v_mul_u32_u24 %s, 6, %s", t0, lane)
    for j in range(3):
        a("buffer_load_ushort %s, %s, %s, %s offen offset:%d", pa[j], t0, r0, s0, 2 * j)
    for j in range(3):
        a("buffer_load_ushort %s, %s, %s, %s offen offset:%d", pb[j], t0, r0, s0, 384 + 2 * j)
    a("v_and_b32 %s, 31, %s", col, lane)
    a("v_lshrrev_b32 %s, 5, %s", kh, lane)
    a("v_lshlrev_b32 %s, 4, %s", o16, lane)
    a("v_mov_b32 %s, 0", pa[3])
    a("v_mov_b32 %s, 0", pb[3])
    a("s_cmp_ge_u32 %s, 96", sc)
    a("s_cbranch_scc1 K1_PREP_X")
    a("s_and_b32 %s, %s, 7", s1, sc)
    a("s_bfe_u32 %s, %s, 0x20003", s2_, sc)
    a("s_cmp_ge_u32 %s, 32", sc)
    a("s_cbranch_scc1 K1_PREP_H")
    srd(a, r2, P["we"], 0, 258 * 256)
    a("s_lshl_b32 %s, %s, 6", s2_, s2_)
    a("v_lshlrev_b32 %s, 1, %s", ad, col)
    a("s_branch K1_PREP_K")
    a.label("K1_PREP_H")
    srd(a, r2, P["wh"], 0, 256 * 256)
    a("s_and_b32 %s, %s, 1", s3, s2_)
    a("s_lshr_b32 %s, %s, 1", s2_, s2_)
    a("s_lshl_b32 %s, %s, 6", s2_, s2_)
    a("s_add_u32 %s, %s, %s", s2_, s2_, s3)
    a("s_lshl_b32 %s, %s, 1", s2_, s2_)
    a("v_lshlrev_b32 %s, 2, %s", ad, col)
    a("s_cmp_ge_u32 %s, 64", sc)
    a("s_cbranch_scc1 K1_PREP_H2")
    a.label("K1_PREP_K")
    a("s_lshl_b32 %s, %s, 12", s1, s1)
    a("s_add_u32 %s, %s, %s", s1, s1, s2_)
    a("v_lshl_add_u32 %s, %s, 11, %s", ad, kh, ad)
    for j in range(8):
        a("buffer_load_ushort %s, %s, %s, %s offen offset:%d", w[j], ad, r2, s1, 256 * j)
    a("s_branch K1_PREP_W")
    a.label("K1_PREP_H2")
    a("s_lshr_b32 %s, %s, 2", s3, s1)
    a("s_lshl_b32 %s, %s, 6", s3, s3)
    a("s_and_b32 %s, %s, 3", s1, s1)
    a("s_lshl_b32 %s, %s, 3", s1, s1)
    a("s_add_u32 %s, %s, %s", s1, s1, s3)
    a("s_add_u32 %s, %s, 128", s1, s1)
    a("s_lshl_b32 %s, %s, 8", s1, s1)
    a("s_add_u32 %s, %s, %s", s1, s1, s2_)
    a("v_lshl_add_u32 %s, %s, 10, %s", ad, kh, ad)
    a("v_add_u32 %s, 8192, %s", ad2, ad)
    for j in range(8):
        a("buffer_load_ushort %s, %s, %s, %s offen offset:%d", w[j], ad2 if j & 1 else ad, r2, s1, 256 * (j >> 1))
    a.label("K1_PREP_W")
    a("s_barrier\ns_barrier\ns_barrier\ns_waitcnt vmcnt(0)")
    for j in range(4):
        a("v_lshl_or_b32 %s, %s, 16, %s", w[j], w[2 * j + 1], w[2 * j])
    a("s_lshl_b32 %s, %s, 10", s1, sc)
    a("buffer_store_dwordx4 %s, %s, %s, %s offen %s", w.sub(0, 4), o16, r4, s1, OPT["st1"])
    a("s_branch K1_PREP_P2")
    a.label("K1_PREP_X")
    a("s_cmp_gt_u32 %s, 97", sc)
    a("s_cbranch_scc1 K1_PREP_P")
    a("s_cmp_eq_u32 %s, 97", sc)
    a("s_cbranch_scc1 K1_PREP_WX")
    srd(a, r2, P["we"], 0, 258 * 256)
    a("v_lshlrev_b32 %s, 1, %s", ad, lane)
    a("s_mov_b32 %s, 65536", s1)
    for xy in range(2):
        a("buffer_load_ushort %s, %s, %s, %s offen offset:%d", w[4 + 2 * xy], ad, r2, s1, 128 * xy)
        a("buffer_load_ushort %s, %s, %s, %s offen offset:%d", w[5 + 2 * xy], ad, r2, s1, 256 + 128 * xy)
    a("s_barrier\ns_barrier\ns_barrier\ns_waitcnt vmcnt(0)")
    for j in range(4, 8):
        a("v_lshlrev_b32 %s, 16, %s", w[j], w[j])
        a("v_mul_f32 %s, %s, %s", w[j], hex(LOG2E), w[j])
    for xy in range(2):
        d_, a_ = w[4 + 2 * xy], w[5 + 2 * xy]
        a("v_cvt_pk_bf16_f32 %s, %s, %s", w[2 * xy], d_, a_)
        a("v_lshlrev_b32 %s, 16, %s", t0, w[2 * xy])
        a("v_and_b32 %s, 0xffff0000, %s", t1, w[2 * xy])
        a("v_sub_f32 %s, %s, %s", d_, d_, t0)
        a("v_sub_f32 %s, %s, %s", a_, a_, t1)
        a("v_cvt_pk_bf16_f32 %s, %s, %s", w[2 * xy + 1], d_, a_)
    a("s_mov_b32 %s, 98304", s1)
    a("buffer_store_dwordx4 %s, %s, %s, %s offen %s", w.sub(0, 4), o16, r4, s1, OPT["st1"])
    a("s_branch K1_PREP_P2")
    a.label("K1_PREP_WX")
    srd(a, r2, P["wx"], 0, 256)
    a("v_lshlrev_b32 %s, 1, %s", ad, col)
    for j in range(4):
        a("buffer_load_ushort %s, %s, %s, 0 offen offset:%d", w[j], ad, r2, 64 * j)
    a("s_barrier\ns_barrier\ns_barrier\ns_waitcnt vmcnt(0)")
    for j in range(4):
        a("v_lshlrev_b32 %s, 16, %s", w[j], w[j])
        a("v_mul_f32 %s, %s, %s", w[j], hex(f32(0.6931471805599453 * (1 + DELTA))), w[j])
    a("s_mov_b32 %s, %d", s1, 98304 + 1024)
    a("buffer_store_dwordx4 %s, %s, %s, %s offen %s", w.sub(0, 4), o16, r4, s1, OPT["st1"])
    a("s_branch K1_PREP_P2")
    a.label("K1_PREP_P")
    a("s_barrier\ns_barrier\ns_barrier\ns_waitcnt vmcnt(0)")
    a.label("K1_PREP_P2")
    for j in range(3):
        a("v_lshlrev_b32 %s, 16, %s", pa[j], pa[j])
        a("v_lshlrev_b32 %s, 16, %s", pb[j], pb[j])
    a("s_mul_i32 %s, %s, %d", s0, sc, BN * 16)
    a("buffer_store_dwordx4 %s, %s, %s, %s offen %s", pa, o16, r1, s0, OPT["st1"])
    a("s_mov_b32 exec_hi, 3")
    a("buffer_store_dwordx4 %s, %s, %s, %s offen offset:1024 %s", pb, o16, r1, s0, OPT["st1"])
    a("s_endpgm")

    V.reset(m)
    a.label("K1_GEMM")
    o16, aw, ah, ar, br, so, sg = (V.get() for _ in range(7))
    hv = V.get(16, 4)
    acc = [V.get(16, 4), V.get(16, 4)]
    wv = acc[0]
    bf = V.get(64, 4)
    srd(a, r1, P["we"], 32768, 32768)
    a("v_lshlrev_b32 %s, 4, %s", o16, tid)
    for i in range(4):
        if i:
            a("s_mov_b32 %s, %d", s1, 8192 * i)
        a("buffer_load_dwordx4 %s, %s, %s, %s offen", wv.sub(4 * i, 4), o16, r1, s1 if i else "0")
    srd(a, r0, P["h"], 0, N * 256)
    a("s_mul_i32 %s, %s, %d", s0, sc, BN * 256)
    for i in range(4):
        if i:
            a("s_add_u32 %s, %s, %d", s1, s0, 8192 * i)
        if i == 3:
            a("s_cmp_lt_u32 %s, 2", sw)
            a("s_cselect_b32 %s, %s, %s", s1, s1, hex(OOR))
        a("buffer_load_dwordx4 %s, %s, %s, %s offen", hv.sub(4 * i, 4), o16, r0, s1 if i else s0)
    srd(a, r2, P["ws"], WS_BP, N * 256)
    a("v_lshrrev_b32 %s, 4, %s", t0, tid)
    a("v_lshl_add_u32 %s, %s, 6, %s", aw, t0, o16)
    a("v_lshl_add_u32 %s, %s, 4, %s", ah, t0, o16)
    a("v_add_u32 %s, %d, %s", ah, K1_LH, ah)
    a("s_lshr_b32 %s, %s, 1", s2_, sw)
    a("s_and_b32 %s, %s, 1", s3, sw)
    a("v_and_b32 %s, 31, %s", t0, lane)
    a("v_lshrrev_b32 %s, 5, %s", t1, lane)
    a("v_mul_u32_u24 %s, 272, %s", ar, t0)
    a("v_lshl_add_u32 %s, %s, 4, %s", ar, t1, ar)
    a("s_mul_i32 %s, %s, %d", s1, s2_, 24 * 272)
    a("s_add_u32 %s, %s, %d", s1, s1, K1_LH)
    a("v_add_u32 %s, %s, %s", ar, s1, ar)
    a("s_lshl_b32 %s, %s, 12", s1, sw)
    a("v_lshl_add_u32 %s, %s, 2, %s", so, t0, s1)
    a("v_lshl_add_u32 %s, %s, 9, %s", so, t1, so)
    a("v_bfe_u32 %s, %s, 2, 2", br, lane)
    a("v_lshl_add_u32 %s, %s, 3, %s", br, t1, br)
    a("v_mul_u32_u24 %s, 320, %s", br, br)
    a("v_bfe_u32 %s, %s, 4, 1", t0, lane)
    a("v_lshl_add_u32 %s, %s, 5, %s", br, t0, br)
    a("v_and_b32 %s, 3, %s", t0, lane)
    a("v_lshl_add_u32 %s, %s, 3, %s", br, t0, br)
    a("s_lshl_b32 %s, %s, 7", s3, s3)
    a("v_add_u32 %s, %s, %s", br, s3, br)
    a("v_lshl_add_u32 %s, %s, 4, %s", o16, lane, s1)
    a("v_lshrrev_b32 %s, 3, %s", t0, lane)
    a("v_and_b32 %s, 7, %s", t1, lane)
    a("v_lshlrev_b32 %s, 4, %s", t1, t1)
    a("v_lshl_add_u32 %s, %s, 8, %s", sg, t0, t1)
    a("s_mul_i32 %s, %s, %d", s1, s2_, 24 * 256)
    a("s_add_u32 %s, %s, %s", s0, s0, s1)
    a("s_add_u32 %s, %s, %s", s0, s0, s3)
    a("s_add_u32 %s, %s, 4096", s1, s0)
    a("s_mov_b32 %s, %s", sv[0], hex(LOG2E))
    a("s_mov_b32 %s, %s", sv[1], hex(LOG2E))
    for i in range(4):
        a("s_waitcnt vmcnt(%d)", 7 - i)
        a("ds_write_b128 %s, %s offset:%d", aw, wv.sub(4 * i, 4), K1_LW + 32 * 320 * i)
    a("s_waitcnt lgkmcnt(0)")
    a("s_barrier")
    for ks in range(8):
        for lh in range(2):
            for i in range(2):
                a("ds_read_b64_tr_b16 %s, %s offset:%d", bf.sub(8 * ks + 4 * lh + 2 * i, 2), br,
                  K1_LW + (16 * ks + 4 * i) * 320 + 64 * lh)
    for i in range(4):
        a("s_waitcnt vmcnt(%d)", 3 - i)
        a("ds_write_b128 %s, %s offset:%d", ah, hv.sub(4 * i, 4), 32 * 272 * i)
    a("s_waitcnt lgkmcnt(0)")
    ts.stamp(1)
    a("s_barrier")
    rd = lambda ks: a("ds_read_b128 %s, %s offset:%d", hv.sub(4 * (ks & 3), 4), ar, 32 * ks)
    for ks in range(4):
        rd(ks)
    for ks in range(8):
        a("s_waitcnt lgkmcnt(%d)", min(3, 7 - ks))
        for lh in range(2):
            a(MF16, acc[lh], hv.sub(4 * (ks & 3), 4), bf.sub(8 * ks + 4 * lh, 4), acc[lh] if ks else "0")
        if ks < 4:
            rd(ks + 4)
    a("s_nop 11")

    def fin(r0_, r1_):
        for r in range(r0_, r1_, 2):
            for lh in range(2):
                a("v_pk_mul_f32 %s, %s, %s", acc[lh].sub(r, 2), acc[lh].sub(r, 2), sv)
            for q in (r, r + 1):
                a("v_cvt_pk_bf16_f32 %s, %s, %s", acc[0][q], acc[0][q], acc[1][q])
                a("ds_write_b32 %s, %s offset:%d", so, acc[0][q], (8 * (q // 4) + q % 4) * 128)
            if r % 4 == 2 or r == 12:
                i = r // 4
                a("ds_read_b128 %s, %s offset:%d", hv.sub(4 * i, 4), o16, 1024 * i)
                if 0 < i < 3:
                    a("s_waitcnt lgkmcnt(5)")
                    sto(i - 1)

    def sto(i):
        a("buffer_store_dwordx4 %s, %s, %s, %s offen offset:%d %s", hv.sub(4 * i, 4), sg, r2, s1 if i >= 2 else s0,
          (i & 1) * 2048, OPT["st1"])
    fin(0, 12)
    a("s_waitcnt lgkmcnt(0)")
    sto(2)
    a("s_cmp_lg_u32 %s, 3", s2_)
    a("s_cbranch_scc1 K1_G_END")
    fin(12, 14)
    a("s_mov_b64 exec, 0xffff")
    a("s_waitcnt lgkmcnt(0)")
    sto(3)
    a.label("K1_G_END")
    ts.stamp(2)
    if OPT["ts"]:
        a("s_waitcnt vmcnt(0)")
        ts.stamp(3)
        ts.dump(P["ws"], sw, t0, t1)
    a.label("K1_END")
    a("s_endpgm")
    return V.hi, S.hi


L_AT = 0
L_S = 49 * 512
L_E = L_S + (CAP + 128) * 4
L_HIST = L_E + (CAP + 128) * 4
L_FLAG = L_HIST + 256
L_START = L_FLAG + 256
L_POS = L_START + 256
L_GT = L_POS + 2048
L_RING = L_GT + 49 * 512
PS = 2048 + 128
RS = 1024 + PS + 2048
L_MACC = L_RING + 8 * RS
PB = 928
K2_LDS = L_MACC + 50 * PB
L_H = L_MACC
assert L_S % 256 == 0 and L_E % 256 == 0 and K2_LDS <= 163840 and 112 * 272 <= 49 * PB
LOOR = 0x80000
QF, QS = 24, 4
assert 256 * QS + 49 * 16 <= CAP


def gen_k2(a):
    S = Regs("s", 24, 102)
    V = Regs("v", 1, 256)
    kernel_head(a, "egnn_main_kernel")
    ts = TS(a, S, 8, 1)
    a("s_cmp_ge_u32 s2, 256")
    a("s_cbranch_scc1 K2_END")
    P = load_ptrs(a)
    ts.init()
    ts.stamp(0)
    tid = R("v", 0)
    lane, vh, fbase, tb16, tb32, bS4, bOH, pS4, pOH, bE, bS, bP, posc, isel, iseg, vflag = (V.get() for _ in range(16))
    Q = [V.get(16, 4) for _ in range(4)]
    Qall = R("v", Q[0].i, 64)
    y = [V.get(16, 4), V.get(16, 4)]
    yall = R("v", y[0].i, 32)
    e = [V.get(16, 4), V.get(16, 4)]
    eall = R("v", e[0].i, 32)
    adr = V.get(16, 4)
    ldall = V.get(16, 4)
    ld = [ldall.sub(0, 8), ldall.sub(8, 8)]
    sel, zero = V.get(4, 4), V.get(4, 4)
    Bop = [V.get(4, 4), V.get(4, 4)]
    WX, oh, S4 = V.get(4, 4), V.get(4, 4), V.get(4, 4)
    psrc, pdst = V.get(4, 4), V.get(4, 4)
    ones, aB, aA, c64 = V.get(2), V.get(2), V.get(2), V.get(2)
    one = c64[0]
    T = V.get(24, 4)
    rBP, rPOS, rWS, rH = (S.get(4, 4) for _ in range(4))
    (sw, snb, sJ, sq, sfirst, smore, stot, sU, snu, su0, su, spa, sinc, sflu, sfq, sret, srmw, srnd, sql, sshr,
     snr) = (S.get() for _ in range(21))
    s0, s1, s2_, s3, s4, sdot, slo, shi = (S.get() for _ in range(8))
    sval, sx = S.get(2, 2), S.get(2, 2)
    t0, t1, t2, t3 = T[0], T[1], T[2], T[3]
    X = OPT["x"]

    a("v_lshrrev_b32 %s, 6, %s", t0, tid)
    a("v_and_b32 %s, 63, %s", lane, tid)
    a("v_readfirstlane_b32 %s, %s", sw, t0)
    a("s_and_b32 %s, s2, 7", s0)
    a("s_lshr_b32 %s, s2, 3", s1)
    a("s_lshl_b32 %s, %s, 5", snb, s0)
    a("s_add_u32 %s, %s, %s", snb, snb, s1)
    a("s_mul_i32 %s, %s, %d", snb, snb, BN)
    ent = Qall.sub(0, 48)
    rk, bn = yall.sub(0, 24), eall.sub(0, 24)
    stv = R("v", adr.i, 24)
    voff, vrem, vea, seg = T[20], T[21], T[22], T[23]
    hst = R("v", adr.i, 28)
    Wf = [yall, eall]
    acc = Q
    o16, l16 = T[18], T[19]
    a("v_and_b32 %s, 255, %s", seg, tid)
    a("v_lshlrev_b32 %s, 7, %s", t0, seg)
    a("v_lshlrev_b32 %s, 4, %s", o16, seg)
    a("v_lshlrev_b32 %s, 4, %s", l16, lane)
    a("s_lshl_b32 %s, %s, 15", s0, s0)
    a("s_lshl_b32 %s, %s, 2", s1, s1)
    a("s_add_u32 %s, %s, %s", s0, s0, s1)
    a("s_add_u32 %s, %s, %s", s0, s0, hex(WS_OFF))
    a("s_waitcnt lgkmcnt(0)")
    srd(a, rWS, P["ws"], 0, WS_SIZE)
    srd(a, rH, P["h"], 0, N * 256)
    srd(a, rPOS, P["ws"], POS_BASE, BIAS + N * 16)
    a("s_cmp_lt_u32 %s, 4", sw)
    a("s_cbranch_scc1 K2_PG")
    a("buffer_load_dword %s, %s, %s, %s offen", voff, t0, rWS, s0)
    a("s_barrier")
    a("s_branch K2_PC")
    a.label("K2_PG")
    a("s_lshl_b32 %s, %s, 8", s0, snb)
    a("s_barrier")
    for i in range(7):
        if i:
            a("s_add_u32 %s, %s, %d", s1, s0, 4096 * i)
        if i == 6:
            a("s_cmp_lt_u32 %s, 2", sw)
            a("s_cselect_b32 %s, %s, %s", s1, s1, hex(OOR))
        a("buffer_load_dwordx4 %s, %s, %s, %s offen", hst.sub(4 * i, 4), o16, rH, s1 if i else s0)
    a("s_lshl_b32 %s, %s, 4", s1, snb)
    a("s_add_u32 %s, %s, %s", s1, s1, hex(BIAS))
    a("s_cmp_lt_u32 %s, 2", sw)
    a("s_cselect_b32 %s, %s, %s", s1, s1, hex(OOR))
    a("buffer_load_dwordx4 %s, %s, %s, %s offen", psrc, o16, rPOS, s1)
    a("s_lshl_b32 %s, %s, 13", s0, sw)
    for g in range(4):
        a("s_add_u32 %s, %s, %s", s1, s0, hex(WS_WF + (g >> 1) * 32768 + (g & 1) * 4096))
        for k in range(4):
            a("buffer_load_dwordx4 %s, %s, %s, %s offen offset:%d", Wf[g >> 1].sub(16 * (g & 1) + 4 * k, 4), l16, rWS, s1, k * 1024)
    a.label("K2_PC")
    a("s_mov_b32 %s, %s", s0, hex(WS_W3))
    a("buffer_load_dwordx2 %s, %s, %s, %s offen", Bop[0].sub(2, 2), l16, rWS, s0)
    a("buffer_load_dwordx2 %s, %s, %s, %s offen offset:8", Bop[1].sub(2, 2), l16, rWS, s0)
    a("buffer_load_dwordx4 %s, %s, %s, %s offen offset:1024", WX, l16, rWS, s0)
    srd(a, rBP, P["ws"], 0, BIAS + N * 256)
    for i in range(4):
        a("v_mov_b32 %s, 0", zero[i])
    a("v_lshrrev_b32 %s, 5, %s", vh, lane)
    a("v_and_b32 %s, 31, %s", t0, lane)
    a("v_lshlrev_b32 %s, 2, %s", t1, t0)
    a("v_mul_u32_u24 %s, %d, %s", t2, PB, vh)
    a("s_mov_b32 %s, %d", s0, L_MACC)
    a("v_add3_u32 %s, %s, %s, %s", fbase, t1, t2, s0)
    a("v_mov_b32 %s, 0x3f80", c64[0])
    a("v_mov_b32 %s, 0", c64[1])
    a("v_mov_b32 %s, 0x3f003f00", ones[0])
    a("v_mov_b32 %s, 0", ones[1])
    a("v_mov_b32 %s, 0x3f80", aA[1])
    a("v_mov_b32 %s, 0xdddd", iseg)
    a("v_mov_b32 %s, %s", posc, hex(f32((2.0 ** 23 - 2.0 ** 19) * 2.0 ** -126)))
    a("s_mov_b32 %s, %s", sdot, hex((5 << 7) | (13 << 23)))
    a("s_mov_b32 %s, 0x3f80", slo)
    a("s_mov_b32 %s, 0x3f800000", shi)
    a("v_cvt_f32_u32 %s, %s", t1, t1)
    a("v_mul_f32 %s, 0x00800000, %s", t1, t1)
    a("v_lshrrev_b32 %s, 16, %s", t1, t1)
    a("v_cmp_gt_u32 vcc, 32, %s", lane)
    a("v_mov_b32 %s, %s", t2, hex((9 << 7) | (17 << 23)))
    a("s_mul_i32 %s, %s, %d", s0, sw, RS)
    a("s_add_u32 %s, %s, %d", s0, s0, L_RING)
    a("s_add_u32 %s, %s, 1024", s1, s0)
    a("v_cndmask_b32 %s, 0, %s, vcc", aB[0], t2)
    a("v_cndmask_b32 %s, 0, %s, vcc", aB[1], t1)
    a("v_add_u32 %s, %s, %s", tb16, s0, l16)
    a("v_lshl_add_u32 %s, %s, 5, %s", tb32, lane, s1)
    a("v_and_b32 %s, 0xf0, %s", t1, l16)
    a("v_add_u32 %s, %s, %s", t1, s0, t1)
    a("v_add_u32 %s, -16, %s", t2, lane)
    a("v_cmp_gt_u32 vcc, 32, %s", t2)
    a("v_mov_b32 %s, %s", t2, hex(LOOR))
    a("v_bfe_u32 %s, %s, 2, 2", t3, lane)
    a("v_cndmask_b32 %s, %s, %s, vcc", bOH, t1, t2)
    a("v_cmp_eq_u32 vcc, 0, %s", lane)
    a("s_lshl_b32 %s, %s, 2", s2_, sw)
    a("v_mov_b32 %s, %s", t1, s2_)
    a("v_cndmask_b32 %s, %s, %s, vcc", vflag, t2, t1)
    a("v_lshl_add_u32 %s, %s, 3, %s", t3, vh, t3)
    a("v_lshlrev_b32 %s, 5, %s", t3, t3)
    a("v_and_b32 %s, 1, %s", t1, lane)
    a("v_lshl_add_u32 %s, %s, 3, %s", t3, t1, t3)
    a("v_and_b32 %s, 16, %s", t2, lane)
    a("v_add_u32 %s, %s, %s", t3, t3, t2)
    a("v_bfe_u32 %s, %s, 1, 1", t0, lane)
    a("v_mul_u32_u24 %s, %d, %s", t0, PS, t0)
    a("v_add3_u32 %s, %s, %s, %s", bS4, t0, t3, s1)
    a("v_lshrrev_b32 %s, 4, %s", t2, t2)
    a("v_lshl_add_u32 %s, %s, 1, %s", t1, t1, t2)
    a("v_mul_u32_u24 %s, 0x5555, %s", isel, t1)
    a("v_bfe_u32 %s, %s, 1, 3", t1, lane)
    a("v_lshlrev_b32 %s, 2, %s", t3, vh)
    a("v_xor_b32 %s, %s, %s", t1, t1, t3)
    for t in range(4):
        a("v_cmp_eq_u32 vcc, %d, %s", t, t1)
        a("s_nop 1")
        a("v_cndmask_b32 %s, 0, %s, vcc", sel[t], one)
    a("s_mov_b32 %s, 0", sJ)
    a("s_mov_b32 %s, %d", sq, QF)
    a("s_mov_b32 %s, 3", sfirst)
    a("s_mov_b32 %s, 0", srnd)
    a("s_cmp_lt_u32 %s, 4", sw)
    a("s_cbranch_scc1 K2_G0")
    a("s_waitcnt vmcnt(3)")
    a.label("K2_ROUND")
    ts.stamp(1)
    a("v_lshlrev_b32 %s, 3, %s", t3, lane)
    a("ds_write_b64 %s, %s offset:%d", t3, zero.sub(0, 2), L_HIST)
    a("v_lshrrev_b32 %s, 16, %s", vrem, voff)
    a("v_and_b32 %s, 0xffff, %s", t0, voff)
    a("v_subrev_u32 %s, %s, %s", vrem, sJ, vrem)
    a("v_mul_u32_u24 %s, %d, %s", t2, CHB, seg)
    a("v_cmp_lt_i32 %s, %s, %s", sx, sq, vrem)
    a("v_min_i32 %s, %s, %s", vrem, sq, vrem)
    a("v_add_u32 %s, %s, %s", t0, sJ, t0)
    a("v_lshl_add_u32 %s, %s, 3, %s", vea, t0, t2)
    a("s_mov_b32 %s, %s", s0, hex(WS_ENT))
    for i in range(QF // 2):
        a("v_cmpx_lt_i32 vcc, %d, %s", 2 * i, vrem)
        a("s_cbranch_execz K2_R1")
        a("buffer_load_dwordx4 %s, %s, %s, %s offen offset:%d", ent.sub(4 * i, 4), vea, rWS, s0, 16 * i)
    a.label("K2_R1")
    a("s_mov_b64 exec, -1")
    a("v_mov_b32 %s, 1", t1)
    a("s_waitcnt lgkmcnt(0)")
    a("s_barrier")
    a("s_mov_b64 exec, %s", sx)
    a("s_cbranch_execz K2_R2")
    a("ds_write_b32 %s, %s offset:%d", zero[0], t1, L_HIST + 63 * 4)
    a.label("K2_R2")
    a("s_mov_b64 exec, -1")
    a("s_mov_b32 %s, 0", snr)
    a("s_waitcnt vmcnt(0)")
    ts.stamp(2)
    for k in range(QF):
        a("v_cmpx_lt_i32 vcc, %d, %s", k, vrem)
        if k % 2 == 0:
            a("s_cbranch_execz K2_R3")
            a("s_mov_b32 %s, %d", snr, k + 2)
        a("v_and_b32 %s, 0xfc, %s", bn[k], ent[2 * k + 1])
        a("ds_add_rtn_u32 %s, %s, %s offset:%d", rk[k], bn[k], t1, L_HIST)
    a.label("K2_R3")
    a("s_mov_b64 exec, -1")
    a("s_branch K2_R4")

    ar, wa = T[16], T[17]

    def gemm(g):
        seq = [(rt, ks) for rt in range(4) for ks in range(8)]
        afb = lambda n: T.sub(4 * (n & 3), 4)
        rdA = lambda n: a("ds_read_b128 %s, %s offset:%d", afb(n), ar, seq[n][0] * 24 * 272 + 32 * seq[n][1])
        sc = f32(1.4426950408889634 / (1 + DELTA)) if g else LOG2E
        a("s_mov_b32 %s, %s", s4, hex(sc))
        fin = []
        for n in range(3):
            rdA(n)
        nds = 0
        pend = []
        for n, (rt, ks) in enumerate(seq):
            if n + 3 < 32:
                rdA(n + 3)
                pend.append("r")
            a("s_waitcnt lgkmcnt(%d)", min(15, youn(n)))
            a(MF16, acc[rt], afb(n), Wf[g].sub(4 * ks, 4), acc[rt] if ks else "0")
            if n == 8:
                a("s_nop 2")
            if rt > 0 and 2 <= ks < 8:
                out(g, rt - 1, ks - 2)
        a("s_nop 7")
        for i in range(7):
            out(g, 3, i)
        a("s_mov_b64 exec, -1")

    def youn(n):
        order = ["r0", "r1", "r2"]
        for k in range(n + 1):
            if k + 3 < 32:
                order.append("r%d" % (k + 3))
            if k < n and k >= 8 and 2 <= k % 8 < 8:
                order.append("w")
        return len(order) - 1 - order.index("r%d" % n)

    def out(g, rt, i):
        a("v_mul_f32 %s, %s, %s", acc[rt][2 * i], s4, acc[rt][2 * i])
        a("v_mul_f32 %s, %s, %s", acc[rt][2 * i + 1], s4, acc[rt][2 * i + 1])
        a("v_cvt_pk_bf16_f32 %s, %s, %s", acc[rt][2 * i], acc[rt][2 * i], acc[rt][2 * i + 1])
        if i == 6:
            a("s_mov_b32 exec_hi, 0")
        a("ds_write_b32 %s, %s offset:%d", wa, acc[rt][2 * i], (12 * rt + 4 * (i // 2) + i % 2) * 512)

    a.label("K2_G0")
    a("v_lshrrev_b32 %s, 4, %s", t0, tid)
    a("v_lshl_add_u32 %s, %s, 4, %s", t0, t0, o16)
    a("v_add_u32 %s, %d, %s", t0, L_H, t0)
    a("v_and_b32 %s, 31, %s", t1, lane)
    a("v_mul_u32_u24 %s, 272, %s", ar, t1)
    a("v_lshl_add_u32 %s, %s, 4, %s", ar, vh, ar)
    a("v_add_u32 %s, %d, %s", ar, L_H, ar)
    a("v_lshlrev_b32 %s, 2, %s", wa, t1)
    a("v_lshl_add_u32 %s, %s, 10, %s", wa, vh, wa)
    a("s_lshl_b32 %s, %s, 7", s0, sw)
    a("v_add_u32 %s, %s, %s", wa, s0, wa)
    for i in range(7):
        a("s_waitcnt vmcnt(%d)", 26 - i)
        a("ds_write_b128 %s, %s offset:%d", t0, hst.sub(4 * i, 4), 16 * 272 * i)
    a("s_cmp_ge_u32 %s, 2", sw)
    a("s_cbranch_scc1 K2_G1")
    a("s_waitcnt vmcnt(19)")
    a("ds_write_b128 %s, %s offset:%d", o16, psrc, L_POS)
    a.label("K2_G1")
    a("s_waitcnt lgkmcnt(0)")
    ts.stamp(1)
    a.label("K2_GROUND")
    a("s_barrier")
    a("s_bitcmp0_b32 %s, 0", sfirst)
    a("s_cbranch_scc1 K2_R4")
    a("s_mov_b32 %s, 2", sfirst)
    a("s_waitcnt vmcnt(11)")
    ts.stamp(2)
    gemm(0)
    a("v_add_u32 %s, %d, %s", wa, L_GT, wa)

    a.label("K2_R4")
    a("v_lshlrev_b32 %s, 2, %s", psrc[3], lane)
    a("s_waitcnt lgkmcnt(0)")
    a("s_barrier")
    ts.stamp(3)
    cn, mx, st, l4 = pdst[0], pdst[1], pdst[2], psrc[3]
    a("ds_read_b32 %s, %s offset:%d", cn, l4, L_HIST)
    a("s_mov_b32 %s, -1", sx[0])
    a("s_mov_b32 %s, 0x1ffff", sx[1])
    a("s_waitcnt lgkmcnt(0)")
    a("v_readlane_b32 %s, %s, 63", smore, cn)
    a("v_max_u32 %s, 16, %s", mx, cn)
    a("v_cndmask_b32 %s, 0, %s, %s", mx, mx, sx)
    a("v_mov_b32 %s, %s", st, mx)
    wave_scan(a, st)
    a("s_nop 0")
    a("v_readlane_b32 %s, %s, 63", stot, st)
    a("v_sub_u32 %s, %s, %s", st, st, mx)
    a("v_lshlrev_b32 %s, 2, %s", st, st)
    a("s_cmp_gt_u32 %s, %d", stot, CAP)
    a("s_cbranch_scc1 K2_RETRY")
    a("s_add_u32 %s, %s, 15", sU, stot)
    a("s_lshr_b32 %s, %s, 4", sU, sU)
    a("s_cmp_lt_u32 %s, 4", sw)
    a("s_cbranch_scc1 K2_G2")
    a("ds_write_b32 %s, %s offset:%d", l4, st, L_START)
    for k in range(QF):
        if k % 2 == 0:
            a("s_cmp_le_u32 %s, %d", snr, k)
            a("s_cbranch_scc1 K2_R5")
        a("ds_read_b32 %s, %s offset:%d", stv[k], bn[k], L_START)
    a.label("K2_R5")
    a("v_mov_b32 %s, %s", t2, hex(DUMMY_S))
    a("s_cmp_lt_u32 %s, 6", sw)
    a("s_cbranch_scc1 K2_R6")
    a("s_cmp_eq_u32 %s, 6", sw)
    a("s_cbranch_scc1 K2_R5B")
    a("v_add_lshl_u32 %s, %s, %s, 2", t0, lane, stot)
    a("v_mov_b32 %s, 192", t1)
    a("ds_write2st64_b32 %s, %s, %s offset0:%d offset1:%d", t0, t2, t1, L_S // 256, L_E // 256)
    a("ds_write2st64_b32 %s, %s, %s offset0:%d offset1:%d", t0, t2, t1, L_S // 256 + 1, L_E // 256 + 1)
    a("s_branch K2_R6")
    a.label("K2_R5B")
    a("v_lshl_add_u32 %s, %s, 2, %s", t0, cn, st)
    a("s_mov_b64 exec, %s", sx)
    a.label("K2_R5C")
    a("v_cmpx_gt_u32 vcc, 16, %s", cn)
    a("s_cbranch_execz K2_R6")
    a("ds_write2st64_b32 %s, %s, %s offset0:%d offset1:%d", t0, t2, l4, L_S // 256, L_E // 256)
    a("v_add_u32 %s, 4, %s", t0, t0)
    a("v_add_u32 %s, 1, %s", cn, cn)
    a("s_branch K2_R5C")
    a.label("K2_R6")
    a("s_mov_b64 exec, -1")
    a("s_waitcnt lgkmcnt(0)")
    for k in range(QF):
        a("v_cmpx_lt_i32 vcc, %d, %s", k, vrem)
        if k % 2 == 0:
            a("s_cbranch_execz K2_R7")
        a("v_lshl_add_u32 %s, %s, 2, %s", stv[k], rk[k], stv[k])
        a("ds_write2st64_b32 %s, %s, %s offset0:%d offset1:%d", stv[k], ent[2 * k], ent[2 * k + 1], L_S // 256, L_E // 256)
    a("s_branch K2_R7")
    a.label("K2_G2")
    a("s_cmp_eq_u32 %s, 0", sfirst)
    a("s_cbranch_scc1 K2_R7")
    a("s_mov_b32 %s, 0", sfirst)
    a("s_waitcnt vmcnt(0)")
    gemm(1)
    a.label("K2_R7")
    a("s_mov_b64 exec, -1")
    a("s_lshr_b32 %s, %s, 3", s0, sU)
    a("s_and_b32 %s, %s, 7", s1, sU)
    a("s_mul_i32 %s, %s, %s", su0, s0, sw)
    a("s_min_u32 %s, %s, %s", s2_, s1, sw)
    a("s_add_u32 %s, %s, %s", su0, su0, s2_)
    a("s_cmp_lt_u32 %s, %s", sw, s1)
    a("s_addc_u32 %s, %s, 0", snu, s0)
    a("v_add_lshl_u32 %s, %s, %s, 6", t0, lane, su0)
    a("v_add_u32 %s, %d, %s", t0, L_E, t0)
    a("s_lshl_b32 m0, %s, 6", su0)
    a("s_waitcnt vmcnt(0) lgkmcnt(0)")
    a("s_barrier")
    ts.stamp(4)

    def stageA0():
        a("ds_read_addtid_b32 %s offset:%d", bS, L_S)
        a("ds_read_addtid_b32 %s offset:%d", bE, L_E)

    def stageA1(x0):
        a("v_dot2_f32_bf16 %s, %s, %s, %s", x0, bS, sdot, posc)
        a("v_lshlrev_b32_sdwa %s, 3, %s " + SDWA, bP, bE, "BYTE_0")
        a("v_cmp_gt_u32 vcc, %s, %s", hex(DUMMY_S), bS)
        a("ds_read_b96 %s, %s offset:%d", pdst.sub(0, 3), bP, L_POS)
        a("buffer_load_dwordx3 %s, %s, %s, 0 offen", psrc.sub(0, 3), x0, rPOS)
        a("s_mov_b64 %s, vcc", sval)

    def stageB():
        x0, x1, x2, x3, row = T[0], T[1], T[2], T[3], T.sub(4, 4)
        for o in (1024, 2048, 1024 + PS, 2048 + PS):
            a("ds_write_b128 %s, %s offset:%d", tb16, zero, o)
        for c in range(3):
            a("v_sub_f32 %s, %s, %s", pdst[c], pdst[c], psrc[c])
        a("v_cvt_pk_bf16_f32 %s, %s, %s", x0, pdst[0], pdst[1])
        a("v_cvt_pk_bf16_f32 %s, %s, 0", x1, pdst[2])
        a("v_add_u32_sdwa %s, %s, %s " + SDWA, x3, tb32, bE, "BYTE_1")
        if OPT["exactd"]:
            a("v_lshlrev_b32 %s, 16, %s", pdst[0], x0)
            a("v_and_b32 %s, 0xffff0000, %s", pdst[1], x0)
            a("v_lshlrev_b32 %s, 16, %s", pdst[2], x1)
            for c in range(3):
                a("v_mul_f32 %s, %s, %s", pdst[c], pdst[c], pdst[c])
            a("v_cvt_pk_bf16_f32 %s, %s, %s", pdst[0], pdst[0], pdst[1])
            a("v_cvt_pk_bf16_f32 %s, %s, 0", pdst[2], pdst[2])
            a("s_mov_b32 %s, 0x3f803f80", s4)
            a("v_dot2_f32_bf16 %s, %s, %s, 0", x2, pdst[2], s4)
            a("v_dot2_f32_bf16 %s, %s, %s, %s", x2, pdst[0], s4, x2)
        else:
            a("v_dot2_f32_bf16 %s, %s, %s, 0", x2, x1, x1)
            a("v_dot2_f32_bf16 %s, %s, %s, %s", x2, x0, x0, x2)
        a("v_lshlrev_b64 %s, %s, %s", row.sub(0, 2), bP, c64)
        a("s_mov_b64 exec, %s", sval)
        a("ds_write_b16 %s, %s", x3, one)
        a("ds_write_b16 %s, %s offset:4", x3, x0)
        a("ds_write_b16_d16_hi %s, %s offset:%d", x3, x0, PS)
        a("ds_write_b16 %s, %s offset:%d", x3, x1, PS + 4)
        a("s_mov_b64 exec, -1")
        a("v_cvt_pk_bf16_f32 %s, %s, %s", row[2], x2, bE)
        a("v_cvt_pk_bf16_f32 %s, %s, %s", row[3], x2, bE)
        a("ds_write_b128 %s, %s", tb16, row)

    def loadAp(par):
        a("ds_read_addtid_b32 %s offset:%d", Bop[0][par], L_AT)
        a("ds_read_addtid_b32 %s offset:%d", Bop[1][par], L_AT + 256)

    def gld(xy, r):
        if "nogld" in X:
            a("s_nop 0")
            return
        a("buffer_load_dword %s, %s, %s, 0 offen offset:%d", ld[xy][r], adr[r], rBP, 128 * xy)

    def dmaWh2():
        a("s_mul_i32 %s, %s, %d", s1, sw, RS)
        a("s_add_u32 m0, %s, %d", s1, L_RING)
        a("s_lshl_b32 %s, %s, 12", s1, sw)
        a("s_add_u32 %s, %s, %s", s1, s1, hex(WS_WF + 65536))
        a("v_lshlrev_b32 %s, 4, %s", t0, lane)
        a("s_waitcnt lgkmcnt(0)")
        for i in range(4):
            a("buffer_load_dwordx4 %s, %s, %s offen offset:%d lds", t0, rWS, s1, 1024 * i)

    def rng(f, xy, r0, r1):
        for r in range(r0, r1):
            f(xy, r)

    ea, eb = T[8], T.sub(10, 2)
    a("ds_read_addtid_b32 %s offset:%d", aA[0], L_S)
    stageA0()
    a("ds_read_b32 %s, %s", ea, t0)
    a("ds_read2_b32 %s, %s offset0:15 offset1:16", eb, t0)
    a("s_waitcnt lgkmcnt(4)")
    a(MF8, adr, aA, aB, "0")
    a("ds_read_addtid_b32 %s offset:%d", aA[0], L_S + 64)
    a("s_waitcnt lgkmcnt(3)")
    stageA1(t1)
    a("s_sub_u32 %s, %s, 1", s4, snu)
    a("s_mov_b32 %s, 0", su)
    a("s_mov_b32 %s, -1", sflu)
    a("s_mov_b32 %s, 0", sret)
    rng(gld, 0, 0, 8)
    rng(gld, 1, 0, 8)
    a("s_waitcnt lgkmcnt(0)")
    a(MF8, adr, aA, aB, "0")
    a("v_and_b32 %s, 0xfc, %s", ea, ea)
    a("v_and_b32 %s, 0xfc, %s", eb[1], eb[1])
    a("v_readfirstlane_b32 %s, %s", spa, ea)
    a("v_readlane_b32 %s, %s, %s", sql, eb[0], s4)
    a("v_readlane_b32 %s, %s, %s", sshr, eb[1], s4)
    a("v_cmp_ne_u32 vcc, %s, %s", ea, eb[1])
    for b in range(4):
        a(MF8, Q[b], zero.sub(0, 2), zero.sub(0, 2), "0")
    a(MF8, e[1], zero.sub(0, 2), zero.sub(0, 2), "0")
    a("s_lshl_b32 %s, vcc_lo, 1", sinc)
    a("s_lshr_b32 %s, %s, 2", spa, spa)
    a("s_add_u32 %s, %s, 1", s0, spa)
    a("s_and_b32 %s, %s, -2", s0, s0)
    a("s_lshl_b32 m0, %s, 9", s0)
    a("s_or_b32 %s, %s, 1", s0, spa)
    loadAp(0)
    a("s_lshl_b32 m0, %s, 9", s0)
    a("s_bfe_u32 %s, %s, 0x50003", sql, sql)
    loadAp(1)
    a("s_lshr_b32 %s, %s, 3", sshr, sshr)
    a("s_cmp_eq_u32 %s, %s", sshr, sql)
    a("s_cselect_b32 %s, 1, 0", sshr)
    a("s_cmp_eq_u32 %s, 7", sw)
    a("s_cselect_b32 %s, 0, %s", sshr, sshr)
    a("s_mov_b32 %s, %s", srmw, srnd)
    for i in range(4):
        a("v_mov_b32 %s, 0", S4[i])
    a("s_lshl_b32 %s, %s, 6", s0, su0)
    a("s_add_u32 m0, %s, 256", s0)
    a("s_waitcnt vmcnt(16)")
    stageB()
    a("ds_read_b128 %s, %s", oh, bOH)
    stageA0()
    a("s_waitcnt lgkmcnt(2)")
    a(MF16, y[0], oh, Bop[0], "0")
    a("s_waitcnt vmcnt(8)")
    a(SMF, y[0], sel, ld[0], isel)
    rng(gld, 0, 0, 8)
    a("s_waitcnt lgkmcnt(0)")
    a("s_nop 1")
    ts.stamp(5)

    EXP = lambda xy, r: a("v_exp_f32 %s, -%s", e[xy][r], y[xy][r])
    RCP = lambda xy, r: a("v_rcp_f32 %s, %s", e[xy][r], e[xy][r])
    SEG = lambda b: a(SMF, Q[b], S4, e[b >> 1].sub(8 * (b & 1), 8), iseg)

    def MUL(xy):
        for r in range(0, 16, 2):
            a("v_pk_mul_f32 %s, %s, %s", e[xy].sub(r, 2), e[xy].sub(r, 2), y[xy].sub(r, 2))

    def half(xy, F):
        a(MF16, y[xy], oh, Bop[xy], "0")
        rng(F, 1 - xy, 0, 4)
        a("s_waitcnt vmcnt(8)")
        a(SMF, y[xy], sel, ld[xy], isel)
        rng(gld, xy, 0, 4)
        rng(F, 1 - xy, 4, 8)
        SEG(2 * xy)
        rng(gld, xy, 4, 8)
        rng(F, 1 - xy, 8, 12)
        SEG(2 * xy + 1)

    a(".p2align 6")
    a.label("K2_LOOP")
    half(1, EXP)
    a("s_and_b32 %s, %s, 3", s0, su)
    a("s_lshl_b32 %s, %s, 9", s0, s0)
    a("s_add_u32 %s, %s, 1", su, su)
    a("s_and_b32 %s, %s, 3", s3, su)
    a("s_lshl_b32 %s, %s, 8", s1, s3)
    a("v_add_u32 %s, %s, %s", pS4, s0, bS4)
    a("v_add_u32 %s, %s, %s", pOH, s1, bOH)
    rng(EXP, 0, 12, 16)
    a("s_add_u32 %s, %s, 1", s0, su)
    a("s_add_u32 %s, %s, %s", s1, s0, su0)
    a("s_cmp_lt_u32 %s, %s", s0, snu)
    a("s_cselect_b32 %s, %s, %s", s1, s1, sU)
    a("s_lshl_b32 m0, %s, 6", s1)
    rng(EXP, 1, 0, 2)
    a(MF8, e[0], ones, ones, e[0])
    a("ds_read_addtid_b32 %s offset:%d", aA[0], L_S)
    a("ds_read_b64_tr_b16 %s, %s", S4.sub(0, 2), pS4)
    a("ds_read_b64_tr_b16 %s, %s offset:128", S4.sub(2, 2), pS4)
    a("s_cmp_eq_u32 %s, %s", su, snu)
    a("s_cbranch_scc1 K2_LAST")
    a("s_cmp_le_u32 %s, 1", s3)
    a("s_cbranch_scc1 K2_BATCH" if "nobt" not in X else "s_nop 0")
    a.label("K2_L1")
    a("s_bitcmp1_b32 %s, %s", sinc, su)
    a("s_cbranch_scc1 K2_INC" if "noinc" not in X else "s_nop 0")
    a.label("K2_L2")
    a("ds_read_b128 %s, %s", oh, pOH)
    rng(EXP, 1, 2, 16)
    rng(RCP, 0, 0, 2)
    a(MF8, e[1], ones, ones, e[1])
    rng(RCP, 0, 2, 6)
    a("s_waitcnt lgkmcnt(0)")
    a(MF8, adr, aA, aB, "0")
    rng(RCP, 0, 6, 16)
    MUL(0)
    a("s_cmp_eq_u32 %s, %s", su, sflu)
    a("s_cbranch_scc1 K2_FLUSH")
    a.label("K2_L3")
    half(0, RCP)
    a("s_cmp_lt_u32 %s, %s", su, snu)
    rng(RCP, 1, 12, 16)
    MUL(1)
    a("s_cbranch_scc1 K2_LOOP")
    a("s_lshr_b32 %s, %s, 1", sfq, spa)
    SEG(2)
    SEG(3)
    a("s_mov_b32 %s, 1", sret)
    a("s_nop 7")
    a("s_cmp_lt_u32 %s, %s", sfq, sql)
    a("s_cbranch_scc1 K2_FLUSH")
    a.label("K2_D1")
    a("s_mov_b32 %s, %s", sfq, sql)
    a("s_mov_b32 %s, 2", sret)
    a("s_cmp_eq_u32 %s, 0", sshr)
    a("s_cbranch_scc1 K2_FLUSH")
    a("s_mov_b32 %s, 1", srmw)
    a.label("K2_D2")
    a("ds_read_b32 %s, %s offset:%d", t0, vflag, L_FLAG + 4)
    a("s_waitcnt lgkmcnt(0)")
    a("v_readfirstlane_b32 %s, %s", s0, t0)
    a("s_cmp_eq_u32 %s, 0", s0)
    a("s_cbranch_scc1 K2_D2")
    a.label("K2_FLUSH")
    fa, tt, Rm = T[20], T.sub(0, 6), T.sub(12, 7)
    offs = [nl * 272 + xy * 128 for nl in range(2) for xy in range(2)] + [528 + c * 128 for c in range(3)]
    a("s_mul_i32 %s, %s, %d", s0, sfq, 2 * PB)
    a("v_add_u32 %s, %s, %s", fa, s0, fbase)
    a("s_cmp_eq_u32 %s, 0", srmw)
    a("s_cbranch_scc1 K2_FL0")
    for i in range(7):
        a("ds_read_b32 %s, %s offset:%d", Rm[i], fa, offs[i])
    a.label("K2_FL0")
    a("s_bitcmp1_b32 %s, 0", sfq)
    a("s_cbranch_scc1 K2_FLP1")
    for p in range(2):
        o = 8 * p
        a.label("K2_FLP%d" % p)
        for b in range(4):
            for c in range(3):
                q = Q[b].sub(o + 2 + 2 * c, 2)
                if b == 0:
                    a("v_pk_mul_f32 %s, %s, %s op_sel_hi:[1,0]", tt.sub(2 * c, 2), q, WX.sub(0, 2))
                else:
                    a("v_pk_fma_f32 %s, %s, %s, %s op_sel:[0,%d,0] op_sel_hi:[1,%d,1]", tt.sub(2 * c, 2), q, WX.sub(b & 2, 2),
                      tt.sub(2 * c, 2), b & 1, b & 1)
        a("s_cmp_eq_u32 %s, 0", srmw)
        a("s_cbranch_scc1 K2_FLN%d", p)
        a("s_waitcnt lgkmcnt(0)")
        for nl in range(2):
            for xy in range(2):
                for lh in range(2):
                    q = Q[2 * xy + lh][o + nl]
                    a("v_dot2_f32_bf16 %s, %s, %s, %s", q, Rm[2 * nl + xy], shi if lh else slo, q)
        for c in range(3):
            for nl in range(2):
                a("v_dot2_f32_bf16 %s, %s, %s, %s", tt[2 * c + nl], Rm[4 + c], shi if nl else slo, tt[2 * c + nl])
        a.label("K2_FLN%d" % p)
        ZQ = lambda b, k: a("v_mfma_f32_16x16x16_bf16 %s, %s, %s, 0", Q[b].sub(o + 4 * k, 4), zero.sub(0, 2), zero.sub(0, 2))
        for xy in range(2):
            ZQ(2 * xy, 1)
            for nl in range(2):
                x = T[6 + 2 * nl + xy]
                a("v_cvt_pk_bf16_f32 %s, %s, %s", x, Q[2 * xy][o + nl], Q[2 * xy + 1][o + nl])
                a("ds_write_b32 %s, %s offset:%d", fa, x, offs[2 * nl + xy])
            ZQ(2 * xy + 1, 1)
        for c in range(3):
            a("v_cvt_pk_bf16_f32 %s, %s, %s", tt[2 * c], tt[2 * c], tt[2 * c + 1])
            ZQ(c, 0)
            a("ds_write_b32 %s, %s offset:%d", fa, tt[2 * c], offs[4 + c])
        a("ds_write_b32 %s, %s offset:%d", vflag, one, L_FLAG)
        a("s_cmp_eq_u32 %s, 0", sret)
        ZQ(3, 0)
        a("s_cbranch_scc1 K2_L3")
        if p == 0:
            a("s_branch K2_FLR")
    a.label("K2_FLR")
    a("s_cmp_eq_u32 %s, 1", sret)
    a("s_cbranch_scc1 K2_D1")
    a("s_cmp_eq_u32 %s, 0", smore)
    a("s_cbranch_scc1 K2_FIN")
    a("s_add_u32 %s, %s, %s", sJ, sJ, sq)
    a("s_mov_b32 %s, %d", sq, QF)
    a("s_mov_b32 %s, 1", srnd)
    a("s_branch K2_AGAIN")
    a.label("K2_RETRY")
    a("s_mov_b32 %s, %d", sq, QS)
    a.label("K2_AGAIN")
    a("s_waitcnt vmcnt(0) lgkmcnt(0)")
    a("s_barrier")
    a("s_cmp_lt_u32 %s, 4", sw)
    a("s_cbranch_scc1 K2_GROUND")
    a("s_and_b32 %s, s2, 7", s0)
    a("s_lshr_b32 %s, s2, 3", s1)
    a("s_lshl_b32 %s, %s, 15", s0, s0)
    a("s_lshl_b32 %s, %s, 2", s1, s1)
    a("s_add_u32 %s, %s, %s", s0, s0, s1)
    a("s_add_u32 %s, %s, %s", s0, s0, hex(WS_OFF))
    a("v_and_b32 %s, 255, %s", seg, tid)
    a("v_lshlrev_b32 %s, 7, %s", t0, seg)
    a("buffer_load_dword %s, %s, %s, %s offen", voff, t0, rWS, s0)
    a("s_waitcnt vmcnt(0)")
    a("s_branch K2_ROUND")

    a.label("K2_LAST")
    a("s_cmp_lg_u32 %s, 0", smore)
    a("s_cbranch_scc1 K2_L2")
    dmaWh2()
    a("s_branch K2_L2")
    a.label("K2_BATCH")
    a("s_cmp_eq_u32 %s, 1", s3)
    a("s_cbranch_scc1 K2_BATCH1")
    a("s_add_u32 %s, %s, %s", s0, su, su0)
    a("s_lshl_b32 %s, %s, 6", s0, s0)
    a("s_add_u32 m0, %s, 256", s0)
    if OPT["prio"]:
        a("s_setprio 0")
    stageB()
    stageA0()
    a("s_branch K2_L1")
    a.label("K2_BATCH1")
    if OPT["prio"]:
        a("s_cmp_lt_u32 %s, 4", sw)
        a("s_cbranch_scc1 K2_BATCH2")
        a("s_setprio 1")
        a.label("K2_BATCH2")
    a("s_add_u32 %s, %s, 3", s0, su)
    a("s_cmp_ge_u32 %s, %s", s0, snu)
    a("s_cbranch_scc1 K2_L1")
    stageA1(t0)
    a("s_branch K2_L1")
    a.label("K2_INC")
    a("s_add_u32 %s, %s, 2", s0, spa)
    a("s_lshl_b32 m0, %s, 9", s0)
    a("s_add_u32 %s, %s, 1", spa, spa)
    a("s_bitcmp1_b32 %s, 0", spa)
    a("s_cbranch_scc1 K2_INC1")
    loadAp(1)
    a("s_lshr_b32 %s, %s, 1", sfq, spa)
    a("s_sub_u32 %s, %s, 1", sfq, sfq)
    a("s_add_u32 %s, %s, %d", sflu, su, 100 if "nofl" in X else 1)
    a("s_branch K2_L2")
    a.label("K2_INC1")
    loadAp(0)
    a("s_branch K2_L2")

    a.label("K2_FIN")
    ts.stamp(6)
    if OPT["prio"]:
        a("s_setprio 0")
    rO, rP = rBP, rPOS
    fac = [y[0], y[1]]
    g = [e[0].sub(0, 8), e[0].sub(8, 8)]
    hr = e[1]
    ga, ra, rb, so, pa, pp = T[4], T[5], T[6], T[7], T[8], T[9]
    col = T[10]
    a("s_lshr_b32 %s, %s, 1", s2_, sw)
    a("s_and_b32 %s, %s, 1", s3, sw)
    a("v_and_b32 %s, 31, %s", col, lane)
    a("v_lshlrev_b32 %s, 2, %s", so, col)
    a("v_lshl_add_u32 %s, %s, 10, %s", so, vh, so)
    a("s_mul_i32 %s, %s, 24", s4, s2_)
    a("s_add_u32 %s, %s, %s", s0, s4, snb)
    a("s_lshl_b32 %s, %s, 1", s0, s0)
    a("s_add_u32 %s, %s, %s", s0, s0, s3)
    a("s_lshl_b32 %s, %s, 7", su0, s0)
    a("s_add_u32 %s, %s, 4096", snu, su0)
    rowof = lambda r: 8 * (r // 4) + r % 4
    for r in range(14):
        a("buffer_load_dword %s, %s, %s, %s offen offset:%d", hr[r], so, rH, snu if rowof(r) >= 16 else su0, (rowof(r) % 16) * 256)
    a("s_add_u32 %s, %s, %s", s0, s4, s3)
    a("s_lshl_b32 %s, %s, 8", s0, s0)
    a("s_add_u32 %s, %s, %d", s0, s0, L_GT)
    a("v_add_u32 %s, %s, %s", ga, s0, so)
    a("v_add_u32 %s, 128, %s", t3, ga)
    for par in range(2):
        for ip in range(3):
            a("ds_read2st64_b32 %s, %s offset0:%d offset1:%d", g[par].sub(2 * ip, 2), t3 if par else ga, 8 * ip, 8 * ip + 2)
        a("ds_read_b32 %s, %s offset:%d", g[par][6], t3 if par else ga, 24 * 256)
    a("v_add_u32 %s, %s, %s", t0, s4, col)
    a("v_min_u32 %s, 97, %s", t0, t0)
    a("v_lshrrev_b32 %s, 1, %s", t1, t0)
    a("v_and_b32 %s, 1, %s", t0, t0)
    a("v_mul_u32_u24 %s, %d, %s", t1, PB, t1)
    a("v_mul_u32_u24 %s, 272, %s", t0, t0)
    a("v_lshlrev_b32 %s, 4, %s", t2, vh)
    a("v_add_u32 %s, %d, %s", t2, L_MACC, t2)
    a("v_add3_u32 %s, %s, %s, %s", ra, t0, t1, t2)
    a("s_mul_i32 %s, %s, %d", s0, s3, 4 * RS)
    a("s_add_u32 %s, %s, %d", s0, s0, L_RING)
    a("v_lshl_add_u32 %s, %s, 4, %s", rb, lane, s0)
    a("s_lshl_b32 %s, %s, 5", s0, sw)
    a("v_add_u32 %s, %s, %s", t0, s0, col)
    a("v_mul_u32_u24 %s, 171, %s", t1, t0)
    a("v_lshrrev_b32 %s, 9, %s", t1, t1)
    a("v_cmp_gt_u32 vcc, 147, %s", t0)
    a("v_mad_i32_i24 %s, %s, -3, %s", t0, t1, t0)
    a("s_mov_b32 %s, vcc_lo", sval[0])
    a("s_mov_b32 %s, 0", sval[1])
    a("v_mul_u32_u24 %s, %d, %s", pa, PB, t1)
    a("v_lshl_add_u32 %s, %s, 7, %s", pa, t0, pa)
    a("v_add_u32 %s, %s, %s", pa, pa, t2)
    a("v_lshlrev_b32 %s, 5, %s", t3, t1)
    a("v_lshl_add_u32 %s, %s, 2, %s", t3, t0, t3)
    px = psrc.sub(0, 2)
    a("v_add_u32 %s, %d, %s", t3, L_POS, t3)
    a("ds_read2_b32 %s, %s offset0:0 offset1:4", px, t3)
    a("v_mul_u32_u24 %s, 12, %s", pp, t1)
    a("v_lshl_add_u32 %s, %s, 1, %s", pp, t0, pp)
    a("v_lshlrev_b32 %s, 4, %s", t0, col)
    a("v_cmp_gt_u32 vcc, 2, %s", col)
    a("v_lshlrev_b32 %s, %s, %s", t0, t0, one)
    srd(a, rO, P["out"], 0, N * 256)
    for i in range(4):
        a("v_cndmask_b32 %s, 0, %s, vcc", S4[i], t0)
    srd(a, rP, P["out"], N * 256, N * 6)
    stw, str_, stg = T[11], T[12], T[13]
    a("s_lshl_b32 %s, %s, 12", s0, sw)
    a("v_lshl_add_u32 %s, %s, 2, %s", stw, col, s0)
    a("v_lshl_add_u32 %s, %s, 9, %s", stw, vh, stw)
    a("v_lshl_add_u32 %s, %s, 4, %s", str_, lane, s0)
    a("v_lshrrev_b32 %s, 3, %s", t0, lane)
    a("v_and_b32 %s, 7, %s", t1, lane)
    a("v_lshlrev_b32 %s, 4, %s", t1, t1)
    a("v_lshl_add_u32 %s, %s, 8, %s", stg, t0, t1)
    a("s_waitcnt lgkmcnt(0)")
    for par in range(2):
        for i in range(7):
            a("v_lshlrev_b32 %s, 16, %s", fac[par][2 * i], g[par][i])
            a("v_and_b32 %s, 0xffff0000, %s", fac[par][2 * i + 1], g[par][i])
    a("s_waitcnt vmcnt(14)")
    a("s_barrier")
    Af = lambda ks: ldall.sub(4 * (ks & 3), 4)
    Bf = lambda ks, par: Qall.sub(8 * ks + 4 * par, 4)

    def rdF(ks):
        a("ds_read_b128 %s, %s offset:%d", Af(ks), ra, 32 * ks)
        for par in range(2):
            a("ds_read_b128 %s, %s offset:%d", Bf(ks, par), rb, (2 * par + ks // 4) * RS + (ks % 4) * 1024)
    for ks in range(3):
        rdF(ks)
    for ks in range(8):
        if ks + 3 < 8:
            rdF(ks + 3)
        a("s_waitcnt lgkmcnt(%d)", 3 * min(3, 7 - ks))
        for par in range(2):
            a(MF16, fac[par], Af(ks), Bf(ks, par), fac[par])
    a("s_mov_b32 %s, %s", s1, hex(f32(1 + DELTA)))
    a("s_mov_b32 %s, %s", sx[0], hex(LOG2E))
    a("s_mov_b32 %s, %s", sx[1], hex(LOG2E))
    a("s_cmp_gt_u32 %s, 4", sw)
    a("s_cbranch_scc1 K2_F1")
    for ks in range(4):
        a("ds_read_b128 %s, %s offset:%d", Af(ks), pa, 528 + 32 * ks)
    for ks in range(4):
        a("s_waitcnt lgkmcnt(%d)", 3 - ks)
        a(MF16, adr, S4, Af(ks), adr if ks else "0")
    a.label("K2_F1")
    ee = [Q[0], Q[1]]
    hh = [Q[2], Q[3]]

    def fin(r0, r1):
        if r0 == 0:
            a("s_waitcnt vmcnt(0)")
        for r in range(r0, r1):
            a("v_lshlrev_b32 %s, 16, %s", hh[0][r], hr[r])
            a("v_and_b32 %s, 0xffff0000, %s", hh[1][r], hr[r])
        for par in range(2):
            for r in range(r0, r1):
                a("v_mul_f32 %s, %s, %s", fac[par][r], s1, fac[par][r])
        for par in range(2):
            for r in range(r0, r1):
                a("v_exp_f32 %s, -%s", ee[par][r], fac[par][r])
        a("s_nop 0")
        for par in range(2):
            for r in range(r0, r1, 2):
                a("v_pk_fma_f32 %s, %s, %s, %s", ee[par].sub(r, 2), ee[par].sub(r, 2), sx, sx)
        for r in range(r0, r1, 2):
            for par in range(2):
                a("v_rcp_f32 %s, %s", ee[par][r], ee[par][r])
                a("v_rcp_f32 %s, %s", ee[par][r + 1], ee[par][r + 1])
            a("s_nop 0")
            for par in range(2):
                a("v_pk_fma_f32 %s, %s, %s, %s", fac[par].sub(r, 2), fac[par].sub(r, 2), ee[par].sub(r, 2), hh[par].sub(r, 2))
            for q in (r, r + 1):
                a("v_cvt_pk_bf16_f32 %s, %s, %s", fac[0][q], fac[0][q], fac[1][q])
                a("ds_write_b32 %s, %s offset:%d", stw, fac[0][q], rowof(q) * 128)
            if r % 4 == 2 or r == 12:
                i = r // 4
                a("ds_read_b128 %s, %s offset:%d", e[0].sub(4 * i, 4), str_, 1024 * i)
                if 0 < i < 3:
                    a("s_waitcnt lgkmcnt(5)")
                    sto(i - 1)

    def sto(i):
        a("buffer_store_dwordx4 %s, %s, %s, %s offen offset:%d %s", e[0].sub(4 * i, 4), stg, rO, snu if i >= 2 else su0,
          (i & 1) * 2048, OPT["st2"])
    fin(0, 12)
    a("s_waitcnt lgkmcnt(0)")
    sto(2)
    a("s_cmp_lg_u32 %s, 3", s2_)
    a("s_cbranch_scc1 K2_F2")
    fin(12, 14)
    a("s_mov_b64 exec, 0xffff")
    a("s_waitcnt lgkmcnt(0)")
    sto(3)
    a.label("K2_F2")
    a("s_cmp_gt_u32 %s, 4", sw)
    a("s_cbranch_scc1 K2_F3")
    a("v_add_f32 %s, %s, %s", px[0], px[0], adr[0])
    a("v_add_f32 %s, %s, %s", px[1], px[1], adr[1])
    a("v_cvt_pk_bf16_f32 %s, %s, %s", px[0], px[0], px[1])
    a("s_mul_i32 %s, %s, 6", s0, snb)
    a("s_mov_b64 exec, %s", sval)
    a("buffer_store_short %s, %s, %s, %s offen %s", px[0], pp, rP, s0, OPT["st2"])
    a("buffer_store_short_d16_hi %s, %s, %s, %s offen offset:6 %s", px[0], pp, rP, s0, OPT["st2"])
    a.label("K2_F3")
    if OPT["ts"]:
        a("s_waitcnt vmcnt(0)")
        ts.stamp(7)
        ts.dump(P["ws"], sw, t0, t1)
    a.label("K2_END")
    a("s_endpgm")
    return V.hi, S.hi


def gen_probe(a):
    kern, first, cnt, idx, agg = OPT["probe"].split(",")
    kernel_head(a, "egnn_probe_kernel")
    a("s_cmp_ge_u32 s2, 1")
    a("s_cbranch_scc1 K3_END")
    a("s_load_dwordx2 s[4:5], s[0:1], 80")
    a("s_waitcnt lgkmcnt(0)")
    srd(a, R("s", 8, 4), R("s", 4, 2), WS_TS, 0x200000)
    a("v_lshlrev_b32 v1, 9, v0")
    for i in range(8):
        a("s_mov_b32 s3, %d", i * 64 * 512)
        a("buffer_load_dword v%d, v1, s[8:11], s3 offen", 8 + i)
    step = 64 if kern == "1" else 512
    a("v_mul_u32_u24 v1, %d, v0", step)
    for i in range(int(cnt)):
        a("s_mov_b32 s3, %d", int(kern) * 0x100000 + (int(first) + i * 64) * step + 4 * int(idx))
        a("buffer_load_dword v%d, v1, s[8:11], s3 offen", 16 + i)
    a("s_waitcnt vmcnt(0)")
    for i in range(1, 8):
        a("v_min_u32 v8, v8, v%d", 8 + i)
    for i in range(1, int(cnt)):
        a("v_%s_u32 v16, v16, v%d", agg, 16 + i)
    a("s_nop 1")
    a("v_readlane_b32 s12, v8, 0")
    a("v_readlane_b32 s13, v16, 0")
    for l in range(1, 64):
        a("v_readlane_b32 s14, v8, %d", l)
        a("v_readlane_b32 s15, v16, %d", l)
        a("s_min_u32 s12, s12, s14")
        a("s_%s_u32 s13, s13, s15", agg)
    a("s_sub_u32 s13, s13, s12")
    a("s_min_u32 s13, s13, 10000")
    a("s_lshl_b32 s13, s13, 4")
    a("s_memrealtime s[16:17]")
    a("s_waitcnt lgkmcnt(0)")
    a.label("K3_L")
    a("s_memrealtime s[18:19]")
    a("s_waitcnt lgkmcnt(0)")
    a("s_sub_u32 s14, s18, s16")
    a("s_cmp_lt_u32 s14, s13")
    a("s_cbranch_scc1 K3_L")
    a.label("K3_END")
    a("s_endpgm")


def descriptor(name, nv, ns):
    return """.p2align 6
.amdhsa_kernel %s
  .amdhsa_next_free_vgpr %d
  .amdhsa_next_free_sgpr %d
  .amdhsa_accum_offset %d
  .amdhsa_group_segment_fixed_size 0
  .amdhsa_kernarg_size 88
  .amdhsa_user_sgpr_count 2
  .amdhsa_user_sgpr_kernarg_segment_ptr 1
  .amdhsa_system_sgpr_workgroup_id_x 1
.end_amdhsa_kernel
""" % (name, nv, ns, (nv + 3) // 4 * 4)


def build():
    ref = open("standalone__cheap_equivariant_egnn__graph.s.ref").read().split("\n")
    head = [l for l in ref if l.startswith(";") and "@launch" not in l and "Override" not in l and "grid=ceil" not in l]
    head.append("; @launch kernel=egnn_part_kernel grid=(512,1,1) block=(512,1,1) lds=%d" % K1_LDS)
    head.append("; @launch kernel=egnn_main_kernel grid=(256,1,1) block=(512,1,1) lds=%d" % K2_LDS)
    a1, a2, a3 = Asm(), Asm(), Asm()
    if OPT["probe"]:
        head.append("; @launch kernel=egnn_probe_kernel grid=(1,1,1) block=(64,1,1) lds=0")
        gen_probe(a3)
    v1, s1 = gen_k1(a1)
    v2, s2 = gen_k2(a2)
    nb = 0
    for nm, x in (("k1", a1), ("k2", a2)):
        bad, n = check_hazards(x.lines)
        nb += bad
        print("%s: %d instructions, %d hazards" % (nm, n, bad), file=sys.stderr)
    print("k1 v%d s%d lds %d; k2 v%d s%d lds %d" % (v1, s1, K1_LDS, v2, s2, K2_LDS), file=sys.stderr)
    txt = "\n".join(head) + "\n.amdgcn_target \"amdgcn-amd-amdhsa--gfx950\"\n.text\n" + a1.text() + a2.text() + a3.text()
    txt += ".section .rodata,\"a\"\n" + descriptor("egnn_part_kernel", v1, s1) + descriptor("egnn_main_kernel", v2, s2)
    if OPT["probe"]:
        txt += descriptor("egnn_probe_kernel", 64, 32)
    return txt, nb


if __name__ == "__main__":
    out = "standalone__cheap_equivariant_egnn__graph.s"
    for arg in sys.argv[1:]:
        if "=" in arg:
            k, v = arg.split("=", 1)
            if k == "out":
                out = v
            else:
                assert k in OPT, k
                OPT[k] = int(v) if isinstance(OPT[k], int) else v.replace("_", " ")
    txt, nb = build()
    open(out, "w").write(txt)
    sys.exit(1 if nb else 0)
```

```python
import struct, sys, os
sys.path.insert(0, os.path.dirname(os.path.abspath(__file__)))
from asmlib import Asm, Regs, R, check_hazards

N, E = 25000, 400000
BN, CH = 98, 1564
CHB = CH * 8
BIAS = 0x0C000000
WS_BP = BIAS
POS_BASE = 0x00800000
WS_ENT = 0x0D000000
WS_OFF = 0x0D400000
OFS = 4096 + 256
WS_WF = 0x0D480000
WS_W3 = WS_WF + 98304
WS_WX = WS_W3 + 1024
WS_TS = 0x0E000000
WS_SIZE = 268435456
OOR = 0x40000000
LOG2E = 0x3FB8AA3B
LN2 = 0x3F317218
CAP = 2048
DUMMY_S = 0x437F0000

DELTA = 0.0027
OPT = dict(cpf=0, pf=0, probe="", x="", prio=8, ts=0, exactd=0, k1_gemm_first=0, st1="sc1", st2="sc1")

SDWA = "dst_sel:DWORD dst_unused:UNUSED_PAD src0_sel:DWORD src1_sel:%s"
MF16 = "v_mfma_f32_32x32x16_bf16 %s, %s, %s, %s"
MF8 = "v_mfma_f32_32x32x8_bf16 %s, %s, %s, %s"
SMF = "v_smfmac_f32_32x32x32_bf16 %s, %s, %s, %s"


def f32(x):
    return struct.unpack("<I", struct.pack("<f", x))[0]


def srd(a, d, base, off, size):
    if isinstance(off, int) and off == 0:
        a("s_mov_b32 %s, %s", d[0], base[0])
        a("s_mov_b32 %s, %s", d[1], base[1])
    else:
        a("s_add_u32 %s, %s, %s", d[0], base[0], hex(off) if isinstance(off, int) else off)
        a("s_addc_u32 %s, %s, 0", d[1], base[1])
    a("s_mov_b32 %s, %s", d[2], hex(size))
    a("s_mov_b32 %s, 0x20000", d[3])


def wave_scan(a, t):
    for sh in (1, 2, 4, 8):
        a("s_nop 1")
        a("v_add_u32_dpp %s, %s, %s row_shr:%d row_mask:0xf bank_mask:0xf", t, t, t, sh)
    a("s_nop 1")
    a("v_add_u32_dpp %s, %s, %s row_bcast:15 row_mask:0xa bank_mask:0xf", t, t, t)
    a("s_nop 1")
    a("v_add_u32_dpp %s, %s, %s row_bcast:31 row_mask:0xc bank_mask:0xf", t, t, t)


class TS:
    def __init__(self, a, S, n, kern):
        self.a, self.on, self.kern = a, OPT["ts"], kern
        if self.on:
            self.r = S.get(2 * n, 2)
            self.srd = S.get(4, 4)
            self.tmp = S.get(1)
            self.n = n

    def init(self):
        if self.on:
            for i in range(self.n):
                self.a("s_mov_b64 %s, 0", self.r.sub(2 * i, 2))

    def stamp(self, i):
        if self.on:
            self.a("s_memrealtime %s" if self.on == 1 else "s_memtime %s", self.r.sub(2 * i, 2))
            self.a("s_waitcnt lgkmcnt(0)")

    def dump(self, ws, swave, v0, v1):
        if not self.on:
            return
        a = self.a
        srd(a, self.srd, ws, WS_TS + self.kern * 0x100000, 0x100000)
        a("s_mov_b64 exec, -1")
        a("s_lshl_b32 %s, s2, 3", self.tmp)
        a("s_add_u32 %s, %s, %s", self.tmp, self.tmp, swave)
        a("s_lshl_b32 %s, %s, 6", self.tmp, self.tmp)
        a("v_mov_b32 %s, 0", v0)
        for i in range(self.n):
            a("v_mov_b32 %s, %s", v1, self.r[2 * i])
            a("buffer_store_dword %s, %s, %s, %s offen offset:%d", v1, v0, self.srd, self.tmp, 4 * i)


def kernel_head(a, name):
    a(".globl %s", name)
    a(".p2align 8")
    a(".type %s,@function", name)
    a.label(name)


def code_prefetch(a, r, vtmp, vdst, first, last, shift):
    a("s_getpc_b64 %s", r.sub(0, 2))
    lab = "PF_%s_%s" % (first, len(a.lines))
    a.label(lab)
    a("s_add_u32 %s, %s, %s-%s", r[0], r[0], first, lab)
    a("s_addc_u32 %s, %s, 0", r[1], r[1])
    a("s_mov_b32 %s, %s-%s", r[2], last, first)
    a("s_mov_b32 %s, 0x20000", r[3])
    a("v_lshlrev_b32 %s, %d, v0", vtmp, shift)
    a("buffer_load_dword %s, %s, %s, 0 offen", vdst, vtmp, r)


def load_ptrs(a):
    a("s_load_dwordx16 s[4:19], s[0:1], 0")
    a("s_load_dwordx2 s[20:21], s[0:1], 64")
    a("s_load_dwordx2 s[22:23], s[0:1], 80")
    P = {}
    for i, n in enumerate(["h", "pos", "ea", "src", "dst", "we", "wx", "wh", "out", "ws"]):
        P[n] = R("s", 4 + 2 * i, 2)
    return P


K1_LW, K1_LH = 0, 128 * 320
K1_LDS = K1_LH + 128 * 272
K1_HIST, K1_START, K1_STAGE = 0, 1024, 2048


def gen_k1(a):
    S = Regs("s", 24, 96)
    V = Regs("v", 1, 128)
    kernel_head(a, "egnn_part_kernel")
    ts = TS(a, S, 8, 0)
    a("s_cmp_ge_u32 s2, 512")
    a("s_cbranch_scc1 K1_END")
    P = load_ptrs(a)
    ts.init()
    ts.stamp(0)
    tid = R("v", 0)
    lane, t0, t1 = V.get(), V.get(), V.get()
    sw, sc, s0, s1, s2_, s3 = (S.get() for _ in range(6))
    r0, r1, r2, r3, r4 = (S.get(4, 4) for _ in range(5))
    sv = S.get(2, 2)
    a("v_lshrrev_b32 %s, 6, %s", t0, tid)
    a("v_and_b32 %s, 63, %s", lane, tid)
    a("v_readfirstlane_b32 %s, %s", sw, t0)
    a("s_and_b32 %s, s2, 255", sc)
    a("s_cmp_ge_u32 s2, 256")
    a("s_waitcnt lgkmcnt(0)")
    a("s_cbranch_scc%d K1_GEMM", 0 if OPT["k1_gemm_first"] else 1)
    a("s_cmp_eq_u32 %s, 7", sw)
    a("s_cbranch_scc1 K1_PREP")
    m = V.mark()
    dst, src, ea = V.get(4), V.get(4), V.get(2)
    b4, rk, ent = V.get(4), V.get(4), V.get(8)
    cnt, st, z4 = V.get(4), V.get(4), V.get(4)
    off16, one = V.get(), V.get()
    srd(a, r0, P["dst"], 0, E * 4)
    srd(a, r1, P["src"], 0, E * 4)
    srd(a, r2, P["ea"], 0, E * 2)
    a("s_mul_i32 %s, %s, %d", s0, sc, CH * 4)
    a("s_lshr_b32 %s, %s, 1", s1, s0)
    a("v_lshlrev_b32 %s, 4, %s", off16, tid)
    a("v_lshlrev_b32 %s, 3, %s", t0, tid)
    a("buffer_load_dwordx4 %s, %s, %s, %s offen", dst, off16, r0, s0)
    a("buffer_load_dwordx4 %s, %s, %s, %s offen", src, off16, r1, s0)
    a("buffer_load_dwordx2 %s, %s, %s, %s offen", ea, t0, r2, s1)
    for i in range(4):
        a("v_mov_b32 %s, 0", z4[i])
    a("v_lshlrev_b32 %s, 4, %s", t1, lane)
    a("ds_write_b128 %s, %s offset:%d", t1, z4, K1_HIST)
    a("v_mov_b32 %s, 1", one)
    a("s_sub_u32 %s, %d, %s", s2_, E * 4, s0)
    a("s_min_u32 %s, %s, %d", s2_, s2_, CH * 4)
    a("v_cmp_gt_u32 %s, %s, %s", sv, s2_, off16)
    a("s_mul_i32 %s, %s, %d", s0, sc, CHB)
    a("s_add_u32 %s, %s, %s", s0, s0, hex(WS_ENT))
    srd(a, r3, P["ws"], s0, CHB)
    srd(a, r4, P["ws"], WS_OFF, 64 * OFS)
    a("s_mov_b32 %s, 42800", s0)
    a("s_mov_b32 %s, -49", s1)
    a("s_mov_b32 %s, 0xffff0000", s3)
    a("s_waitcnt lgkmcnt(0)")
    a("s_barrier")
    a("s_waitcnt vmcnt(2)")
    ts.stamp(1)
    for k in range(4):
        a("v_mul_u32_u24 %s, %s, %s", b4[k], s0, dst[k])
    for k in range(4):
        a("v_lshrrev_b32 %s, 22, %s", b4[k], b4[k])
    for k in range(4):
        a("v_lshlrev_b32 %s, 2, %s", b4[k], b4[k])
    a("s_mov_b64 exec, %s", sv)
    a("s_cbranch_execz K1_P1")
    for k in range(4):
        a("ds_add_rtn_u32 %s, %s, %s offset:%d", rk[k], b4[k], one, K1_HIST)
    a.label("K1_P1")
    a("s_mov_b64 exec, -1")
    for k in range(4):
        a("v_lshlrev_b32 %s, 1, %s", dst[k], dst[k])
        a("v_mad_i32_i24 %s, %s, %s, %s", dst[k], b4[k], s1, dst[k])
        a("v_and_b32 %s, 12, %s", st[k], dst[k])
        a("v_and_b32 %s, 14, %s", cnt[k], dst[k])
        a("v_add_u32 %s, %s, %s", st[k], st[k], cnt[k])
        a("v_lshl_or_b32 %s, %s, 8, %s", dst[k], st[k], dst[k])
    a("s_waitcnt lgkmcnt(0)")
    a("s_barrier")
    a("ds_read_b128 %s, %s offset:%d", cnt, t1, K1_HIST)
    a("s_waitcnt vmcnt(0)")
    for k in range(4):
        a("v_cvt_f32_ubyte0 %s, %s", ent[2 * k], src[k])
        a("v_or_b32 %s, 0x8000, %s", src[k], src[k])
        a("v_cvt_f32_ubyte1 %s, %s", src[k], src[k])
        a("v_cvt_pk_bf16_f32 %s, %s, %s", ent[2 * k], ent[2 * k], src[k])
        if k % 2 == 0:
            a("v_lshl_or_b32 %s, %s, 16, %s", ent[2 * k + 1], ea[k // 2], dst[k])
        else:
            a("v_and_or_b32 %s, %s, %s, %s", ent[2 * k + 1], ea[k // 2], s3, dst[k])
    a("s_waitcnt lgkmcnt(0)")
    a("v_add_u32 %s, %s, %s", st[2], cnt[0], cnt[1])
    a("v_add_u32 %s, %s, %s", st[3], st[2], cnt[2])
    a("v_add_u32 %s, %s, %s", st[1], st[3], cnt[3])
    a("v_mov_b32 %s, %s", t0, st[1])
    wave_scan(a, t0)
    a("v_sub_u32 %s, %s, %s", st[0], t0, st[1])
    a("v_add_u32 %s, %s, %s", st[1], st[0], cnt[0])
    a("v_add_u32 %s, %s, %s", st[2], st[0], st[2])
    a("v_add_u32 %s, %s, %s", st[3], st[0], st[3])
    a("ds_write_b128 %s, %s offset:%d", t1, st, K1_START)
    for k in range(4):
        a("ds_read_b32 %s, %s offset:%d", dst[k], b4[k], K1_START)
    a("s_cmp_lg_u32 %s, 0", sw)
    a("s_cbranch_scc1 K1_P2")
    for k in range(4):
        a("v_lshl_or_b32 %s, %s, 16, %s", cnt[k], cnt[k], st[k])
    a("v_mul_u32_u24 %s, %d, %s", t0, OFS, lane)
    a("s_lshl_b32 %s, %s, 4", s0, sc)
    a("buffer_store_dwordx4 %s, %s, %s, %s offen %s", cnt, t0, r4, s0, OPT["st1"])
    a.label("K1_P2")
    a("s_waitcnt lgkmcnt(0)")
    for k in range(4):
        a("v_add_lshl_u32 %s, %s, %s, 3", dst[k], dst[k], rk[k])
    a("s_mov_b64 exec, %s", sv)
    a("s_cbranch_execz K1_P3")
    for k in range(4):
        a("ds_write_b64 %s, %s offset:%d", dst[k], ent.sub(2 * k, 2), K1_STAGE)
    a.label("K1_P3")
    a("s_mov_b64 exec, -1")
    a("s_waitcnt lgkmcnt(0)")
    a("s_barrier")
    a("ds_read_b128 %s, %s offset:%d", dst, off16, K1_STAGE)
    a("ds_read_b128 %s, %s offset:%d", src, off16, K1_STAGE + 448 * 16)
    a("s_mov_b32 %s, %d", s0, 448 * 16)
    a("s_waitcnt lgkmcnt(1)")
    a("buffer_store_dwordx4 %s, %s, %s, 0 offen %s", dst, off16, r3, OPT["st1"])
    a("s_waitcnt lgkmcnt(0)")
    a("buffer_store_dwordx4 %s, %s, %s, %s offen %s", src, off16, r3, s0, OPT["st1"])
    ts.stamp(2)
    if OPT["ts"]:
        a("s_waitcnt vmcnt(0)")
        ts.stamp(3)
        ts.dump(P["ws"], sw, t0, t1)
    a("s_endpgm")

    V.reset(m)
    a.label("K1_PREP")
    pa, pb, w = V.get(4), V.get(4), V.get(8)
    col, kh, ad, ad2, ks, o16 = (V.get() for _ in range(6))
    srd(a, r0, P["pos"], 0, N * 6)
    srd(a, r1, P["ws"], POS_BASE + BIAS, N * 16)
    srd(a, r4, P["ws"], WS_WF, 98304 + 2048)
    if OPT["cpf"] & 2:
        a("v_mov_b32 v0, %s", lane)
        code_prefetch(a, r3, t0, ks, "K1_END", "K2_END", 7)
        a("s_mov_b32 %s, 8192", s0)
        a("buffer_load_dword %s, %s, %s, %s offen", ks, t0, r3, s0)
    a("s_mul_i32 %s, %s, %d", s0, sc, BN * 6)
    a("v_mul_u32_u24 %s, 6, %s", t0, lane)
    for j in range(3):
        a("buffer_load_ushort %s, %s, %s, %s offen offset:%d", pa[j], t0, r0, s0, 2 * j)
    for j in range(3):
        a("buffer_load_ushort %s, %s, %s, %s offen offset:%d", pb[j], t0, r0, s0, 384 + 2 * j)
    a("v_and_b32 %s, 31, %s", col, lane)
    a("v_lshrrev_b32 %s, 5, %s", kh, lane)
    a("v_lshlrev_b32 %s, 4, %s", o16, lane)
    a("v_mov_b32 %s, 0", pa[3])
    a("v_mov_b32 %s, 0", pb[3])
    a("s_cmp_ge_u32 %s, 96", sc)
    a("s_cbranch_scc1 K1_PREP_X")
    a("s_and_b32 %s, %s, 7", s1, sc)
    a("s_bfe_u32 %s, %s, 0x20003", s2_, sc)
    a("s_cmp_ge_u32 %s, 32", sc)
    a("s_cbranch_scc1 K1_PREP_H")
    srd(a, r2, P["we"], 0, 258 * 256)
    a("s_lshl_b32 %s, %s, 6", s2_, s2_)
    a("v_lshlrev_b32 %s, 1, %s", ad, col)
    a("s_branch K1_PREP_K")
    a.label("K1_PREP_H")
    srd(a, r2, P["wh"], 0, 256 * 256)
    a("s_and_b32 %s, %s, 1", s3, s2_)
    a("s_lshr_b32 %s, %s, 1", s2_, s2_)
    a("s_lshl_b32 %s, %s, 6", s2_, s2_)
    a("s_add_u32 %s, %s, %s", s2_, s2_, s3)
    a("s_lshl_b32 %s, %s, 1", s2_, s2_)
    a("v_lshlrev_b32 %s, 2, %s", ad, col)
    a("s_cmp_ge_u32 %s, 64", sc)
    a("s_cbranch_scc1 K1_PREP_H2")
    a.label("K1_PREP_K")
    a("s_lshl_b32 %s, %s, 12", s1, s1)
    a("s_add_u32 %s, %s, %s", s1, s1, s2_)
    a("v_lshl_add_u32 %s, %s, 11, %s", ad, kh, ad)
    for j in range(8):
        a("buffer_load_ushort %s, %s, %s, %s offen offset:%d", w[j], ad, r2, s1, 256 * j)
    a("s_branch K1_PREP_W")
    a.label("K1_PREP_H2")
    a("s_lshr_b32 %s, %s, 2", s3, s1)
    a("s_lshl_b32 %s, %s, 6", s3, s3)
    a("s_and_b32 %s, %s, 3", s1, s1)
    a("s_lshl_b32 %s, %s, 3", s1, s1)
    a("s_add_u32 %s, %s, %s", s1, s1, s3)
    a("s_add_u32 %s, %s, 128", s1, s1)
    a("s_lshl_b32 %s, %s, 8", s1, s1)
    a("s_add_u32 %s, %s, %s", s1, s1, s2_)
    a("v_lshl_add_u32 %s, %s, 10, %s", ad, kh, ad)
    a("v_add_u32 %s, 8192, %s", ad2, ad)
    for j in range(8):
        a("buffer_load_ushort %s, %s, %s, %s offen offset:%d", w[j], ad2 if j & 1 else ad, r2, s1, 256 * (j >> 1))
    a.label("K1_PREP_W")
    a("s_barrier\ns_barrier\ns_barrier\ns_waitcnt vmcnt(0)")
    for j in range(4):
        a("v_lshl_or_b32 %s, %s, 16, %s", w[j], w[2 * j + 1], w[2 * j])
    a("s_lshl_b32 %s, %s, 10", s1, sc)
    a("buffer_store_dwordx4 %s, %s, %s, %s offen %s", w.sub(0, 4), o16, r4, s1, OPT["st1"])
    a("s_branch K1_PREP_P2")
    a.label("K1_PREP_X")
    a("s_cmp_gt_u32 %s, 97", sc)
    a("s_cbranch_scc1 K1_PREP_P")
    a("s_cmp_eq_u32 %s, 97", sc)
    a("s_cbranch_scc1 K1_PREP_WX")
    srd(a, r2, P["we"], 0, 258 * 256)
    a("v_lshlrev_b32 %s, 1, %s", ad, lane)
    a("s_mov_b32 %s, 65536", s1)
    for xy in range(2):
        a("buffer_load_ushort %s, %s, %s, %s offen offset:%d", w[4 + 2 * xy], ad, r2, s1, 128 * xy)
        a("buffer_load_ushort %s, %s, %s, %s offen offset:%d", w[5 + 2 * xy], ad, r2, s1, 256 + 128 * xy)
    a("s_barrier\ns_barrier\ns_barrier\ns_waitcnt vmcnt(0)")
    for j in range(4, 8):
        a("v_lshlrev_b32 %s, 16, %s", w[j], w[j])
        a("v_mul_f32 %s, %s, %s", w[j], hex(LOG2E), w[j])
    for xy in range(2):
        d_, a_ = w[4 + 2 * xy], w[5 + 2 * xy]
        a("v_cvt_pk_bf16_f32 %s, %s, %s", w[2 * xy], d_, a_)
        a("v_lshlrev_b32 %s, 16, %s", t0, w[2 * xy])
        a("v_and_b32 %s, 0xffff0000, %s", t1, w[2 * xy])
        a("v_sub_f32 %s, %s, %s", d_, d_, t0)
        a("v_sub_f32 %s, %s, %s", a_, a_, t1)
        a("v_cvt_pk_bf16_f32 %s, %s, %s", w[2 * xy + 1], d_, a_)
    a("s_mov_b32 %s, 98304", s1)
    a("buffer_store_dwordx4 %s, %s, %s, %s offen %s", w.sub(0, 4), o16, r4, s1, OPT["st1"])
    a("s_branch K1_PREP_P2")
    a.label("K1_PREP_WX")
    srd(a, r2, P["wx"], 0, 256)
    a("v_lshlrev_b32 %s, 1, %s", ad, col)
    for j in range(4):
        a("buffer_load_ushort %s, %s, %s, 0 offen offset:%d", w[j], ad, r2, 64 * j)
    a("s_barrier\ns_barrier\ns_barrier\ns_waitcnt vmcnt(0)")
    for j in range(4):
        a("v_lshlrev_b32 %s, 16, %s", w[j], w[j])
        a("v_mul_f32 %s, %s, %s", w[j], hex(f32(0.6931471805599453 * (1 + DELTA))), w[j])
    a("s_mov_b32 %s, %d", s1, 98304 + 1024)
    a("buffer_store_dwordx4 %s, %s, %s, %s offen %s", w.sub(0, 4), o16, r4, s1, OPT["st1"])
    a("s_branch K1_PREP_P2")
    a.label("K1_PREP_P")
    a("s_barrier\ns_barrier\ns_barrier\ns_waitcnt vmcnt(0)")
    a.label("K1_PREP_P2")
    for j in range(3):
        a("v_lshlrev_b32 %s, 16, %s", pa[j], pa[j])
        a("v_lshlrev_b32 %s, 16, %s", pb[j], pb[j])
    a("s_mul_i32 %s, %s, %d", s0, sc, BN * 16)
    a("buffer_store_dwordx4 %s, %s, %s, %s offen %s", pa, o16, r1, s0, OPT["st1"])
    a("s_mov_b32 exec_hi, 3")
    a("buffer_store_dwordx4 %s, %s, %s, %s offen offset:1024 %s", pb, o16, r1, s0, OPT["st1"])
    a("s_endpgm")

    V.reset(m)
    a.label("K1_GEMM")
    ts.stamp(4)
    o16, aw, ah, ar, br, so, sg = (V.get() for _ in range(7))
    hv = V.get(16, 4)
    acc = [V.get(16, 4), V.get(16, 4)]
    wv = acc[0]
    bf = V.get(64, 4)
    srd(a, r1, P["we"], 32768, 32768)
    a("v_lshlrev_b32 %s, 4, %s", o16, tid)
    for i in range(4):
        if i:
            a("s_mov_b32 %s, %d", s1, 8192 * i)
        a("buffer_load_dwordx4 %s, %s, %s, %s offen", wv.sub(4 * i, 4), o16, r1, s1 if i else "0")
    srd(a, r0, P["h"], 0, N * 256)
    a("s_mul_i32 %s, %s, %d", s0, sc, BN * 256)
    for i in range(4):
        if i:
            a("s_add_u32 %s, %s, %d", s1, s0, 8192 * i)
        if i == 3:
            a("s_cmp_lt_u32 %s, 2", sw)
            a("s_cselect_b32 %s, %s, %s", s1, s1, hex(OOR))
        a("buffer_load_dwordx4 %s, %s, %s, %s offen", hv.sub(4 * i, 4), o16, r0, s1 if i else s0)
    srd(a, r2, P["ws"], WS_BP, N * 256)
    a("v_lshrrev_b32 %s, 4, %s", t0, tid)
    a("v_lshl_add_u32 %s, %s, 6, %s", aw, t0, o16)
    a("v_lshl_add_u32 %s, %s, 4, %s", ah, t0, o16)
    a("v_add_u32 %s, %d, %s", ah, K1_LH, ah)
    a("s_lshr_b32 %s, %s, 1", s2_, sw)
    a("s_and_b32 %s, %s, 1", s3, sw)
    a("v_and_b32 %s, 31, %s", t0, lane)
    a("v_lshrrev_b32 %s, 5, %s", t1, lane)
    a("v_mul_u32_u24 %s, 272, %s", ar, t0)
    a("v_lshl_add_u32 %s, %s, 4, %s", ar, t1, ar)
    a("s_mul_i32 %s, %s, %d", s1, s2_, 24 * 272)
    a("s_add_u32 %s, %s, %d", s1, s1, K1_LH)
    a("v_add_u32 %s, %s, %s", ar, s1, ar)
    a("s_lshl_b32 %s, %s, 12", s1, sw)
    a("v_lshl_add_u32 %s, %s, 2, %s", so, t0, s1)
    a("v_lshl_add_u32 %s, %s, 9, %s", so, t1, so)
    a("v_bfe_u32 %s, %s, 2, 2", br, lane)
    a("v_lshl_add_u32 %s, %s, 3, %s", br, t1, br)
    a("v_mul_u32_u24 %s, 320, %s", br, br)
    a("v_bfe_u32 %s, %s, 4, 1", t0, lane)
    a("v_lshl_add_u32 %s, %s, 5, %s", br, t0, br)
    a("v_and_b32 %s, 3, %s", t0, lane)
    a("v_lshl_add_u32 %s, %s, 3, %s", br, t0, br)
    a("s_lshl_b32 %s, %s, 7", s3, s3)
    a("v_add_u32 %s, %s, %s", br, s3, br)
    a("v_lshl_add_u32 %s, %s, 4, %s", o16, lane, s1)
    a("v_lshrrev_b32 %s, 3, %s", t0, lane)
    a("v_and_b32 %s, 7, %s", t1, lane)
    a("v_lshlrev_b32 %s, 4, %s", t1, t1)
    a("v_lshl_add_u32 %s, %s, 8, %s", sg, t0, t1)
    a("s_mul_i32 %s, %s, %d", s1, s2_, 24 * 256)
    a("s_add_u32 %s, %s, %s", s0, s0, s1)
    a("s_add_u32 %s, %s, %s", s0, s0, s3)
    a("s_add_u32 %s, %s, 4096", s1, s0)
    a("s_mov_b32 %s, %s", sv[0], hex(LOG2E))
    a("s_mov_b32 %s, %s", sv[1], hex(LOG2E))
    ts.stamp(5)
    for i in range(4):
        a("s_waitcnt vmcnt(%d)", 7 - i)
        a("ds_write_b128 %s, %s offset:%d", aw, wv.sub(4 * i, 4), K1_LW + 32 * 320 * i)
    a("s_waitcnt lgkmcnt(0)")
    ts.stamp(6)
    a("s_barrier")
    for ks in range(8):
        for lh in range(2):
            for i in range(2):
                a("ds_read_b64_tr_b16 %s, %s offset:%d", bf.sub(8 * ks + 4 * lh + 2 * i, 2), br,
                  K1_LW + (16 * ks + 4 * i) * 320 + 64 * lh)
    ts.stamp(7)
    for i in range(4):
        a("s_waitcnt vmcnt(%d)", 3 - i)
        a("ds_write_b128 %s, %s offset:%d", ah, hv.sub(4 * i, 4), 32 * 272 * i)
    a("s_waitcnt lgkmcnt(0)")
    ts.stamp(1)
    a("s_barrier")
    rd = lambda ks: a("ds_read_b128 %s, %s offset:%d", hv.sub(4 * (ks & 3), 4), ar, 32 * ks)
    for ks in range(4):
        rd(ks)
    for ks in range(8):
        a("s_waitcnt lgkmcnt(%d)", min(3, 7 - ks))
        for lh in range(2):
            a(MF16, acc[lh], hv.sub(4 * (ks & 3), 4), bf.sub(8 * ks + 4 * lh, 4), acc[lh] if ks else "0")
        if ks < 4:
            rd(ks + 4)
    a("s_nop 11")

    def fin(r0_, r1_):
        for r in range(r0_, r1_, 2):
            for lh in range(2):
                a("v_pk_mul_f32 %s, %s, %s", acc[lh].sub(r, 2), acc[lh].sub(r, 2), sv)
            for q in (r, r + 1):
                a("v_cvt_pk_bf16_f32 %s, %s, %s", acc[0][q], acc[0][q], acc[1][q])
                a("ds_write_b32 %s, %s offset:%d", so, acc[0][q], (8 * (q // 4) + q % 4) * 128)
            if r % 4 == 2 or r == 12:
                i = r // 4
                a("ds_read_b128 %s, %s offset:%d", hv.sub(4 * i, 4), o16, 1024 * i)
                if 0 < i < 3:
                    a("s_waitcnt lgkmcnt(5)")
                    sto(i - 1)

    def sto(i):
        a("buffer_store_dwordx4 %s, %s, %s, %s offen offset:%d %s", hv.sub(4 * i, 4), sg, r2, s1 if i >= 2 else s0,
          (i & 1) * 2048, OPT["st1"])
    fin(0, 12)
    a("s_waitcnt lgkmcnt(0)")
    sto(2)
    a("s_cmp_lg_u32 %s, 3", s2_)
    a("s_cbranch_scc1 K1_G_END")
    fin(12, 14)
    a("s_mov_b64 exec, 0xffff")
    a("s_waitcnt lgkmcnt(0)")
    sto(3)
    a.label("K1_G_END")
    ts.stamp(2)
    if OPT["ts"]:
        a("s_waitcnt vmcnt(0)")
        ts.stamp(3)
        ts.dump(P["ws"], sw, t0, t1)
    a.label("K1_END")
    a("s_endpgm")
    return V.hi, S.hi


L_AT = 0
L_S = 49 * 512
L_E = L_S + (CAP + 128) * 4
L_HIST = L_E + (CAP + 128) * 4
L_FLAG = L_HIST + 256
L_START = L_FLAG + 256
L_GD = L_START + 256
L_POS = L_GD + 16
L_GT = L_POS + 2048
L_RING = L_GT + 49 * 512
PS = 2048 + 128
RS = 1024 + PS + 2048
L_MACC = L_RING + 8 * RS
PB = 928
K2_LDS = L_MACC + 50 * PB
L_H = L_MACC
assert L_S % 256 == 0 and L_E % 256 == 0 and K2_LDS <= 163840 and 112 * 272 <= 49 * PB
LOOR = 0x80000
QF, QS = 24, 4
assert 256 * QS + 49 * 16 <= CAP


def gen_k2(a):
    S = Regs("s", 24, 102)
    V = Regs("v", 1, 256)
    kernel_head(a, "egnn_main_kernel")
    ts = TS(a, S, 8, 1)
    a("s_cmp_ge_u32 s2, 256")
    a("s_cbranch_scc1 K2_END")
    P = load_ptrs(a)
    ts.init()
    ts.stamp(0)
    tid = R("v", 0)
    lane, vh, fbase, tb16, tb32, bS4, bOH, pS4, pOH, bE, bS, bP, posc, isel, iseg, vflag = (V.get() for _ in range(16))
    Q = [V.get(16, 4) for _ in range(4)]
    Qall = R("v", Q[0].i, 64)
    y = [V.get(16, 4), V.get(16, 4)]
    yall = R("v", y[0].i, 32)
    e = [V.get(16, 4), V.get(16, 4)]
    eall = R("v", e[0].i, 32)
    adr = V.get(16, 4)
    ldall = V.get(16, 4)
    ld = [ldall.sub(0, 8), ldall.sub(8, 8)]
    sel, zero = V.get(4, 4), V.get(4, 4)
    Bop = [V.get(4, 4), V.get(4, 4)]
    WX, oh, S4 = V.get(4, 4), V.get(4, 4), V.get(4, 4)
    psrc, pdst = V.get(4, 4), V.get(4, 4)
    ones, aB, aA, c64 = V.get(2), V.get(2), V.get(2), V.get(2)
    one = c64[0]
    T = V.get(24, 4)
    rBP, rPOS, rWS, rH = (S.get(4, 4) for _ in range(4))
    (sw, snb, sJ, sq, sfirst, smore, stot, sU, snu, su0, su, spa, sinc, sflu, sfq, sret, srmw, srnd, sql, sshr,
     snr, sgd) = (S.get() for _ in range(22))
    s0, s1, s2_, s3, s4, sdot, slo, shi = (S.get() for _ in range(8))
    sval, sx = S.get(2, 2), S.get(2, 2)
    t0, t1, t2, t3 = T[0], T[1], T[2], T[3]
    X = OPT["x"]
    if OPT["cpf"] & 1:
        code_prefetch(a, rBP, t0, T[15], "K2_ROUND", "K2_END", 7)

    a("v_lshrrev_b32 %s, 6, %s", t0, tid)
    a("v_and_b32 %s, 63, %s", lane, tid)
    a("v_readfirstlane_b32 %s, %s", sw, t0)
    a("s_and_b32 %s, s2, 7", s0)
    a("s_lshr_b32 %s, s2, 3", s1)
    a("s_lshl_b32 %s, %s, 5", snb, s0)
    a("s_add_u32 %s, %s, %s", snb, snb, s1)
    a("s_mul_i32 %s, %s, %d", snb, snb, BN)
    ent = Qall.sub(0, 48)
    rk, bn = yall.sub(0, 24), eall.sub(0, 24)
    stv = R("v", adr.i, 24)
    voff, vrem, vea, seg = T[20], T[21], T[22], T[23]
    hst = R("v", adr.i, 28)
    Wf = [yall, eall]
    acc = Q
    o16, l16 = T[18], T[19]
    a("v_and_b32 %s, 255, %s", seg, tid)
    a("v_lshlrev_b32 %s, 4, %s", o16, seg)
    a("v_lshlrev_b32 %s, 4, %s", l16, lane)
    for i in range(4):
        a("v_mov_b32 %s, 0", zero[i])
    a("v_lshrrev_b32 %s, 5, %s", vh, lane)
    a("v_and_b32 %s, 31, %s", t0, lane)
    a("v_lshlrev_b32 %s, 2, %s", t1, t0)
    a("v_mul_u32_u24 %s, %d, %s", t2, PB, vh)
    a("s_mov_b32 %s, %d", s0, L_MACC)
    a("v_add3_u32 %s, %s, %s, %s", fbase, t1, t2, s0)
    a("v_mov_b32 %s, 0x3f80", c64[0])
    a("v_mov_b32 %s, 0", c64[1])
    a("v_mov_b32 %s, 0x3f003f00", ones[0])
    a("v_mov_b32 %s, 0", ones[1])
    a("v_mov_b32 %s, 0x3f80", aA[1])
    a("v_mov_b32 %s, 0xdddd", iseg)
    a("v_mov_b32 %s, %s", posc, hex(f32((2.0 ** 23 - 2.0 ** 19) * 2.0 ** -126)))
    a("s_mov_b32 %s, %s", sdot, hex((5 << 7) | (13 << 23)))
    a("s_mov_b32 %s, 0x3f80", slo)
    a("s_mov_b32 %s, 0x3f800000", shi)
    a("v_cvt_f32_u32 %s, %s", t1, t1)
    a("v_mul_f32 %s, 0x00800000, %s", t1, t1)
    a("v_lshrrev_b32 %s, 16, %s", t1, t1)
    a("v_cmp_gt_u32 vcc, 32, %s", lane)
    a("v_mov_b32 %s, %s", t2, hex((9 << 7) | (17 << 23)))
    a("s_mul_i32 %s, %s, %d", s0, sw, RS)
    a("s_add_u32 %s, %s, %d", s0, s0, L_RING)
    a("s_add_u32 %s, %s, 1024", s1, s0)
    a("v_cndmask_b32 %s, 0, %s, vcc", aB[0], t2)
    a("v_cndmask_b32 %s, 0, %s, vcc", aB[1], t1)
    a("v_add_u32 %s, %s, %s", tb16, s0, l16)
    a("v_lshl_add_u32 %s, %s, 5, %s", tb32, lane, s1)
    a("v_and_b32 %s, 0xf0, %s", t1, l16)
    a("v_add_u32 %s, %s, %s", t1, s0, t1)
    a("v_add_u32 %s, -16, %s", t2, lane)
    a("v_cmp_gt_u32 vcc, 32, %s", t2)
    a("v_mov_b32 %s, %s", t2, hex(LOOR))
    a("v_bfe_u32 %s, %s, 2, 2", t3, lane)
    a("v_cndmask_b32 %s, %s, %s, vcc", bOH, t1, t2)
    a("v_cmp_eq_u32 vcc, 0, %s", lane)
    a("s_lshl_b32 %s, %s, 2", s2_, sw)
    a("v_mov_b32 %s, %s", t1, s2_)
    a("v_cndmask_b32 %s, %s, %s, vcc", vflag, t2, t1)
    a("v_lshl_add_u32 %s, %s, 3, %s", t3, vh, t3)
    a("v_lshlrev_b32 %s, 5, %s", t3, t3)
    a("v_and_b32 %s, 1, %s", t1, lane)
    a("v_lshl_add_u32 %s, %s, 3, %s", t3, t1, t3)
    a("v_and_b32 %s, 16, %s", t2, lane)
    a("v_add_u32 %s, %s, %s", t3, t3, t2)
    a("v_bfe_u32 %s, %s, 1, 1", t0, lane)
    a("v_mul_u32_u24 %s, %d, %s", t0, PS, t0)
    a("v_add3_u32 %s, %s, %s, %s", bS4, t0, t3, s1)
    a("v_lshrrev_b32 %s, 4, %s", t2, t2)
    a("v_lshl_add_u32 %s, %s, 1, %s", t1, t1, t2)
    a("v_mul_u32_u24 %s, 0x5555, %s", isel, t1)
    a("v_bfe_u32 %s, %s, 1, 3", t1, lane)
    a("v_lshlrev_b32 %s, 2, %s", t3, vh)
    a("v_xor_b32 %s, %s, %s", t1, t1, t3)
    for t in range(4):
        a("v_cmp_eq_u32 vcc, %d, %s", t, t1)
        a("s_nop 1")
        a("v_cndmask_b32 %s, 0, %s, vcc", sel[t], one)
    a("s_mov_b32 %s, 0", sJ)
    a("s_mov_b32 %s, %d", sq, QF)
    a("s_mov_b32 %s, 3", sfirst)
    a("s_mov_b32 %s, 0", srnd)
    a("s_mov_b32 %s, 1", sgd)

    def offaddr():
        a("s_lshr_b32 %s, s2, 5", s1)
        a("s_and_b32 %s, s2, 7", s0)
        a("s_lshl_b32 %s, %s, 3", s0, s0)
        a("s_add_u32 %s, %s, %s", s0, s0, s1)
        a("s_mul_i32 %s, %s, %d", s0, s0, OFS)
        a("s_bfe_u32 %s, s2, 0x20003", s1)
        a("s_lshl_b32 %s, %s, 2", s1, s1)
        a("s_add_u32 %s, %s, %s", s0, s0, s1)
        a("s_add_u32 %s, %s, %s", s0, s0, hex(WS_OFF))

    def small():
        a("s_mov_b32 %s, %s", s0, hex(WS_W3))
        a("buffer_load_dwordx2 %s, %s, %s, %s offen", Bop[0].sub(2, 2), l16, rWS, s0)
        a("buffer_load_dwordx2 %s, %s, %s, %s offen offset:8", Bop[1].sub(2, 2), l16, rWS, s0)
        a("buffer_load_dwordx4 %s, %s, %s, %s offen offset:1024", WX, l16, rWS, s0)
    offaddr()
    a("v_lshlrev_b32 %s, 3, %s", t3, lane)
    a("ds_write_b64 %s, %s offset:%d", t3, zero.sub(0, 2), L_HIST)
    a("s_waitcnt lgkmcnt(0)")
    a("s_barrier")
    srd(a, rWS, P["ws"], 0, WS_SIZE)
    srd(a, rH, P["h"], 0, N * 256)
    srd(a, rPOS, P["ws"], POS_BASE, BIAS + N * 16)
    srd(a, rBP, P["ws"], 0, BIAS + N * 256)
    a("s_cmp_lt_u32 %s, 4", sw)
    a("s_cbranch_scc1 K2_G0")
    if "lateprio" not in X:
        a("s_setprio 2")
    a("buffer_load_dword %s, %s, %s, %s offen", voff, o16, rWS, s0)
    small()
    a("s_waitcnt vmcnt(3)")
    a.label("K2_ROUND")
    ts.stamp(1)
    a("v_lshrrev_b32 %s, 16, %s", vrem, voff)
    a("v_and_b32 %s, 0xffff, %s", t0, voff)
    a("v_subrev_u32 %s, %s, %s", vrem, sJ, vrem)
    a("v_mul_u32_u24 %s, %d, %s", t2, CHB, seg)
    a("v_cmp_lt_i32 %s, %s, %s", sx, sq, vrem)
    a("v_min_i32 %s, %s, %s", vrem, sq, vrem)
    a("v_add_u32 %s, %s, %s", t0, sJ, t0)
    a("v_lshl_add_u32 %s, %s, 3, %s", vea, t0, t2)
    a("s_mov_b32 %s, %s", s0, hex(WS_ENT))
    for i in range(QF // 2):
        a("v_cmpx_lt_i32 vcc, %d, %s", 2 * i, vrem)
        a("s_cbranch_execz K2_R1")
        a("buffer_load_dwordx4 %s, %s, %s, %s offen offset:%d", ent.sub(4 * i, 4), vea, rWS, s0, 16 * i)
    a.label("K2_R1")
    a("s_mov_b64 exec, -1")
    a("v_mov_b32 %s, 1", t1)
    a("s_mov_b64 exec, %s", sx)
    a("s_cbranch_execz K2_R2")
    a("ds_write_b32 %s, %s offset:%d", zero[0], t1, L_HIST + 63 * 4)
    a.label("K2_R2")
    a("s_mov_b64 exec, -1")
    a("s_mov_b32 %s, 0", snr)
    a("s_waitcnt vmcnt(0)")
    ts.stamp(2)
    for k in range(QF):
        a("v_cmpx_lt_i32 vcc, %d, %s", k, vrem)
        if k % 2 == 0:
            a("s_cbranch_execz K2_R3")
            a("s_mov_b32 %s, %d", snr, k + 2)
        a("v_and_b32 %s, 0xfc, %s", bn[k], ent[2 * k + 1])
        a("ds_add_rtn_u32 %s, %s, %s offset:%d", rk[k], bn[k], t1, L_HIST)
    a.label("K2_R3")
    a("s_mov_b64 exec, -1")
    a("s_waitcnt lgkmcnt(0)")
    a("s_barrier")
    a("s_branch K2_R4")

    ar, wa = T[16], T[17]
    PF = OPT["pf"]

    def gemm(g, abuf, nb):
        seq = [(rt, ks) for rt in range(4) for ks in range(8)]
        afb = lambda n: abuf.sub(4 * (n % nb), 4)
        order = []

        def rdA(n):
            a("ds_read_b128 %s, %s offset:%d", afb(n), ar, seq[n][0] * 24 * 272 + 32 * seq[n][1])
            order.append(n)

        def out(rt, i):
            a("v_mul_f32 %s, %s, %s", acc[rt][2 * i], s4, acc[rt][2 * i])
            a("v_mul_f32 %s, %s, %s", acc[rt][2 * i + 1], s4, acc[rt][2 * i + 1])
            a("v_cvt_pk_bf16_f32 %s, %s, %s", acc[rt][2 * i], acc[rt][2 * i], acc[rt][2 * i + 1])

        def wr(rt, i):
            o = (12 * rt + 4 * (i // 2)) * 2
            if i == 6:
                a("s_mov_b32 exec_hi, 0")
                a("ds_write_b32 %s, %s offset:%d", wa, acc[rt][12], o * 256)
                a("s_mov_b64 exec, -1")
            else:
                a("ds_write2st64_b32 %s, %s, %s offset0:%d offset1:%d", wa, acc[rt][2 * i], acc[rt][2 * i + 2], o, o + 2)
            order.append("w")
        a("s_mov_b32 %s, %s", s4, hex(f32(1.4426950408889634 / (1 + DELTA)) if g else LOG2E))
        for n in range(nb):
            rdA(n)
        for n, (rt, ks) in enumerate(seq):
            w = []
            if n % 2 == 0:
                w.append("lgkmcnt(%d)" % (len(order) - 1 - order.index(n + 1)))
                if g == 0 and n < 8:
                    w.append("vmcnt(%d)" % (6 - n))
                a("s_waitcnt " + " ".join(reversed(w)))
            a(MF16, acc[rt], afb(n), Wf[g].sub(4 * ks, 4), acc[rt] if ks else "0")
            if n + nb < 32:
                rdA(n + nb)
            if rt > 0 and ks in (4, 6):
                wr(rt - 1, ks - 4)
            if rt > 1 and ks == 0:
                wr(rt - 2, 4)
            if n == 8 and g == 0:
                late()
            elif n in (8, 24):
                a("s_nop %d", 4 if n == 8 else 1)
            if rt > 0 and ks >= 2:
                out(rt - 1, ks - 2)
        wr(2, 4)
        if g:
            a("ds_add_u32 %s, %s offset:%d", vflag, one, L_GD)
        a("s_nop %d", 6 if g else 7)
        for i in range(7):
            out(3, i)
            if i % 2 == 1 or i == 6:
                wr(3, i & ~1)

    a.label("K2_G0")
    a("s_lshl_b32 %s, %s, 8", s0, snb)
    if "noh" in X:
        a("s_mov_b32 %s, %s", s0, hex(OOR))
    for i in range(7):
        if i:
            a("s_add_u32 %s, %s, %d", s1, s0, 4096 * i)
        if i == 6:
            a("s_cmp_lt_u32 %s, 2", sw)
            a("s_cselect_b32 %s, %s, %s", s1, s1, hex(OOR))
        a("buffer_load_dwordx4 %s, %s, %s, %s offen", hst.sub(4 * i, 4), o16, rH, s1 if i else s0)
    a("s_lshl_b32 %s, %s, 4", s1, snb)
    a("s_add_u32 %s, %s, %s", s1, s1, hex(BIAS))
    a("s_cmp_lt_u32 %s, 2", sw)
    a("s_cselect_b32 %s, %s, %s", s1, s1, hex(OOR))
    a("buffer_load_dwordx4 %s, %s, %s, %s offen", psrc, o16, rPOS, s1)
    a("s_lshl_b32 %s, %s, 13", s2_, sw)
    if "now" in X:
        a("s_mov_b32 %s, %s", s2_, hex(OOR))

    def wload(g):
        a("s_add_u32 %s, %s, %s", s1, s2_, hex(WS_WF + (g >> 1) * 32768 + (g & 1) * 4096))
        for k in range(4):
            a("buffer_load_dwordx4 %s, %s, %s, %s offen offset:%d", Wf[g >> 1].sub(16 * (g & 1) + 4 * k, 4), l16, rWS, s1, k * 1024)
    wload(0)
    wload(1)
    a("v_lshrrev_b32 %s, 4, %s", t0, tid)
    a("v_lshl_add_u32 %s, %s, 4, %s", t0, t0, o16)
    a("v_add_u32 %s, %d, %s", t0, L_H, t0)
    a("v_and_b32 %s, 31, %s", t1, lane)
    a("v_mul_u32_u24 %s, 272, %s", ar, t1)
    a("v_lshl_add_u32 %s, %s, 4, %s", ar, vh, ar)
    a("v_add_u32 %s, %d, %s", ar, L_H, ar)
    a("v_lshlrev_b32 %s, 2, %s", wa, t1)
    a("v_lshl_add_u32 %s, %s, 10, %s", wa, vh, wa)
    a("s_lshl_b32 %s, %s, 7", s0, sw)
    a("v_add_u32 %s, %s, %s", wa, s0, wa)
    a("ds_write_b32 %s, %s offset:%d", vflag, zero[0], L_GD)
    for i in range(7):
        a("s_waitcnt vmcnt(%d)", 15 - i)
        a("ds_write_b128 %s, %s offset:%d", t0, hst.sub(4 * i, 4), 16 * 272 * i)
    a("s_cmp_ge_u32 %s, 2", sw)
    a("s_cbranch_scc1 K2_G1")
    a("s_waitcnt vmcnt(8)")
    a("ds_write_b128 %s, %s offset:%d", o16, psrc, L_POS)
    a.label("K2_G1")
    a("s_waitcnt lgkmcnt(0)")
    ts.stamp(1)
    a.label("K2_GROUND")
    a("s_barrier")
    a("s_bitcmp0_b32 %s, 0", sfirst)
    a("s_cbranch_scc1 K2_R4")
    a("s_mov_b32 %s, 2", sfirst)
    def late():
        wload(2)
        wload(3)
        small()
        pfetch()

    def pfetch():
      if PF:
        a("s_lshr_b32 %s, s2, 3", s0)
        a("s_mul_i32 %s, %s, %d", s1, s0, 98 * 128)
        a("s_add_u32 %s, %s, %s", s1, s1, hex(BIAS))
        a("s_cmp_lt_u32 %s, 2", sw)
        a("s_cselect_b32 %s, %s, %s", s1, s1, hex(OOR))
        a("v_lshlrev_b32 %s, 3, %s", t0, o16)
        a("buffer_load_dword %s, %s, %s, %s offen", T[23], t0, rPOS, s1)
        a("s_mul_i32 %s, %s, %d", s1, s0, (PF - 1) * 32768)
        for i in range(PF - 1):
            a("s_add_u32 %s, %s, %s", s0, s1, hex(BIAS + i * 32768))
            a("buffer_load_dword %s, %s, %s, %s offen", T[23], t0, rBP, s0)
    ts.stamp(2)
    gemm(0, R("v", adr.i, 32), 8)
    a("v_add_u32 %s, %d, %s", wa, L_GT, wa)

    a.label("K2_R4")
    a("v_lshlrev_b32 %s, 2, %s", psrc[3], lane)
    ts.stamp(3)
    cn, mx, st, l4 = pdst[0], pdst[1], pdst[2], psrc[3]
    a("ds_read_b32 %s, %s offset:%d", cn, l4, L_HIST)
    a("s_mov_b32 %s, -1", sx[0])
    a("s_mov_b32 %s, 0x1ffff", sx[1])
    a("s_waitcnt lgkmcnt(0)")
    a("v_readlane_b32 %s, %s, 63", smore, cn)
    a("v_max_u32 %s, 16, %s", mx, cn)
    a("v_cndmask_b32 %s, 0, %s, %s", mx, mx, sx)
    a("v_mov_b32 %s, %s", st, mx)
    wave_scan(a, st)
    a("s_nop 0")
    a("v_readlane_b32 %s, %s, 63", stot, st)
    a("v_sub_u32 %s, %s, %s", st, st, mx)
    a("v_lshlrev_b32 %s, 2, %s", st, st)
    a("s_cmp_gt_u32 %s, %d", stot, CAP)
    a("s_cbranch_scc1 K2_RETRY")
    a("s_add_u32 %s, %s, 15", sU, stot)
    a("s_lshr_b32 %s, %s, 4", sU, sU)
    a("s_cmp_lt_u32 %s, 4", sw)
    a("s_cbranch_scc1 K2_R7")
    a("ds_write_b32 %s, %s offset:%d", l4, st, L_START)
    for k in range(QF):
        if k % 2 == 0:
            a("s_cmp_le_u32 %s, %d", snr, k)
            a("s_cbranch_scc1 K2_R5")
        a("ds_read_b32 %s, %s offset:%d", stv[k], bn[k], L_START)
    a.label("K2_R5")
    a("v_mov_b32 %s, %s", t2, hex(DUMMY_S))
    a("s_cmp_lt_u32 %s, 6", sw)
    a("s_cbranch_scc1 K2_R6")
    a("s_cmp_eq_u32 %s, 6", sw)
    a("s_cbranch_scc1 K2_R5B")
    a("v_add_lshl_u32 %s, %s, %s, 2", t0, lane, stot)
    a("v_mov_b32 %s, 192", t1)
    a("ds_write2st64_b32 %s, %s, %s offset0:%d offset1:%d", t0, t2, t1, L_S // 256, L_E // 256)
    a("ds_write2st64_b32 %s, %s, %s offset0:%d offset1:%d", t0, t2, t1, L_S // 256 + 1, L_E // 256 + 1)
    a("s_branch K2_R6")
    a.label("K2_R5B")
    a("v_lshl_add_u32 %s, %s, 2, %s", t0, cn, st)
    a("s_mov_b64 exec, %s", sx)
    a.label("K2_R5C")
    a("v_cmpx_gt_u32 vcc, 16, %s", cn)
    a("s_cbranch_execz K2_R6")
    a("ds_write2st64_b32 %s, %s, %s offset0:%d offset1:%d", t0, t2, l4, L_S // 256, L_E // 256)
    a("v_add_u32 %s, 4, %s", t0, t0)
    a("v_add_u32 %s, 1, %s", cn, cn)
    a("s_branch K2_R5C")
    a.label("K2_R6")
    if "lateprio" in X:
        a("s_setprio 2")
    a("s_mov_b64 exec, -1")
    a("s_waitcnt lgkmcnt(0)")
    for k in range(QF):
        a("v_cmpx_lt_i32 vcc, %d, %s", k, vrem)
        if k % 2 == 0:
            a("s_cbranch_execz K2_R7")
        a("v_lshl_add_u32 %s, %s, 2, %s", stv[k], rk[k], stv[k])
        a("ds_write2st64_b32 %s, %s, %s offset0:%d offset1:%d", stv[k], ent[2 * k], ent[2 * k + 1], L_S // 256, L_E // 256)
    a.label("K2_R7")
    a("s_mov_b64 exec, -1")
    a("s_lshr_b32 %s, %s, 3", s0, sU)
    a("s_and_b32 %s, %s, 7", s1, sU)
    a("s_mul_i32 %s, %s, %s", su0, s0, sw)
    a("s_min_u32 %s, %s, %s", s2_, s1, sw)
    a("s_add_u32 %s, %s, %s", su0, su0, s2_)
    a("s_cmp_lt_u32 %s, %s", sw, s1)
    a("s_addc_u32 %s, %s, 0", snu, s0)
    a("v_add_lshl_u32 %s, %s, %s, 6", t0, lane, su0)
    a("v_add_u32 %s, %d, %s", t0, L_E, t0)
    a("s_lshl_b32 m0, %s, 6", su0)
    a("s_waitcnt lgkmcnt(0)")
    a("s_barrier")
    ts.stamp(4)

    def stageA0():
        a("ds_read_addtid_b32 %s offset:%d", bS, L_S)
        a("ds_read_addtid_b32 %s offset:%d", bE, L_E)

    def stageA1(x0):
        a("v_dot2_f32_bf16 %s, %s, %s, %s", x0, bS, sdot, posc)
        a("v_lshlrev_b32_sdwa %s, 3, %s " + SDWA, bP, bE, "BYTE_0")
        a("v_cmp_gt_u32 vcc, %s, %s", hex(DUMMY_S), bS)
        a("ds_read_b96 %s, %s offset:%d", pdst.sub(0, 3), bP, L_POS)
        a("buffer_load_dwordx3 %s, %s, %s, 0 offen", psrc.sub(0, 3), zero[0] if "nopos" in X else x0, rPOS)
        a("s_mov_b64 %s, vcc", sval)

    def stageB():
        x0, x1, x2, x3, row = T[0], T[1], T[2], T[3], T.sub(4, 4)
        for o in (1024, 2048, 1024 + PS, 2048 + PS):
            a("ds_write_b128 %s, %s offset:%d", tb16, zero, o)
        for c in range(3):
            a("v_sub_f32 %s, %s, %s", pdst[c], pdst[c], psrc[c])
        a("v_cvt_pk_bf16_f32 %s, %s, %s", x0, pdst[0], pdst[1])
        a("v_cvt_pk_bf16_f32 %s, %s, 0", x1, pdst[2])
        a("v_add_u32_sdwa %s, %s, %s " + SDWA, x3, tb32, bE, "BYTE_1")
        if OPT["exactd"]:
            a("v_lshlrev_b32 %s, 16, %s", pdst[0], x0)
            a("v_and_b32 %s, 0xffff0000, %s", pdst[1], x0)
            a("v_lshlrev_b32 %s, 16, %s", pdst[2], x1)
            for c in range(3):
                a("v_mul_f32 %s, %s, %s", pdst[c], pdst[c], pdst[c])
            a("v_cvt_pk_bf16_f32 %s, %s, %s", pdst[0], pdst[0], pdst[1])
            a("v_cvt_pk_bf16_f32 %s, %s, 0", pdst[2], pdst[2])
            a("s_mov_b32 %s, 0x3f803f80", s4)
            a("v_dot2_f32_bf16 %s, %s, %s, 0", x2, pdst[2], s4)
            a("v_dot2_f32_bf16 %s, %s, %s, %s", x2, pdst[0], s4, x2)
        else:
            a("v_dot2_f32_bf16 %s, %s, %s, 0", x2, x1, x1)
            a("v_dot2_f32_bf16 %s, %s, %s, %s", x2, x0, x0, x2)
        a("v_lshlrev_b64 %s, %s, %s", row.sub(0, 2), bP, c64)
        a("s_mov_b64 exec, %s", sval)
        a("ds_write_b16 %s, %s", x3, one)
        a("ds_write_b16 %s, %s offset:4", x3, x0)
        a("ds_write_b16_d16_hi %s, %s offset:%d", x3, x0, PS)
        a("ds_write_b16 %s, %s offset:%d", x3, x1, PS + 4)
        a("s_mov_b64 exec, -1")
        a("v_cvt_pk_bf16_f32 %s, %s, %s", row[2], x2, bE)
        a("v_cvt_pk_bf16_f32 %s, %s, %s", row[3], x2, bE)
        a("ds_write_b128 %s, %s", tb16, row)

    def loadAp(par):
        a("ds_read_addtid_b32 %s offset:%d", Bop[0][par], L_AT)
        a("ds_read_addtid_b32 %s offset:%d", Bop[1][par], L_AT + 256)

    def gld(xy, r):
        if "nogld" in X:
            a("s_nop 0")
            return
        a("buffer_load_dword %s, %s, %s, 0 offen offset:%d", ld[xy][r], fbase if "hitgld" in X else adr[r], rBP, 128 * xy)

    def dmaWh2():
        a("s_mul_i32 %s, %s, %d", s1, sw, RS)
        a("s_add_u32 m0, %s, %d", s1, L_RING)
        a("s_lshl_b32 %s, %s, 12", s1, sw)
        a("s_add_u32 %s, %s, %s", s1, s1, hex(WS_WF + 65536))
        a("v_lshlrev_b32 %s, 4, %s", t0, lane)
        a("s_waitcnt lgkmcnt(0)")
        for i in range(4):
            a("buffer_load_dwordx4 %s, %s, %s offen offset:%d lds", t0, rWS, s1, 1024 * i)

    def rng(f, xy, r0, r1):
        for r in range(r0, r1):
            f(xy, r)

    ea, eb = T[8], T.sub(10, 2)
    a("ds_read_addtid_b32 %s offset:%d", aA[0], L_S)
    stageA0()
    a("ds_read_b32 %s, %s", ea, t0)
    a("ds_read2_b32 %s, %s offset0:15 offset1:16", eb, t0)
    a("s_waitcnt lgkmcnt(4)")
    a(MF8, adr, aA, aB, "0")
    a("ds_read_addtid_b32 %s offset:%d", aA[0], L_S + 64)
    a("s_waitcnt lgkmcnt(3)")
    stageA1(t1)
    a("s_sub_u32 %s, %s, 1", s4, snu)
    a("s_mov_b32 %s, 0", su)
    a("s_mov_b32 %s, -1", sflu)
    a("s_mov_b32 %s, 0", sret)
    rng(gld, 0, 0, 8)
    rng(gld, 1, 0, 8)
    a("s_waitcnt lgkmcnt(0)")
    a(MF8, adr, aA, aB, "0")
    a("v_and_b32 %s, 0xfc, %s", ea, ea)
    a("v_and_b32 %s, 0xfc, %s", eb[1], eb[1])
    a("v_readfirstlane_b32 %s, %s", spa, ea)
    a("v_readlane_b32 %s, %s, %s", sql, eb[0], s4)
    a("v_readlane_b32 %s, %s, %s", sshr, eb[1], s4)
    a("v_cmp_ne_u32 vcc, %s, %s", ea, eb[1])
    a("s_cmp_lg_u32 %s, 2", sfirst)
    a("s_cbranch_scc1 K2_P1")
    a("s_mov_b32 %s, 0", sfirst)
    a("s_waitcnt vmcnt(%d)", 20 + PF)
    gemm(1, yall, 8)
    a.label("K2_P1")
    for b in range(4):
        a(MF8, Q[b], zero.sub(0, 2), zero.sub(0, 2), "0")
    a(MF8, e[1], zero.sub(0, 2), zero.sub(0, 2), "0")
    a("s_lshl_b32 %s, vcc_lo, 1", sinc)
    a("s_lshr_b32 %s, %s, 2", spa, spa)
    a("s_add_u32 %s, %s, 1", s0, spa)
    a("s_and_b32 %s, %s, -2", s0, s0)
    a("s_lshl_b32 m0, %s, 9", s0)
    a("s_or_b32 %s, %s, 1", s0, spa)
    loadAp(0)
    a("s_lshl_b32 m0, %s, 9", s0)
    a("s_bfe_u32 %s, %s, 0x50003", sql, sql)
    loadAp(1)
    a("s_lshr_b32 %s, %s, 3", sshr, sshr)
    a("s_cmp_eq_u32 %s, %s", sshr, sql)
    a("s_cselect_b32 %s, 1, 0", sshr)
    a("s_cmp_eq_u32 %s, 7", sw)
    a("s_cselect_b32 %s, 0, %s", sshr, sshr)
    a("s_mov_b32 %s, %s", srmw, srnd)
    for i in range(4):
        a("v_mov_b32 %s, 0", S4[i])
    a("s_lshl_b32 %s, %s, 6", s0, su0)
    a("s_add_u32 m0, %s, 256", s0)
    a("s_waitcnt vmcnt(16)")
    stageB()
    a("ds_read_b128 %s, %s", oh, bOH)
    stageA0()
    a("s_waitcnt lgkmcnt(2)")
    a(MF16, y[0], oh, Bop[0], "0")
    a("s_waitcnt vmcnt(8)")
    a(SMF, y[0], sel, ld[0], isel)
    rng(gld, 0, 0, 8)
    a("s_waitcnt lgkmcnt(0)")
    a("s_nop 1")
    ts.stamp(5)

    EXP = lambda xy, r: a("v_exp_f32 %s, -%s", e[xy][r], y[xy][r])
    RCP = lambda xy, r: a("v_rcp_f32 %s, %s", e[xy][r], e[xy][r])
    SEG = lambda b: a(SMF, Q[b], S4, e[b >> 1].sub(8 * (b & 1), 8), iseg)

    def MUL(xy):
        for r in range(0, 16, 2):
            a("v_pk_mul_f32 %s, %s, %s", e[xy].sub(r, 2), e[xy].sub(r, 2), y[xy].sub(r, 2))

    def half(xy, F):
        a(MF16, y[xy], oh, Bop[xy], "0")
        rng(F, 1 - xy, 0, 4)
        a("s_waitcnt vmcnt(8)")
        a(SMF, y[xy], sel, ld[xy], isel)
        rng(gld, xy, 0, 4)
        rng(F, 1 - xy, 4, 8)
        SEG(2 * xy)
        rng(gld, xy, 4, 8)
        rng(F, 1 - xy, 8, 12)
        SEG(2 * xy + 1)

    a(".p2align 6")
    a.label("K2_LOOP")
    half(1, EXP)
    a("s_and_b32 %s, %s, 3", s0, su)
    a("s_lshl_b32 %s, %s, 9", s0, s0)
    a("s_add_u32 %s, %s, 1", su, su)
    a("s_and_b32 %s, %s, 3", s3, su)
    a("s_lshl_b32 %s, %s, 8", s1, s3)
    a("v_add_u32 %s, %s, %s", pS4, s0, bS4)
    a("v_add_u32 %s, %s, %s", pOH, s1, bOH)
    rng(EXP, 0, 12, 16)
    a("s_add_u32 %s, %s, 1", s0, su)
    a("s_add_u32 %s, %s, %s", s1, s0, su0)
    a("s_cmp_lt_u32 %s, %s", s0, snu)
    a("s_cselect_b32 %s, %s, %s", s1, s1, sU)
    a("s_lshl_b32 m0, %s, 6", s1)
    rng(EXP, 1, 0, 2)
    a(MF8, e[0], ones, ones, e[0])
    a("ds_read_addtid_b32 %s offset:%d", aA[0], L_S)
    a("ds_read_b64_tr_b16 %s, %s", S4.sub(0, 2), pS4)
    a("ds_read_b64_tr_b16 %s, %s offset:128", S4.sub(2, 2), pS4)
    a("s_cmp_eq_u32 %s, %s", su, snu)
    a("s_cbranch_scc1 K2_LAST")
    a("s_cmp_le_u32 %s, 1", s3)
    a("s_cbranch_scc1 K2_BATCH" if "nobt" not in X else "s_nop 0")
    a.label("K2_L1")
    a("s_bitcmp1_b32 %s, %s", sinc, su)
    a("s_cbranch_scc1 K2_INC" if "noinc" not in X else "s_nop 0")
    a.label("K2_L2")
    a("ds_read_b128 %s, %s", oh, pOH)
    rng(EXP, 1, 2, 16)
    rng(RCP, 0, 0, 2)
    a(MF8, e[1], ones, ones, e[1])
    rng(RCP, 0, 2, 6)
    a("s_waitcnt lgkmcnt(0)")
    a(MF8, adr, aA, aB, "0")
    rng(RCP, 0, 6, 16)
    MUL(0)
    a("s_cmp_eq_u32 %s, %s", su, sflu)
    a("s_cbranch_scc1 K2_FLUSH")
    a.label("K2_L3")
    half(0, RCP)
    a("s_cmp_lt_u32 %s, %s", su, snu)
    rng(RCP, 1, 12, 16)
    MUL(1)
    a("s_cbranch_scc1 K2_LOOP")
    a("s_lshr_b32 %s, %s, 1", sfq, spa)
    SEG(2)
    SEG(3)
    a("s_mov_b32 %s, 1", sret)
    a("s_nop 7")
    a("s_cmp_lt_u32 %s, %s", sfq, sql)
    a("s_cbranch_scc1 K2_FLUSH")
    a.label("K2_D1")
    a("s_mov_b32 %s, %s", sfq, sql)
    a("s_mov_b32 %s, 2", sret)
    a("s_cmp_eq_u32 %s, 0", sshr)
    a("s_cbranch_scc1 K2_FLUSH")
    a("s_mov_b32 %s, 1", srmw)
    a.label("K2_D2")
    a("ds_read_b32 %s, %s offset:%d", t0, vflag, L_FLAG + 4)
    a("s_waitcnt lgkmcnt(0)")
    a("v_readfirstlane_b32 %s, %s", s0, t0)
    a("s_cmp_eq_u32 %s, 0", s0)
    a("s_cbranch_scc1 K2_D2")
    a.label("K2_FLUSH")
    fa, tt, Rm = T[20], T.sub(0, 6), T.sub(12, 7)
    offs = [nl * 272 + xy * 128 for nl in range(2) for xy in range(2)] + [528 + c * 128 for c in range(3)]
    a("s_cmp_lg_u32 %s, 0", sgd)
    a("s_cbranch_scc1 K2_GDW")
    a.label("K2_FLA")
    a("s_mul_i32 %s, %s, %d", s0, sfq, 2 * PB)
    a("v_add_u32 %s, %s, %s", fa, s0, fbase)
    a("s_cmp_eq_u32 %s, 0", srmw)
    a("s_cbranch_scc1 K2_FL0")
    for i in range(7):
        a("ds_read_b32 %s, %s offset:%d", Rm[i], fa, offs[i])
    a.label("K2_FL0")
    a("s_bitcmp1_b32 %s, 0", sfq)
    a("s_cbranch_scc1 K2_FLP1")
    for p in range(2):
        o = 8 * p
        a.label("K2_FLP%d" % p)
        for b in range(4):
            for c in range(3):
                q = Q[b].sub(o + 2 + 2 * c, 2)
                if b == 0:
                    a("v_pk_mul_f32 %s, %s, %s op_sel_hi:[1,0]", tt.sub(2 * c, 2), q, WX.sub(0, 2))
                else:
                    a("v_pk_fma_f32 %s, %s, %s, %s op_sel:[0,%d,0] op_sel_hi:[1,%d,1]", tt.sub(2 * c, 2), q, WX.sub(b & 2, 2),
                      tt.sub(2 * c, 2), b & 1, b & 1)
        a("s_cmp_eq_u32 %s, 0", srmw)
        a("s_cbranch_scc1 K2_FLN%d", p)
        a("s_waitcnt lgkmcnt(0)")
        for nl in range(2):
            for xy in range(2):
                for lh in range(2):
                    q = Q[2 * xy + lh][o + nl]
                    a("v_dot2_f32_bf16 %s, %s, %s, %s", q, Rm[2 * nl + xy], shi if lh else slo, q)
        for c in range(3):
            for nl in range(2):
                a("v_dot2_f32_bf16 %s, %s, %s, %s", tt[2 * c + nl], Rm[4 + c], shi if nl else slo, tt[2 * c + nl])
        a.label("K2_FLN%d" % p)
        ZQ = lambda b, k: a("v_mfma_f32_16x16x16_bf16 %s, %s, %s, 0", Q[b].sub(o + 4 * k, 4), zero.sub(0, 2), zero.sub(0, 2))
        for xy in range(2):
            ZQ(2 * xy, 1)
            for nl in range(2):
                x = T[6 + 2 * nl + xy]
                a("v_cvt_pk_bf16_f32 %s, %s, %s", x, Q[2 * xy][o + nl], Q[2 * xy + 1][o + nl])
                a("ds_write_b32 %s, %s offset:%d", fa, x, offs[2 * nl + xy])
            ZQ(2 * xy + 1, 1)
        for c in range(3):
            a("v_cvt_pk_bf16_f32 %s, %s, %s", tt[2 * c], tt[2 * c], tt[2 * c + 1])
            ZQ(c, 0)
            a("ds_write_b32 %s, %s offset:%d", fa, tt[2 * c], offs[4 + c])
        a("ds_write_b32 %s, %s offset:%d", vflag, one, L_FLAG)
        a("s_cmp_eq_u32 %s, 0", sret)
        ZQ(3, 0)
        a("s_cbranch_scc1 K2_L3")
        if p == 0:
            a("s_branch K2_FLR")
    a.label("K2_FLR")
    a("s_cmp_eq_u32 %s, 1", sret)
    a("s_cbranch_scc1 K2_D1")
    a("s_cmp_eq_u32 %s, 0", smore)
    a("s_cbranch_scc1 K2_FIN")
    a("s_add_u32 %s, %s, %s", sJ, sJ, sq)
    a("s_mov_b32 %s, %d", sq, QF)
    a("s_mov_b32 %s, 1", srnd)
    a("s_branch K2_AGAIN")
    a.label("K2_RETRY")
    a("s_mov_b32 %s, %d", sq, QS)
    a.label("K2_AGAIN")
    a("s_waitcnt vmcnt(0) lgkmcnt(0)")
    a("s_barrier")
    a("v_lshlrev_b32 %s, 3, %s", t3, lane)
    a("ds_write_b64 %s, %s offset:%d", t3, zero.sub(0, 2), L_HIST)
    a("s_waitcnt lgkmcnt(0)")
    a("s_barrier")
    a("s_cmp_lt_u32 %s, 4", sw)
    a("s_cbranch_scc1 K2_GROUND")
    offaddr()
    a("v_and_b32 %s, 255, %s", seg, tid)
    a("v_lshlrev_b32 %s, 4, %s", t0, seg)
    a("buffer_load_dword %s, %s, %s, %s offen", voff, t0, rWS, s0)
    a("s_waitcnt vmcnt(0)")
    a("s_branch K2_ROUND")

    a.label("K2_GDW")
    a("ds_read_b128 %s, %s offset:%d", T.sub(0, 4), zero[0], L_GD)
    a("s_waitcnt lgkmcnt(0)")
    a("v_and_b32 %s, %s, %s", t0, t0, t1)
    a("v_and_b32 %s, %s, %s", t2, t2, t3)
    a("v_and_b32 %s, %s, %s", t0, t0, t2)
    a("s_nop 0")
    a("v_readfirstlane_b32 %s, %s", s0, t0)
    a("s_cmp_eq_u32 %s, 0", s0)
    a("s_cbranch_scc1 K2_GDW")
    a("s_mov_b32 %s, 0", sgd)
    a("s_branch K2_FLA")
    a.label("K2_LAST")
    a("s_cmp_lg_u32 %s, 0", smore)
    a("s_cbranch_scc1 K2_L2")
    dmaWh2()
    a("s_branch K2_L2")
    a.label("K2_BATCH")
    a("s_cmp_eq_u32 %s, 1", s3)
    a("s_cbranch_scc1 K2_BATCH1")
    a("s_add_u32 %s, %s, %s", s0, su, su0)
    a("s_lshl_b32 %s, %s, 6", s0, s0)
    a("s_add_u32 m0, %s, 256", s0)
    if OPT["prio"] % 4 == 0:
        a("s_cmp_lt_u32 %s, %d", su, OPT["prio"])
        a("s_cbranch_scc1 K2_BATCH0")
        a("s_setprio 0")
        a.label("K2_BATCH0")
    stageB()
    stageA0()
    a("s_branch K2_L1")
    a.label("K2_BATCH1")
    if OPT["prio"] % 4 == 1:
        a("s_cmp_lt_u32 %s, %d", su, OPT["prio"])
        a("s_cbranch_scc1 K2_BATCH2")
        a("s_setprio 0")
        a.label("K2_BATCH2")
    a("s_add_u32 %s, %s, 3", s0, su)
    a("s_cmp_ge_u32 %s, %s", s0, snu)
    a("s_cbranch_scc1 K2_L1")
    stageA1(t0)
    a("s_branch K2_L1")
    a.label("K2_INC")
    a("s_add_u32 %s, %s, 2", s0, spa)
    a("s_lshl_b32 m0, %s, 9", s0)
    a("s_add_u32 %s, %s, 1", spa, spa)
    a("s_bitcmp1_b32 %s, 0", spa)
    a("s_cbranch_scc1 K2_INC1")
    loadAp(1)
    a("s_lshr_b32 %s, %s, 1", sfq, spa)
    a("s_sub_u32 %s, %s, 1", sfq, sfq)
    a("s_add_u32 %s, %s, %d", sflu, su, 100 if "nofl" in X else 1)
    a("s_branch K2_L2")
    a.label("K2_INC1")
    loadAp(0)
    a("s_branch K2_L2")

    a.label("K2_FIN")
    ts.stamp(6)
    a("s_setprio 0")
    rO, rP = rBP, rPOS
    fac = [y[0], y[1]]
    g = [e[0].sub(0, 8), e[0].sub(8, 8)]
    hr = e[1]
    ga, ra, rb, so, pa, pp = T[4], T[5], T[6], T[7], T[8], T[9]
    col = T[10]
    a("s_lshr_b32 %s, %s, 1", s2_, sw)
    a("s_and_b32 %s, %s, 1", s3, sw)
    a("v_and_b32 %s, 31, %s", col, lane)
    a("v_lshlrev_b32 %s, 2, %s", so, col)
    a("v_lshl_add_u32 %s, %s, 10, %s", so, vh, so)
    a("s_mul_i32 %s, %s, 24", s4, s2_)
    a("s_add_u32 %s, %s, %s", s0, s4, snb)
    a("s_lshl_b32 %s, %s, 1", s0, s0)
    a("s_add_u32 %s, %s, %s", s0, s0, s3)
    a("s_lshl_b32 %s, %s, 7", su0, s0)
    a("s_add_u32 %s, %s, 4096", snu, su0)
    rowof = lambda r: 8 * (r // 4) + r % 4
    for r in range(14):
        a("buffer_load_dword %s, %s, %s, %s offen offset:%d", hr[r], so, rH, snu if rowof(r) >= 16 else su0, (rowof(r) % 16) * 256)
    a("s_add_u32 %s, %s, %s", s0, s4, s3)
    a("s_lshl_b32 %s, %s, 8", s0, s0)
    a("s_add_u32 %s, %s, %d", s0, s0, L_GT)
    a("v_add_u32 %s, %s, %s", ga, s0, so)
    a("v_add_u32 %s, 128, %s", t3, ga)
    for par in range(2):
        for ip in range(3):
            a("ds_read2st64_b32 %s, %s offset0:%d offset1:%d", g[par].sub(2 * ip, 2), t3 if par else ga, 8 * ip, 8 * ip + 2)
        a("ds_read_b32 %s, %s offset:%d", g[par][6], t3 if par else ga, 24 * 256)
    a("v_add_u32 %s, %s, %s", t0, s4, col)
    a("v_min_u32 %s, 97, %s", t0, t0)
    a("v_lshrrev_b32 %s, 1, %s", t1, t0)
    a("v_and_b32 %s, 1, %s", t0, t0)
    a("v_mul_u32_u24 %s, %d, %s", t1, PB, t1)
    a("v_mul_u32_u24 %s, 272, %s", t0, t0)
    a("v_lshlrev_b32 %s, 4, %s", t2, vh)
    a("v_add_u32 %s, %d, %s", t2, L_MACC, t2)
    a("v_add3_u32 %s, %s, %s, %s", ra, t0, t1, t2)
    a("s_mul_i32 %s, %s, %d", s0, s3, 4 * RS)
    a("s_add_u32 %s, %s, %d", s0, s0, L_RING)
    a("v_lshl_add_u32 %s, %s, 4, %s", rb, lane, s0)
    a("s_lshl_b32 %s, %s, 5", s0, sw)
    a("v_add_u32 %s, %s, %s", t0, s0, col)
    a("v_mul_u32_u24 %s, 171, %s", t1, t0)
    a("v_lshrrev_b32 %s, 9, %s", t1, t1)
    a("v_cmp_gt_u32 vcc, 147, %s", t0)
    a("v_mad_i32_i24 %s, %s, -3, %s", t0, t1, t0)
    a("s_mov_b32 %s, vcc_lo", sval[0])
    a("s_mov_b32 %s, 0", sval[1])
    a("v_mul_u32_u24 %s, %d, %s", pa, PB, t1)
    a("v_lshl_add_u32 %s, %s, 7, %s", pa, t0, pa)
    a("v_add_u32 %s, %s, %s", pa, pa, t2)
    a("v_lshlrev_b32 %s, 5, %s", t3, t1)
    a("v_lshl_add_u32 %s, %s, 2, %s", t3, t0, t3)
    px = psrc.sub(0, 2)
    a("v_add_u32 %s, %d, %s", t3, L_POS, t3)
    a("ds_read2_b32 %s, %s offset0:0 offset1:4", px, t3)
    a("v_mul_u32_u24 %s, 12, %s", pp, t1)
    a("v_lshl_add_u32 %s, %s, 1, %s", pp, t0, pp)
    a("v_lshlrev_b32 %s, 4, %s", t0, col)
    a("v_cmp_gt_u32 vcc, 2, %s", col)
    a("v_lshlrev_b32 %s, %s, %s", t0, t0, one)
    srd(a, rO, P["out"], 0, N * 256)
    for i in range(4):
        a("v_cndmask_b32 %s, 0, %s, vcc", S4[i], t0)
    srd(a, rP, P["out"], N * 256, N * 6)
    stw, str_, stg = T[11], T[12], T[13]
    a("s_lshl_b32 %s, %s, 12", s0, sw)
    a("v_lshl_add_u32 %s, %s, 2, %s", stw, col, s0)
    a("v_lshl_add_u32 %s, %s, 9, %s", stw, vh, stw)
    a("v_lshl_add_u32 %s, %s, 4, %s", str_, lane, s0)
    a("v_lshrrev_b32 %s, 3, %s", t0, lane)
    a("v_and_b32 %s, 7, %s", t1, lane)
    a("v_lshlrev_b32 %s, 4, %s", t1, t1)
    a("v_lshl_add_u32 %s, %s, 8, %s", stg, t0, t1)
    a("s_waitcnt lgkmcnt(0)")
    for par in range(2):
        for i in range(7):
            a("v_lshlrev_b32 %s, 16, %s", fac[par][2 * i], g[par][i])
            a("v_and_b32 %s, 0xffff0000, %s", fac[par][2 * i + 1], g[par][i])
    a("s_waitcnt vmcnt(14)")
    a("s_barrier")
    Af = lambda ks: ldall.sub(4 * (ks & 3), 4)
    Bf = lambda ks, par: Qall.sub(8 * ks + 4 * par, 4)

    def rdF(ks):
        a("ds_read_b128 %s, %s offset:%d", Af(ks), ra, 32 * ks)
        for par in range(2):
            a("ds_read_b128 %s, %s offset:%d", Bf(ks, par), rb, (2 * par + ks // 4) * RS + (ks % 4) * 1024)
    for ks in range(3):
        rdF(ks)
    for ks in range(8):
        if ks + 3 < 8:
            rdF(ks + 3)
        a("s_waitcnt lgkmcnt(%d)", 3 * min(3, 7 - ks))
        for par in range(2):
            a(MF16, fac[par], Af(ks), Bf(ks, par), fac[par])
    a("s_mov_b32 %s, %s", s1, hex(f32(1 + DELTA)))
    a("s_mov_b32 %s, %s", sx[0], hex(LOG2E))
    a("s_mov_b32 %s, %s", sx[1], hex(LOG2E))
    a("s_cmp_gt_u32 %s, 4", sw)
    a("s_cbranch_scc1 K2_F1")
    for ks in range(4):
        a("ds_read_b128 %s, %s offset:%d", Af(ks), pa, 528 + 32 * ks)
    for ks in range(4):
        a("s_waitcnt lgkmcnt(%d)", 3 - ks)
        a(MF16, adr, S4, Af(ks), adr if ks else "0")
    a.label("K2_F1")
    ee = [Q[0], Q[1]]
    hh = [Q[2], Q[3]]

    def fin(r0, r1):
        if r0 == 0:
            a("s_waitcnt vmcnt(0)")
        for r in range(r0, r1):
            a("v_lshlrev_b32 %s, 16, %s", hh[0][r], hr[r])
            a("v_and_b32 %s, 0xffff0000, %s", hh[1][r], hr[r])
        for par in range(2):
            for r in range(r0, r1):
                a("v_mul_f32 %s, %s, %s", fac[par][r], s1, fac[par][r])
        for par in range(2):
            for r in range(r0, r1):
                a("v_exp_f32 %s, -%s", ee[par][r], fac[par][r])
        a("s_nop 0")
        for par in range(2):
            for r in range(r0, r1, 2):
                a("v_pk_fma_f32 %s, %s, %s, %s", ee[par].sub(r, 2), ee[par].sub(r, 2), sx, sx)
        for r in range(r0, r1, 2):
            for par in range(2):
                a("v_rcp_f32 %s, %s", ee[par][r], ee[par][r])
                a("v_rcp_f32 %s, %s", ee[par][r + 1], ee[par][r + 1])
            a("s_nop 0")
            for par in range(2):
                a("v_pk_fma_f32 %s, %s, %s, %s", fac[par].sub(r, 2), fac[par].sub(r, 2), ee[par].sub(r, 2), hh[par].sub(r, 2))
            for q in (r, r + 1):
                a("v_cvt_pk_bf16_f32 %s, %s, %s", fac[0][q], fac[0][q], fac[1][q])
                a("ds_write_b32 %s, %s offset:%d", stw, fac[0][q], rowof(q) * 128)
            if r % 4 == 2 or r == 12:
                i = r // 4
                a("ds_read_b128 %s, %s offset:%d", e[0].sub(4 * i, 4), str_, 1024 * i)
                if 0 < i < 3:
                    a("s_waitcnt lgkmcnt(5)")
                    sto(i - 1)

    def sto(i):
        a("buffer_store_dwordx4 %s, %s, %s, %s offen offset:%d %s", e[0].sub(4 * i, 4), stg, rO, snu if i >= 2 else su0,
          (i & 1) * 2048, OPT["st2"])
    fin(0, 12)
    a("s_waitcnt lgkmcnt(0)")
    sto(2)
    a("s_cmp_lg_u32 %s, 3", s2_)
    a("s_cbranch_scc1 K2_F2")
    fin(12, 14)
    a("s_mov_b64 exec, 0xffff")
    a("s_waitcnt lgkmcnt(0)")
    sto(3)
    a.label("K2_F2")
    a("s_cmp_gt_u32 %s, 4", sw)
    a("s_cbranch_scc1 K2_F3")
    a("v_add_f32 %s, %s, %s", px[0], px[0], adr[0])
    a("v_add_f32 %s, %s, %s", px[1], px[1], adr[1])
    a("v_cvt_pk_bf16_f32 %s, %s, %s", px[0], px[0], px[1])
    a("s_mul_i32 %s, %s, 6", s0, snb)
    a("s_mov_b64 exec, %s", sval)
    a("buffer_store_short %s, %s, %s, %s offen %s", px[0], pp, rP, s0, OPT["st2"])
    a("buffer_store_short_d16_hi %s, %s, %s, %s offen offset:6 %s", px[0], pp, rP, s0, OPT["st2"])
    a.label("K2_F3")
    if OPT["ts"]:
        a("s_waitcnt vmcnt(0)")
        ts.stamp(7)
        ts.dump(P["ws"], sw, t0, t1)
    a.label("K2_END")
    a("s_endpgm")
    return V.hi, S.hi


def gen_probe(a):
    kern, first, cnt, idx, agg, mode = OPT["probe"].split(",")
    kernel_head(a, "egnn_probe_kernel")
    a("s_cmp_ge_u32 s2, 1")
    a("s_cbranch_scc1 K3_END")
    a("s_load_dwordx2 s[4:5], s[0:1], 80")
    a("s_waitcnt lgkmcnt(0)")
    srd(a, R("s", 8, 4), R("s", 4, 2), WS_TS, 0x200000)
    a("v_lshlrev_b32 v1, 9, v0")
    for i in range(8):
        a("s_mov_b32 s3, %d", i * 64 * 512)
        a("buffer_load_dword v%d, v1, s[8:11], s3 offen", 8 + i)
    step = 64 if kern == "1" else 512
    a("v_mul_u32_u24 v1, %d, v0", step)
    for i in range(int(cnt)):
        a("s_mov_b32 s3, %d", int(kern) * 0x100000 + (int(first) + i * 64) * step + 4 * int(idx))
        a("buffer_load_dword v%d, v1, s[8:11], s3 offen", 16 + i)
    a("s_waitcnt vmcnt(0)")
    for i in range(1, 8):
        a("v_min_u32 v8, v8, v%d", 8 + i)
    for i in range(1, int(cnt)):
        a("v_%s_u32 v16, v16, v%d", agg, 16 + i)
    a("s_nop 1")
    a("v_readlane_b32 s12, v8, 0")
    a("v_readlane_b32 s13, v16, 0")
    for l in range(1, 64):
        a("v_readlane_b32 s14, v8, %d", l)
        a("v_readlane_b32 s15, v16, %d", l)
        a("s_min_u32 s12, s12, s14")
        a("s_%s_u32 s13, s13, s15", agg)
    a("s_sub_u32 s13, s13, s12")
    a("s_min_u32 s13, s13, 10000")
    a("s_lshl_b32 s13, s13, 4")
    a("s_add_u32 s13, s13, 5000")
    a("s_mov_b32 s3, 0x1f0000")
    a("v_mov_b32 v1, 0")
    a("buffer_load_dword v2, v1, s[8:11], s3 offen")
    a("s_waitcnt vmcnt(0)")
    a("v_readfirstlane_b32 s14, v2")
    a("v_mov_b32 v2, 0x13572468")
    a("buffer_store_dword v2, v1, s[8:11], s3 offen")
    a("s_cmp_eq_u32 s14, 0x13572468")
    a("s_cselect_b32 s13, %s", "0, s13" if mode == "f" else "s13, 0")
    a("s_memrealtime s[16:17]")
    a("s_waitcnt lgkmcnt(0)")
    a.label("K3_L")
    a("s_memrealtime s[18:19]")
    a("s_waitcnt lgkmcnt(0)")
    a("s_sub_u32 s14, s18, s16")
    a("s_cmp_lt_u32 s14, s13")
    a("s_cbranch_scc1 K3_L")
    a.label("K3_END")
    a("s_endpgm")


def descriptor(name, nv, ns):
    return """.p2align 6
.amdhsa_kernel %s
  .amdhsa_next_free_vgpr %d
  .amdhsa_next_free_sgpr %d
  .amdhsa_accum_offset %d
  .amdhsa_group_segment_fixed_size 0
  .amdhsa_kernarg_size 88
  .amdhsa_user_sgpr_count 2
  .amdhsa_user_sgpr_kernarg_segment_ptr 1
  .amdhsa_system_sgpr_workgroup_id_x 1
.end_amdhsa_kernel
""" % (name, nv, ns, (nv + 3) // 4 * 4)


def build():
    ref = open("standalone__cheap_equivariant_egnn__graph.s.ref").read().split("\n")
    head = [l for l in ref if l.startswith(";") and "@launch" not in l and "Override" not in l and "grid=ceil" not in l]
    head.append("; @launch kernel=egnn_part_kernel grid=(512,1,1) block=(512,1,1) lds=%d" % K1_LDS)
    head.append("; @launch kernel=egnn_main_kernel grid=(256,1,1) block=(512,1,1) lds=%d" % K2_LDS)
    a1, a2, a3 = Asm(), Asm(), Asm()
    if OPT["probe"]:
        head.append("; @launch kernel=egnn_probe_kernel grid=(1,1,1) block=(64,1,1) lds=0")
        gen_probe(a3)
    v1, s1 = gen_k1(a1)
    v2, s2 = gen_k2(a2)
    nb = 0
    for nm, x in (("k1", a1), ("k2", a2)):
        bad, n = check_hazards(x.lines)
        nb += bad
        print("%s: %d instructions, %d hazards" % (nm, n, bad), file=sys.stderr)
    print("k1 v%d s%d lds %d; k2 v%d s%d lds %d" % (v1, s1, K1_LDS, v2, s2, K2_LDS), file=sys.stderr)
    txt = "\n".join(head) + "\n.amdgcn_target \"amdgcn-amd-amdhsa--gfx950\"\n.text\n" + a1.text() + a2.text() + a3.text()
    txt += ".section .rodata,\"a\"\n" + descriptor("egnn_part_kernel", v1, s1) + descriptor("egnn_main_kernel", v2, s2)
    if OPT["probe"]:
        txt += descriptor("egnn_probe_kernel", 64, 32)
    return txt, nb


if __name__ == "__main__":
    out = "standalone__cheap_equivariant_egnn__graph.s"
    for arg in sys.argv[1:]:
        if "=" in arg:
            k, v = arg.split("=", 1)
            if k == "out":
                out = v
            else:
                assert k in OPT, k
                OPT[k] = int(v) if isinstance(OPT[k], int) else v.replace("_", " ")
    txt, nb = build()
    open(out, "w").write(txt)
    sys.exit(1 if nb else 0)
```

```python
import struct, sys, os
sys.path.insert(0, os.path.dirname(os.path.abspath(__file__)))
from asmlib import Asm, Regs, R, check_hazards

N, E = 25000, 400000
BN, CH = 98, 1564
CHB = CH * 8
BIAS = 0x0C000000
WS_BP = BIAS
POS_BASE = 0x00800000
WS_ENT = 0x0D000000
WS_OFF = 0x0D400000
OFS = 4096 + 256
WS_WF = 0x0D480000
WS_W3 = WS_WF + 98304
WS_WX = WS_W3 + 1024
WS_TS = 0x0E000000
WS_SIZE = 268435456
OOR = 0x40000000
LOG2E = 0x3FB8AA3B
LN2 = 0x3F317218
CAP = 2048
DUMMY_S = 0x437F0000

DELTA = 0.0027
OPT = dict(own=0, ldg="", cpf=0, pf=0, probe="", x="", prio=8, ts=0, exactd=0, k1_gemm_first=0, st1="sc1", st2="sc1")

SDWA = "dst_sel:DWORD dst_unused:UNUSED_PAD src0_sel:DWORD src1_sel:%s"
MF16 = "v_mfma_f32_32x32x16_bf16 %s, %s, %s, %s"
MF8 = "v_mfma_f32_32x32x8_bf16 %s, %s, %s, %s"
SMF = "v_smfmac_f32_32x32x32_bf16 %s, %s, %s, %s"


def f32(x):
    return struct.unpack("<I", struct.pack("<f", x))[0]


def srd(a, d, base, off, size):
    if isinstance(off, int) and off == 0:
        a("s_mov_b32 %s, %s", d[0], base[0])
        a("s_mov_b32 %s, %s", d[1], base[1])
    else:
        a("s_add_u32 %s, %s, %s", d[0], base[0], hex(off) if isinstance(off, int) else off)
        a("s_addc_u32 %s, %s, 0", d[1], base[1])
    a("s_mov_b32 %s, %s", d[2], hex(size))
    a("s_mov_b32 %s, 0x20000", d[3])


def wave_scan(a, t):
    for sh in (1, 2, 4, 8):
        a("s_nop 1")
        a("v_add_u32_dpp %s, %s, %s row_shr:%d row_mask:0xf bank_mask:0xf", t, t, t, sh)
    a("s_nop 1")
    a("v_add_u32_dpp %s, %s, %s row_bcast:15 row_mask:0xa bank_mask:0xf", t, t, t)
    a("s_nop 1")
    a("v_add_u32_dpp %s, %s, %s row_bcast:31 row_mask:0xc bank_mask:0xf", t, t, t)


class TS:
    def __init__(self, a, S, n, kern):
        self.a, self.on, self.kern = a, OPT["ts"], kern
        if self.on:
            self.r = S.get(2 * n, 2)
            self.srd = S.get(4, 4)
            self.tmp = S.get(1)
            self.n = n

    def init(self):
        if self.on:
            for i in range(self.n):
                self.a("s_mov_b64 %s, 0", self.r.sub(2 * i, 2))

    def stamp(self, i):
        if self.on:
            self.a("s_memrealtime %s" if self.on == 1 else "s_memtime %s", self.r.sub(2 * i, 2))
            self.a("s_waitcnt lgkmcnt(0)")

    def dump(self, ws, swave, v0, v1):
        if not self.on:
            return
        a = self.a
        srd(a, self.srd, ws, WS_TS + self.kern * 0x100000, 0x100000)
        a("s_mov_b64 exec, -1")
        a("s_lshl_b32 %s, s2, 3", self.tmp)
        a("s_add_u32 %s, %s, %s", self.tmp, self.tmp, swave)
        a("s_lshl_b32 %s, %s, 6", self.tmp, self.tmp)
        a("v_mov_b32 %s, 0", v0)
        for i in range(self.n):
            a("v_mov_b32 %s, %s", v1, self.r[2 * i])
            a("buffer_store_dword %s, %s, %s, %s offen offset:%d", v1, v0, self.srd, self.tmp, 4 * i)


def kernel_head(a, name):
    a(".globl %s", name)
    a(".p2align 8")
    a(".type %s,@function", name)
    a.label(name)


def code_prefetch(a, r, vtmp, vdst, first, last, shift):
    a("s_getpc_b64 %s", r.sub(0, 2))
    lab = "PF_%s_%s" % (first, len(a.lines))
    a.label(lab)
    a("s_add_u32 %s, %s, %s-%s", r[0], r[0], first, lab)
    a("s_addc_u32 %s, %s, 0", r[1], r[1])
    a("s_mov_b32 %s, %s-%s", r[2], last, first)
    a("s_mov_b32 %s, 0x20000", r[3])
    a("v_lshlrev_b32 %s, %d, v0", vtmp, shift)
    a("buffer_load_dword %s, %s, %s, 0 offen", vdst, vtmp, r)


def load_ptrs(a):
    a("s_load_dwordx16 s[4:19], s[0:1], 0")
    a("s_load_dwordx2 s[20:21], s[0:1], 64")
    a("s_load_dwordx2 s[22:23], s[0:1], 80")
    P = {}
    for i, n in enumerate(["h", "pos", "ea", "src", "dst", "we", "wx", "wh", "out", "ws"]):
        P[n] = R("s", 4 + 2 * i, 2)
    return P


K1_LW, K1_LH = 0, 128 * 320
K1_LDS = K1_LH + 128 * 272
K1_HIST, K1_START, K1_STAGE = 0, 1024, 2048


def gen_k1(a):
    S = Regs("s", 24, 96)
    V = Regs("v", 1, 128)
    kernel_head(a, "egnn_part_kernel")
    ts = TS(a, S, 8, 0)
    a("s_cmp_ge_u32 s2, 512")
    a("s_cbranch_scc1 K1_END")
    P = load_ptrs(a)
    ts.init()
    ts.stamp(0)
    tid = R("v", 0)
    lane, t0, t1 = V.get(), V.get(), V.get()
    sw, sc, s0, s1, s2_, s3 = (S.get() for _ in range(6))
    r0, r1, r2, r3, r4 = (S.get(4, 4) for _ in range(5))
    sv = S.get(2, 2)
    a("v_lshrrev_b32 %s, 6, %s", t0, tid)
    a("v_and_b32 %s, 63, %s", lane, tid)
    a("v_readfirstlane_b32 %s, %s", sw, t0)
    a("s_and_b32 %s, s2, 255", sc)
    a("s_cmp_ge_u32 s2, 256")
    a("s_waitcnt lgkmcnt(0)")
    a("s_cbranch_scc%d K1_GEMM", 0 if OPT["k1_gemm_first"] else 1)
    a("s_cmp_eq_u32 %s, 7", sw)
    a("s_cbranch_scc1 K1_PREP")
    m = V.mark()
    dst, src, ea = V.get(4), V.get(4), V.get(2)
    b4, rk, ent = V.get(4), V.get(4), V.get(8)
    cnt, st, z4 = V.get(4), V.get(4), V.get(4)
    off16, one = V.get(), V.get()
    srd(a, r0, P["dst"], 0, E * 4)
    srd(a, r1, P["src"], 0, E * 4)
    srd(a, r2, P["ea"], 0, E * 2)
    a("s_mul_i32 %s, %s, %d", s0, sc, CH * 4)
    a("s_lshr_b32 %s, %s, 1", s1, s0)
    a("v_lshlrev_b32 %s, 4, %s", off16, tid)
    a("v_lshlrev_b32 %s, 3, %s", t0, tid)
    a("buffer_load_dwordx4 %s, %s, %s, %s offen", dst, off16, r0, s0)
    a("buffer_load_dwordx4 %s, %s, %s, %s offen", src, off16, r1, s0)
    a("buffer_load_dwordx2 %s, %s, %s, %s offen", ea, t0, r2, s1)
    for i in range(4):
        a("v_mov_b32 %s, 0", z4[i])
    a("v_lshlrev_b32 %s, 4, %s", t1, lane)
    a("ds_write_b128 %s, %s offset:%d", t1, z4, K1_HIST)
    a("v_mov_b32 %s, 1", one)
    a("s_sub_u32 %s, %d, %s", s2_, E * 4, s0)
    a("s_min_u32 %s, %s, %d", s2_, s2_, CH * 4)
    a("v_cmp_gt_u32 %s, %s, %s", sv, s2_, off16)
    a("s_mul_i32 %s, %s, %d", s0, sc, CHB)
    a("s_add_u32 %s, %s, %s", s0, s0, hex(WS_ENT))
    srd(a, r3, P["ws"], s0, CHB)
    srd(a, r4, P["ws"], WS_OFF, 64 * OFS)
    a("s_mov_b32 %s, 42800", s0)
    a("s_mov_b32 %s, -49", s1)
    a("s_mov_b32 %s, 0xffff0000", s3)
    a("s_waitcnt lgkmcnt(0)")
    a("s_barrier")
    a("s_waitcnt vmcnt(2)")
    ts.stamp(1)
    for k in range(4):
        a("v_mul_u32_u24 %s, %s, %s", b4[k], s0, dst[k])
    for k in range(4):
        a("v_lshrrev_b32 %s, 22, %s", b4[k], b4[k])
    for k in range(4):
        a("v_lshlrev_b32 %s, 2, %s", b4[k], b4[k])
    a("s_mov_b64 exec, %s", sv)
    a("s_cbranch_execz K1_P1")
    for k in range(4):
        a("ds_add_rtn_u32 %s, %s, %s offset:%d", rk[k], b4[k], one, K1_HIST)
    a.label("K1_P1")
    a("s_mov_b64 exec, -1")
    for k in range(4):
        a("v_lshlrev_b32 %s, 1, %s", dst[k], dst[k])
        a("v_mad_i32_i24 %s, %s, %s, %s", dst[k], b4[k], s1, dst[k])
        a("v_and_b32 %s, 12, %s", st[k], dst[k])
        a("v_and_b32 %s, 14, %s", cnt[k], dst[k])
        a("v_add_u32 %s, %s, %s", st[k], st[k], cnt[k])
        a("v_lshl_or_b32 %s, %s, 8, %s", dst[k], st[k], dst[k])
    a("s_waitcnt lgkmcnt(0)")
    a("s_barrier")
    a("ds_read_b128 %s, %s offset:%d", cnt, t1, K1_HIST)
    a("s_waitcnt vmcnt(0)")
    for k in range(4):
        a("v_cvt_f32_ubyte0 %s, %s", ent[2 * k], src[k])
        a("v_or_b32 %s, 0x8000, %s", src[k], src[k])
        a("v_cvt_f32_ubyte1 %s, %s", src[k], src[k])
        a("v_cvt_pk_bf16_f32 %s, %s, %s", ent[2 * k], ent[2 * k], src[k])
        if k % 2 == 0:
            a("v_lshl_or_b32 %s, %s, 16, %s", ent[2 * k + 1], ea[k // 2], dst[k])
        else:
            a("v_and_or_b32 %s, %s, %s, %s", ent[2 * k + 1], ea[k // 2], s3, dst[k])
    a("s_waitcnt lgkmcnt(0)")
    a("v_add_u32 %s, %s, %s", st[2], cnt[0], cnt[1])
    a("v_add_u32 %s, %s, %s", st[3], st[2], cnt[2])
    a("v_add_u32 %s, %s, %s", st[1], st[3], cnt[3])
    a("v_mov_b32 %s, %s", t0, st[1])
    wave_scan(a, t0)
    a("v_sub_u32 %s, %s, %s", st[0], t0, st[1])
    a("v_add_u32 %s, %s, %s", st[1], st[0], cnt[0])
    a("v_add_u32 %s, %s, %s", st[2], st[0], st[2])
    a("v_add_u32 %s, %s, %s", st[3], st[0], st[3])
    a("ds_write_b128 %s, %s offset:%d", t1, st, K1_START)
    for k in range(4):
        a("ds_read_b32 %s, %s offset:%d", dst[k], b4[k], K1_START)
    a("s_cmp_lg_u32 %s, 0", sw)
    a("s_cbranch_scc1 K1_P2")
    for k in range(4):
        a("v_lshl_or_b32 %s, %s, 16, %s", cnt[k], cnt[k], st[k])
    a("v_mul_u32_u24 %s, %d, %s", t0, OFS, lane)
    a("s_lshl_b32 %s, %s, 4", s0, sc)
    a("buffer_store_dwordx4 %s, %s, %s, %s offen %s", cnt, t0, r4, s0, OPT["st1"])
    a.label("K1_P2")
    a("s_waitcnt lgkmcnt(0)")
    for k in range(4):
        a("v_add_lshl_u32 %s, %s, %s, 3", dst[k], dst[k], rk[k])
    a("s_mov_b64 exec, %s", sv)
    a("s_cbranch_execz K1_P3")
    for k in range(4):
        a("ds_write_b64 %s, %s offset:%d", dst[k], ent.sub(2 * k, 2), K1_STAGE)
    a.label("K1_P3")
    a("s_mov_b64 exec, -1")
    a("s_waitcnt lgkmcnt(0)")
    a("s_barrier")
    a("ds_read_b128 %s, %s offset:%d", dst, off16, K1_STAGE)
    a("ds_read_b128 %s, %s offset:%d", src, off16, K1_STAGE + 448 * 16)
    a("s_mov_b32 %s, %d", s0, 448 * 16)
    a("s_waitcnt lgkmcnt(1)")
    a("buffer_store_dwordx4 %s, %s, %s, 0 offen %s", dst, off16, r3, OPT["st1"])
    a("s_waitcnt lgkmcnt(0)")
    a("buffer_store_dwordx4 %s, %s, %s, %s offen %s", src, off16, r3, s0, OPT["st1"])
    ts.stamp(2)
    if OPT["ts"]:
        a("s_waitcnt vmcnt(0)")
        ts.stamp(3)
        ts.dump(P["ws"], sw, t0, t1)
    a("s_endpgm")

    V.reset(m)
    a.label("K1_PREP")
    pa, pb, w = V.get(4), V.get(4), V.get(8)
    col, kh, ad, ad2, ks, o16 = (V.get() for _ in range(6))
    srd(a, r0, P["pos"], 0, N * 6)
    srd(a, r1, P["ws"], POS_BASE + BIAS, N * 16)
    srd(a, r4, P["ws"], WS_WF, 98304 + 2048)
    if OPT["cpf"] & 2:
        a("v_mov_b32 v0, %s", lane)
        code_prefetch(a, r3, t0, ks, "K1_END", "K2_END", 7)
        a("s_mov_b32 %s, 8192", s0)
        a("buffer_load_dword %s, %s, %s, %s offen", ks, t0, r3, s0)
    a("s_mul_i32 %s, %s, %d", s0, sc, BN * 6)
    a("v_mul_u32_u24 %s, 6, %s", t0, lane)
    for j in range(3):
        a("buffer_load_ushort %s, %s, %s, %s offen offset:%d", pa[j], t0, r0, s0, 2 * j)
    for j in range(3):
        a("buffer_load_ushort %s, %s, %s, %s offen offset:%d", pb[j], t0, r0, s0, 384 + 2 * j)
    a("v_and_b32 %s, 31, %s", col, lane)
    a("v_lshrrev_b32 %s, 5, %s", kh, lane)
    a("v_lshlrev_b32 %s, 4, %s", o16, lane)
    a("v_mov_b32 %s, 0", pa[3])
    a("v_mov_b32 %s, 0", pb[3])
    a("s_cmp_ge_u32 %s, 96", sc)
    a("s_cbranch_scc1 K1_PREP_X")
    a("s_and_b32 %s, %s, 7", s1, sc)
    a("s_bfe_u32 %s, %s, 0x20003", s2_, sc)
    a("s_cmp_ge_u32 %s, 32", sc)
    a("s_cbranch_scc1 K1_PREP_H")
    srd(a, r2, P["we"], 0, 258 * 256)
    a("s_lshl_b32 %s, %s, 6", s2_, s2_)
    a("v_lshlrev_b32 %s, 1, %s", ad, col)
    a("s_branch K1_PREP_K")
    a.label("K1_PREP_H")
    srd(a, r2, P["wh"], 0, 256 * 256)
    a("s_and_b32 %s, %s, 1", s3, s2_)
    a("s_lshr_b32 %s, %s, 1", s2_, s2_)
    a("s_lshl_b32 %s, %s, 6", s2_, s2_)
    a("s_add_u32 %s, %s, %s", s2_, s2_, s3)
    a("s_lshl_b32 %s, %s, 1", s2_, s2_)
    a("v_lshlrev_b32 %s, 2, %s", ad, col)
    a("s_cmp_ge_u32 %s, 64", sc)
    a("s_cbranch_scc1 K1_PREP_H2")
    a.label("K1_PREP_K")
    a("s_lshl_b32 %s, %s, 12", s1, s1)
    a("s_add_u32 %s, %s, %s", s1, s1, s2_)
    a("v_lshl_add_u32 %s, %s, 11, %s", ad, kh, ad)
    for j in range(8):
        a("buffer_load_ushort %s, %s, %s, %s offen offset:%d", w[j], ad, r2, s1, 256 * j)
    a("s_branch K1_PREP_W")
    a.label("K1_PREP_H2")
    a("s_lshr_b32 %s, %s, 2", s3, s1)
    a("s_lshl_b32 %s, %s, 6", s3, s3)
    a("s_and_b32 %s, %s, 3", s1, s1)
    a("s_lshl_b32 %s, %s, 3", s1, s1)
    a("s_add_u32 %s, %s, %s", s1, s1, s3)
    a("s_add_u32 %s, %s, 128", s1, s1)
    a("s_lshl_b32 %s, %s, 8", s1, s1)
    a("s_add_u32 %s, %s, %s", s1, s1, s2_)
    a("v_lshl_add_u32 %s, %s, 10, %s", ad, kh, ad)
    a("v_add_u32 %s, 8192, %s", ad2, ad)
    for j in range(8):
        a("buffer_load_ushort %s, %s, %s, %s offen offset:%d", w[j], ad2 if j & 1 else ad, r2, s1, 256 * (j >> 1))
    a.label("K1_PREP_W")
    a("s_barrier\ns_barrier\ns_barrier\ns_waitcnt vmcnt(0)")
    for j in range(4):
        a("v_lshl_or_b32 %s, %s, 16, %s", w[j], w[2 * j + 1], w[2 * j])
    a("s_lshl_b32 %s, %s, 10", s1, sc)
    a("buffer_store_dwordx4 %s, %s, %s, %s offen %s", w.sub(0, 4), o16, r4, s1, OPT["st1"])
    a("s_branch K1_PREP_P2")
    a.label("K1_PREP_X")
    a("s_cmp_gt_u32 %s, 97", sc)
    a("s_cbranch_scc1 K1_PREP_P")
    a("s_cmp_eq_u32 %s, 97", sc)
    a("s_cbranch_scc1 K1_PREP_WX")
    srd(a, r2, P["we"], 0, 258 * 256)
    a("v_lshlrev_b32 %s, 1, %s", ad, lane)
    a("s_mov_b32 %s, 65536", s1)
    for xy in range(2):
        a("buffer_load_ushort %s, %s, %s, %s offen offset:%d", w[4 + 2 * xy], ad, r2, s1, 128 * xy)
        a("buffer_load_ushort %s, %s, %s, %s offen offset:%d", w[5 + 2 * xy], ad, r2, s1, 256 + 128 * xy)
    a("s_barrier\ns_barrier\ns_barrier\ns_waitcnt vmcnt(0)")
    for j in range(4, 8):
        a("v_lshlrev_b32 %s, 16, %s", w[j], w[j])
        a("v_mul_f32 %s, %s, %s", w[j], hex(LOG2E), w[j])
    for xy in range(2):
        d_, a_ = w[4 + 2 * xy], w[5 + 2 * xy]
        a("v_cvt_pk_bf16_f32 %s, %s, %s", w[2 * xy], d_, a_)
        a("v_lshlrev_b32 %s, 16, %s", t0, w[2 * xy])
        a("v_and_b32 %s, 0xffff0000, %s", t1, w[2 * xy])
        a("v_sub_f32 %s, %s, %s", d_, d_, t0)
        a("v_sub_f32 %s, %s, %s", a_, a_, t1)
        a("v_cvt_pk_bf16_f32 %s, %s, %s", w[2 * xy + 1], d_, a_)
    a("s_mov_b32 %s, 98304", s1)
    a("buffer_store_dwordx4 %s, %s, %s, %s offen %s", w.sub(0, 4), o16, r4, s1, OPT["st1"])
    a("s_branch K1_PREP_P2")
    a.label("K1_PREP_WX")
    srd(a, r2, P["wx"], 0, 256)
    a("v_lshlrev_b32 %s, 1, %s", ad, col)
    for j in range(4):
        a("buffer_load_ushort %s, %s, %s, 0 offen offset:%d", w[j], ad, r2, 64 * j)
    a("s_barrier\ns_barrier\ns_barrier\ns_waitcnt vmcnt(0)")
    for j in range(4):
        a("v_lshlrev_b32 %s, 16, %s", w[j], w[j])
        a("v_mul_f32 %s, %s, %s", w[j], hex(f32(0.6931471805599453 * (1 + DELTA))), w[j])
    a("s_mov_b32 %s, %d", s1, 98304 + 1024)
    a("buffer_store_dwordx4 %s, %s, %s, %s offen %s", w.sub(0, 4), o16, r4, s1, OPT["st1"])
    a("s_branch K1_PREP_P2")
    a.label("K1_PREP_P")
    a("s_barrier\ns_barrier\ns_barrier\ns_waitcnt vmcnt(0)")
    a.label("K1_PREP_P2")
    for j in range(3):
        a("v_lshlrev_b32 %s, 16, %s", pa[j], pa[j])
        a("v_lshlrev_b32 %s, 16, %s", pb[j], pb[j])
    a("s_mul_i32 %s, %s, %d", s0, sc, BN * 16)
    a("buffer_store_dwordx4 %s, %s, %s, %s offen %s", pa, o16, r1, s0, OPT["st1"])
    a("s_mov_b32 exec_hi, 3")
    a("buffer_store_dwordx4 %s, %s, %s, %s offen offset:1024 %s", pb, o16, r1, s0, OPT["st1"])
    a("s_endpgm")

    V.reset(m)
    a.label("K1_GEMM")
    ts.stamp(4)
    a("s_and_b32 %s, %s, 7", s0, sc)
    a("s_lshr_b32 %s, %s, 3", s1, sc)
    a("s_lshl_b32 %s, %s, 5", sc, s0)
    a("s_add_u32 %s, %s, %s", sc, sc, s1)
    o16, aw, ah, ar, br, so, sg = (V.get() for _ in range(7))
    hv = V.get(16, 4)
    acc = [V.get(16, 4), V.get(16, 4)]
    wv = acc[0]
    bf = V.get(64, 4)
    srd(a, r1, P["we"], 32768, 32768)
    a("v_lshlrev_b32 %s, 4, %s", o16, tid)
    for i in range(4):
        if i:
            a("s_mov_b32 %s, %d", s1, 8192 * i)
        a("buffer_load_dwordx4 %s, %s, %s, %s offen", wv.sub(4 * i, 4), o16, r1, s1 if i else "0")
    srd(a, r0, P["h"], 0, N * 256)
    a("s_mul_i32 %s, %s, %d", s0, sc, BN * 256)
    for i in range(4):
        if i:
            a("s_add_u32 %s, %s, %d", s1, s0, 8192 * i)
        if i == 3:
            a("s_cmp_lt_u32 %s, 2", sw)
            a("s_cselect_b32 %s, %s, %s", s1, s1, hex(OOR))
        a("buffer_load_dwordx4 %s, %s, %s, %s offen", hv.sub(4 * i, 4), o16, r0, s1 if i else s0)
    srd(a, r2, P["ws"], WS_BP, N * 256)
    NJ = 0
    if OPT["own"]:
        NJ = 1
        a("v_lshlrev_b32 %s, %d, %s", t0, OPT["own"], tid)
        a("v_cmp_gt_u32 vcc, %d, %s", BN * 256, t0)
        a("v_mov_b32 %s, %s", t1, hex(OOR))
        a("s_nop 0")
        a("v_cndmask_b32 %s, %s, %s, vcc", t0, t1, t0)
        a("buffer_store_dword %s, %s, %s, %s offen %s", t1, t0, r2, s0, OPT["st1"])
    a("v_lshrrev_b32 %s, 4, %s", t0, tid)
    a("v_lshl_add_u32 %s, %s, 6, %s", aw, t0, o16)
    a("v_lshl_add_u32 %s, %s, 4, %s", ah, t0, o16)
    a("v_add_u32 %s, %d, %s", ah, K1_LH, ah)
    a("s_lshr_b32 %s, %s, 1", s2_, sw)
    a("s_and_b32 %s, %s, 1", s3, sw)
    a("v_and_b32 %s, 31, %s", t0, lane)
    a("v_lshrrev_b32 %s, 5, %s", t1, lane)
    a("v_mul_u32_u24 %s, 272, %s", ar, t0)
    a("v_lshl_add_u32 %s, %s, 4, %s", ar, t1, ar)
    a("s_mul_i32 %s, %s, %d", s1, s2_, 24 * 272)
    a("s_add_u32 %s, %s, %d", s1, s1, K1_LH)
    a("v_add_u32 %s, %s, %s", ar, s1, ar)
    a("s_lshl_b32 %s, %s, 12", s1, sw)
    a("v_lshl_add_u32 %s, %s, 2, %s", so, t0, s1)
    a("v_lshl_add_u32 %s, %s, 9, %s", so, t1, so)
    a("v_bfe_u32 %s, %s, 2, 2", br, lane)
    a("v_lshl_add_u32 %s, %s, 3, %s", br, t1, br)
    a("v_mul_u32_u24 %s, 320, %s", br, br)
    a("v_bfe_u32 %s, %s, 4, 1", t0, lane)
    a("v_lshl_add_u32 %s, %s, 5, %s", br, t0, br)
    a("v_and_b32 %s, 3, %s", t0, lane)
    a("v_lshl_add_u32 %s, %s, 3, %s", br, t0, br)
    a("s_lshl_b32 %s, %s, 7", s3, s3)
    a("v_add_u32 %s, %s, %s", br, s3, br)
    a("v_lshl_add_u32 %s, %s, 4, %s", o16, lane, s1)
    a("v_lshrrev_b32 %s, 3, %s", t0, lane)
    a("v_and_b32 %s, 7, %s", t1, lane)
    a("v_lshlrev_b32 %s, 4, %s", t1, t1)
    a("v_lshl_add_u32 %s, %s, 8, %s", sg, t0, t1)
    a("s_mul_i32 %s, %s, %d", s1, s2_, 24 * 256)
    a("s_add_u32 %s, %s, %s", s0, s0, s1)
    a("s_add_u32 %s, %s, %s", s0, s0, s3)
    a("s_add_u32 %s, %s, 4096", s1, s0)
    a("s_mov_b32 %s, %s", sv[0], hex(LOG2E))
    a("s_mov_b32 %s, %s", sv[1], hex(LOG2E))
    ts.stamp(5)
    for i in range(4):
        a("s_waitcnt vmcnt(%d)", 7 - i + NJ)
        a("ds_write_b128 %s, %s offset:%d", aw, wv.sub(4 * i, 4), K1_LW + 32 * 320 * i)
    a("s_waitcnt lgkmcnt(0)")
    ts.stamp(6)
    a("s_barrier")
    for ks in range(8):
        for lh in range(2):
            for i in range(2):
                a("ds_read_b64_tr_b16 %s, %s offset:%d", bf.sub(8 * ks + 4 * lh + 2 * i, 2), br,
                  K1_LW + (16 * ks + 4 * i) * 320 + 64 * lh)
    ts.stamp(7)
    for i in range(4):
        a("s_waitcnt vmcnt(%d)", 3 - i + NJ)
        a("ds_write_b128 %s, %s offset:%d", ah, hv.sub(4 * i, 4), 32 * 272 * i)
    a("s_waitcnt lgkmcnt(0)")
    ts.stamp(1)
    a("s_barrier")
    rd = lambda ks: a("ds_read_b128 %s, %s offset:%d", hv.sub(4 * (ks & 3), 4), ar, 32 * ks)
    for ks in range(4):
        rd(ks)
    for ks in range(8):
        a("s_waitcnt lgkmcnt(%d)", min(3, 7 - ks))
        for lh in range(2):
            a(MF16, acc[lh], hv.sub(4 * (ks & 3), 4), bf.sub(8 * ks + 4 * lh, 4), acc[lh] if ks else "0")
        if ks < 4:
            rd(ks + 4)
    if NJ:
        a("s_waitcnt vmcnt(0)")
        a("s_barrier")
    a("s_nop 11")

    def fin(r0_, r1_):
        for r in range(r0_, r1_, 2):
            for lh in range(2):
                a("v_pk_mul_f32 %s, %s, %s", acc[lh].sub(r, 2), acc[lh].sub(r, 2), sv)
            for q in (r, r + 1):
                a("v_cvt_pk_bf16_f32 %s, %s, %s", acc[0][q], acc[0][q], acc[1][q])
                a("ds_write_b32 %s, %s offset:%d", so, acc[0][q], (8 * (q // 4) + q % 4) * 128)
            if r % 4 == 2 or r == 12:
                i = r // 4
                a("ds_read_b128 %s, %s offset:%d", hv.sub(4 * i, 4), o16, 1024 * i)
                if 0 < i < 3:
                    a("s_waitcnt lgkmcnt(5)")
                    sto(i - 1)

    def sto(i):
        a("buffer_store_dwordx4 %s, %s, %s, %s offen offset:%d %s", hv.sub(4 * i, 4), sg, r2, s1 if i >= 2 else s0,
          (i & 1) * 2048, OPT["st1"])
    fin(0, 12)
    a("s_waitcnt lgkmcnt(0)")
    sto(2)
    a("s_cmp_lg_u32 %s, 3", s2_)
    a("s_cbranch_scc1 K1_G_END")
    fin(12, 14)
    a("s_mov_b64 exec, 0xffff")
    a("s_waitcnt lgkmcnt(0)")
    sto(3)
    a.label("K1_G_END")
    ts.stamp(2)
    if OPT["ts"]:
        a("s_waitcnt vmcnt(0)")
        ts.stamp(3)
        ts.dump(P["ws"], sw, t0, t1)
    a.label("K1_END")
    a("s_endpgm")
    return V.hi, S.hi


L_AT = 0
L_S = 49 * 512
L_E = L_S + (CAP + 128) * 4
L_HIST = L_E + (CAP + 128) * 4
L_FLAG = L_HIST + 256
L_START = L_FLAG + 256
L_GD = L_START + 256
L_POS = L_GD + 16
L_GT = L_POS + 2048
L_RING = L_GT + 49 * 512
PS = 2048 + 128
RS = 1024 + PS + 2048
L_MACC = L_RING + 8 * RS
PB = 928
K2_LDS = L_MACC + 50 * PB
L_H = L_MACC
assert L_S % 256 == 0 and L_E % 256 == 0 and K2_LDS <= 163840 and 112 * 272 <= 49 * PB
LOOR = 0x80000
QF, QS = 24, 4
assert 256 * QS + 49 * 16 <= CAP


def gen_k2(a):
    S = Regs("s", 24, 102)
    V = Regs("v", 1, 256)
    kernel_head(a, "egnn_main_kernel")
    ts = TS(a, S, 8, 1)
    a("s_cmp_ge_u32 s2, 256")
    a("s_cbranch_scc1 K2_END")
    P = load_ptrs(a)
    ts.init()
    ts.stamp(0)
    tid = R("v", 0)
    lane, vh, fbase, tb16, tb32, bS4, bOH, pS4, pOH, bE, bS, bP, posc, isel, iseg, vflag = (V.get() for _ in range(16))
    Q = [V.get(16, 4) for _ in range(4)]
    Qall = R("v", Q[0].i, 64)
    y = [V.get(16, 4), V.get(16, 4)]
    yall = R("v", y[0].i, 32)
    e = [V.get(16, 4), V.get(16, 4)]
    eall = R("v", e[0].i, 32)
    adr = V.get(16, 4)
    ldall = V.get(16, 4)
    ld = [ldall.sub(0, 8), ldall.sub(8, 8)]
    sel, zero = V.get(4, 4), V.get(4, 4)
    Bop = [V.get(4, 4), V.get(4, 4)]
    WX, oh, S4 = V.get(4, 4), V.get(4, 4), V.get(4, 4)
    psrc, pdst = V.get(4, 4), V.get(4, 4)
    ones, aB, aA, c64 = V.get(2), V.get(2), V.get(2), V.get(2)
    one = c64[0]
    T = V.get(24, 4)
    rBP, rPOS, rWS, rH = (S.get(4, 4) for _ in range(4))
    (sw, snb, sJ, sq, sfirst, smore, stot, sU, snu, su0, su, spa, sinc, sflu, sfq, sret, srmw, srnd, sql, sshr,
     snr, sgd) = (S.get() for _ in range(22))
    s0, s1, s2_, s3, s4, sdot, slo, shi = (S.get() for _ in range(8))
    sval, sx = S.get(2, 2), S.get(2, 2)
    t0, t1, t2, t3 = T[0], T[1], T[2], T[3]
    X = OPT["x"]
    if OPT["cpf"] & 1:
        code_prefetch(a, rBP, t0, T[15], "K2_ROUND", "K2_END", 7)

    a("v_lshrrev_b32 %s, 6, %s", t0, tid)
    a("v_and_b32 %s, 63, %s", lane, tid)
    a("v_readfirstlane_b32 %s, %s", sw, t0)
    a("s_and_b32 %s, s2, 7", s0)
    a("s_lshr_b32 %s, s2, 3", s1)
    a("s_lshl_b32 %s, %s, 5", snb, s0)
    a("s_add_u32 %s, %s, %s", snb, snb, s1)
    a("s_mul_i32 %s, %s, %d", snb, snb, BN)
    ent = Qall.sub(0, 48)
    rk, bn = yall.sub(0, 24), eall.sub(0, 24)
    stv = R("v", adr.i, 24)
    voff, vrem, vea, seg = T[20], T[21], T[22], T[23]
    hst = R("v", adr.i, 28)
    Wf = [yall, eall]
    acc = Q
    o16, l16 = T[18], T[19]
    a("v_and_b32 %s, 255, %s", seg, tid)
    a("v_lshlrev_b32 %s, 4, %s", o16, seg)
    a("v_lshlrev_b32 %s, 4, %s", l16, lane)
    for i in range(4):
        a("v_mov_b32 %s, 0", zero[i])
    a("v_lshrrev_b32 %s, 5, %s", vh, lane)
    a("v_and_b32 %s, 31, %s", t0, lane)
    a("v_lshlrev_b32 %s, 2, %s", t1, t0)
    a("v_mul_u32_u24 %s, %d, %s", t2, PB, vh)
    a("s_mov_b32 %s, %d", s0, L_MACC)
    a("v_add3_u32 %s, %s, %s, %s", fbase, t1, t2, s0)
    a("v_mov_b32 %s, 0x3f80", c64[0])
    a("v_mov_b32 %s, 0", c64[1])
    a("v_mov_b32 %s, 0x3f003f00", ones[0])
    a("v_mov_b32 %s, 0", ones[1])
    a("v_mov_b32 %s, 0x3f80", aA[1])
    a("v_mov_b32 %s, 0xdddd", iseg)
    a("v_mov_b32 %s, %s", posc, hex(f32((2.0 ** 23 - 2.0 ** 19) * 2.0 ** -126)))
    a("s_mov_b32 %s, %s", sdot, hex((5 << 7) | (13 << 23)))
    a("s_mov_b32 %s, 0x3f80", slo)
    a("s_mov_b32 %s, 0x3f800000", shi)
    a("v_cvt_f32_u32 %s, %s", t1, t1)
    a("v_mul_f32 %s, 0x00800000, %s", t1, t1)
    a("v_lshrrev_b32 %s, 16, %s", t1, t1)
    a("v_cmp_gt_u32 vcc, 32, %s", lane)
    a("v_mov_b32 %s, %s", t2, hex((9 << 7) | (17 << 23)))
    a("s_mul_i32 %s, %s, %d", s0, sw, RS)
    a("s_add_u32 %s, %s, %d", s0, s0, L_RING)
    a("s_add_u32 %s, %s, 1024", s1, s0)
    a("v_cndmask_b32 %s, 0, %s, vcc", aB[0], t2)
    a("v_cndmask_b32 %s, 0, %s, vcc", aB[1], t1)
    a("v_add_u32 %s, %s, %s", tb16, s0, l16)
    a("v_lshl_add_u32 %s, %s, 5, %s", tb32, lane, s1)
    a("v_and_b32 %s, 0xf0, %s", t1, l16)
    a("v_add_u32 %s, %s, %s", t1, s0, t1)
    a("v_add_u32 %s, -16, %s", t2, lane)
    a("v_cmp_gt_u32 vcc, 32, %s", t2)
    a("v_mov_b32 %s, %s", t2, hex(LOOR))
    a("v_bfe_u32 %s, %s, 2, 2", t3, lane)
    a("v_cndmask_b32 %s, %s, %s, vcc", bOH, t1, t2)
    a("v_cmp_eq_u32 vcc, 0, %s", lane)
    a("s_lshl_b32 %s, %s, 2", s2_, sw)
    a("v_mov_b32 %s, %s", t1, s2_)
    a("v_cndmask_b32 %s, %s, %s, vcc", vflag, t2, t1)
    a("v_lshl_add_u32 %s, %s, 3, %s", t3, vh, t3)
    a("v_lshlrev_b32 %s, 5, %s", t3, t3)
    a("v_and_b32 %s, 1, %s", t1, lane)
    a("v_lshl_add_u32 %s, %s, 3, %s", t3, t1, t3)
    a("v_and_b32 %s, 16, %s", t2, lane)
    a("v_add_u32 %s, %s, %s", t3, t3, t2)
    a("v_bfe_u32 %s, %s, 1, 1", t0, lane)
    a("v_mul_u32_u24 %s, %d, %s", t0, PS, t0)
    a("v_add3_u32 %s, %s, %s, %s", bS4, t0, t3, s1)
    a("v_lshrrev_b32 %s, 4, %s", t2, t2)
    a("v_lshl_add_u32 %s, %s, 1, %s", t1, t1, t2)
    a("v_mul_u32_u24 %s, 0x5555, %s", isel, t1)
    a("v_bfe_u32 %s, %s, 1, 3", t1, lane)
    a("v_lshlrev_b32 %s, 2, %s", t3, vh)
    a("v_xor_b32 %s, %s, %s", t1, t1, t3)
    for t in range(4):
        a("v_cmp_eq_u32 vcc, %d, %s", t, t1)
        a("s_nop 1")
        a("v_cndmask_b32 %s, 0, %s, vcc", sel[t], one)
    a("s_mov_b32 %s, 0", sJ)
    a("s_mov_b32 %s, %d", sq, QF)
    a("s_mov_b32 %s, 3", sfirst)
    a("s_mov_b32 %s, 0", srnd)
    a("s_mov_b32 %s, 1", sgd)

    def offaddr():
        a("s_lshr_b32 %s, s2, 5", s1)
        a("s_and_b32 %s, s2, 7", s0)
        a("s_lshl_b32 %s, %s, 3", s0, s0)
        a("s_add_u32 %s, %s, %s", s0, s0, s1)
        a("s_mul_i32 %s, %s, %d", s0, s0, OFS)
        a("s_bfe_u32 %s, s2, 0x20003", s1)
        a("s_lshl_b32 %s, %s, 2", s1, s1)
        a("s_add_u32 %s, %s, %s", s0, s0, s1)
        a("s_add_u32 %s, %s, %s", s0, s0, hex(WS_OFF))

    def small():
        a("s_mov_b32 %s, %s", s0, hex(WS_W3))
        a("buffer_load_dwordx2 %s, %s, %s, %s offen", Bop[0].sub(2, 2), l16, rWS, s0)
        a("buffer_load_dwordx2 %s, %s, %s, %s offen offset:8", Bop[1].sub(2, 2), l16, rWS, s0)
        a("buffer_load_dwordx4 %s, %s, %s, %s offen offset:1024", WX, l16, rWS, s0)
    offaddr()
    a("v_lshlrev_b32 %s, 3, %s", t3, lane)
    a("ds_write_b64 %s, %s offset:%d", t3, zero.sub(0, 2), L_HIST)
    a("s_waitcnt lgkmcnt(0)")
    a("s_barrier")
    srd(a, rWS, P["ws"], 0, WS_SIZE)
    srd(a, rH, P["h"], 0, N * 256)
    srd(a, rPOS, P["ws"], POS_BASE, BIAS + N * 16)
    srd(a, rBP, P["ws"], 0, BIAS + N * 256)
    a("s_cmp_lt_u32 %s, 4", sw)
    a("s_cbranch_scc1 K2_G0")
    if "lateprio" not in X:
        a("s_setprio 2")
    a("buffer_load_dword %s, %s, %s, %s offen", voff, o16, rWS, s0)
    small()
    a("s_waitcnt vmcnt(3)")
    a.label("K2_ROUND")
    ts.stamp(1)
    a("v_lshrrev_b32 %s, 16, %s", vrem, voff)
    a("v_and_b32 %s, 0xffff, %s", t0, voff)
    a("v_subrev_u32 %s, %s, %s", vrem, sJ, vrem)
    a("v_mul_u32_u24 %s, %d, %s", t2, CHB, seg)
    a("v_cmp_lt_i32 %s, %s, %s", sx, sq, vrem)
    a("v_min_i32 %s, %s, %s", vrem, sq, vrem)
    a("v_add_u32 %s, %s, %s", t0, sJ, t0)
    a("v_lshl_add_u32 %s, %s, 3, %s", vea, t0, t2)
    a("s_mov_b32 %s, %s", s0, hex(WS_ENT))
    for i in range(QF // 2):
        a("v_cmpx_lt_i32 vcc, %d, %s", 2 * i, vrem)
        a("s_cbranch_execz K2_R1")
        a("buffer_load_dwordx4 %s, %s, %s, %s offen offset:%d", ent.sub(4 * i, 4), vea, rWS, s0, 16 * i)
        if "ent%d," % (i + 1) in X:
            a("s_mov_b64 exec, -1")
            a("s_waitcnt vmcnt(0)")
            ts.stamp(2)
    a.label("K2_R1")
    a("s_mov_b64 exec, -1")
    a("v_mov_b32 %s, 1", t1)
    a("s_mov_b64 exec, %s", sx)
    a("s_cbranch_execz K2_R2")
    a("ds_write_b32 %s, %s offset:%d", zero[0], t1, L_HIST + 63 * 4)
    a.label("K2_R2")
    a("s_mov_b64 exec, -1")
    a("s_mov_b32 %s, 0", snr)
    a("s_waitcnt vmcnt(0)")
    if "ent" not in X:
        ts.stamp(2)
    for k in range(QF):
        a("v_cmpx_lt_i32 vcc, %d, %s", k, vrem)
        if k % 2 == 0:
            a("s_cbranch_execz K2_R3")
            a("s_mov_b32 %s, %d", snr, k + 2)
        a("v_and_b32 %s, 0xfc, %s", bn[k], ent[2 * k + 1])
        a("ds_add_rtn_u32 %s, %s, %s offset:%d", rk[k], bn[k], t1, L_HIST)
    a.label("K2_R3")
    a("s_mov_b64 exec, -1")
    a("s_waitcnt lgkmcnt(0)")
    a("s_barrier")
    a("s_branch K2_R4")

    ar, wa = T[16], T[17]
    PF = OPT["pf"]

    def gemm(g, abuf, nb):
        seq = [(rt, ks) for rt in range(4) for ks in range(8)]
        afb = lambda n: abuf.sub(4 * (n % nb), 4)
        order = []

        def rdA(n):
            a("ds_read_b128 %s, %s offset:%d", afb(n), ar, seq[n][0] * 24 * 272 + 32 * seq[n][1])
            order.append(n)

        def out(rt, i):
            a("v_mul_f32 %s, %s, %s", acc[rt][2 * i], s4, acc[rt][2 * i])
            a("v_mul_f32 %s, %s, %s", acc[rt][2 * i + 1], s4, acc[rt][2 * i + 1])
            a("v_cvt_pk_bf16_f32 %s, %s, %s", acc[rt][2 * i], acc[rt][2 * i], acc[rt][2 * i + 1])

        def wr(rt, i):
            o = (12 * rt + 4 * (i // 2)) * 2
            if i == 6:
                a("s_mov_b32 exec_hi, 0")
                a("ds_write_b32 %s, %s offset:%d", wa, acc[rt][12], o * 256)
                a("s_mov_b64 exec, -1")
            else:
                a("ds_write2st64_b32 %s, %s, %s offset0:%d offset1:%d", wa, acc[rt][2 * i], acc[rt][2 * i + 2], o, o + 2)
            order.append("w")
        a("s_mov_b32 %s, %s", s4, hex(f32(1.4426950408889634 / (1 + DELTA)) if g else LOG2E))
        for n in range(nb):
            rdA(n)
        for n, (rt, ks) in enumerate(seq):
            w = []
            if n % 2 == 0:
                w.append("lgkmcnt(%d)" % (len(order) - 1 - order.index(n + 1)))
                if g == 0 and n < 8:
                    w.append("vmcnt(%d)" % (6 - n))
                a("s_waitcnt " + " ".join(reversed(w)))
            a(MF16, acc[rt], afb(n), Wf[g].sub(4 * ks, 4), acc[rt] if ks else "0")
            if n + nb < 32:
                rdA(n + nb)
            if rt > 0 and ks in (4, 6):
                wr(rt - 1, ks - 4)
            if rt > 1 and ks == 0:
                wr(rt - 2, 4)
            if n == 8 and g == 0:
                late()
            elif n in (8, 24):
                a("s_nop %d", 4 if n == 8 else 1)
            if rt > 0 and ks >= 2:
                out(rt - 1, ks - 2)
        wr(2, 4)
        if g:
            a("ds_add_u32 %s, %s offset:%d", vflag, one, L_GD)
        a("s_nop %d", 6 if g else 7)
        for i in range(7):
            out(3, i)
            if i % 2 == 1 or i == 6:
                wr(3, i & ~1)

    a.label("K2_G0")
    a("s_lshl_b32 %s, %s, 8", s0, snb)
    if "noh" in X:
        a("s_mov_b32 %s, %s", s0, hex(OOR))
    for i in range(7):
        if i:
            a("s_add_u32 %s, %s, %d", s1, s0, 4096 * i)
        if i == 6:
            a("s_cmp_lt_u32 %s, 2", sw)
            a("s_cselect_b32 %s, %s, %s", s1, s1, hex(OOR))
        a("buffer_load_dwordx4 %s, %s, %s, %s offen", hst.sub(4 * i, 4), o16, rH, s1 if i else s0)
    a("s_lshl_b32 %s, %s, 4", s1, snb)
    a("s_add_u32 %s, %s, %s", s1, s1, hex(BIAS))
    a("s_cmp_lt_u32 %s, 2", sw)
    a("s_cselect_b32 %s, %s, %s", s1, s1, hex(OOR))
    a("buffer_load_dwordx4 %s, %s, %s, %s offen", psrc, o16, rPOS, s1)
    a("s_lshl_b32 %s, %s, 13", s2_, sw)
    if "now" in X:
        a("s_mov_b32 %s, %s", s2_, hex(OOR))

    def wload(g):
        a("s_add_u32 %s, %s, %s", s1, s2_, hex(WS_WF + (g >> 1) * 32768 + (g & 1) * 4096))
        for k in range(4):
            a("buffer_load_dwordx4 %s, %s, %s, %s offen offset:%d", Wf[g >> 1].sub(16 * (g & 1) + 4 * k, 4), l16, rWS, s1, k * 1024)
    wload(0)
    wload(1)
    a("v_lshrrev_b32 %s, 4, %s", t0, tid)
    a("v_lshl_add_u32 %s, %s, 4, %s", t0, t0, o16)
    a("v_add_u32 %s, %d, %s", t0, L_H, t0)
    a("v_and_b32 %s, 31, %s", t1, lane)
    a("v_mul_u32_u24 %s, 272, %s", ar, t1)
    a("v_lshl_add_u32 %s, %s, 4, %s", ar, vh, ar)
    a("v_add_u32 %s, %d, %s", ar, L_H, ar)
    a("v_lshlrev_b32 %s, 2, %s", wa, t1)
    a("v_lshl_add_u32 %s, %s, 10, %s", wa, vh, wa)
    a("s_lshl_b32 %s, %s, 7", s0, sw)
    a("v_add_u32 %s, %s, %s", wa, s0, wa)
    a("ds_write_b32 %s, %s offset:%d", vflag, zero[0], L_GD)
    for i in range(7):
        a("s_waitcnt vmcnt(%d)", 15 - i)
        a("ds_write_b128 %s, %s offset:%d", t0, hst.sub(4 * i, 4), 16 * 272 * i)
    a("s_cmp_ge_u32 %s, 2", sw)
    a("s_cbranch_scc1 K2_G1")
    a("s_waitcnt vmcnt(8)")
    a("ds_write_b128 %s, %s offset:%d", o16, psrc, L_POS)
    a.label("K2_G1")
    a("s_waitcnt lgkmcnt(0)")
    ts.stamp(1)
    a.label("K2_GROUND")
    a("s_barrier")
    a("s_bitcmp0_b32 %s, 0", sfirst)
    a("s_cbranch_scc1 K2_R4")
    a("s_mov_b32 %s, 2", sfirst)
    def late():
        wload(2)
        wload(3)
        small()
        pfetch()

    def pfetch():
      if PF:
        a("s_lshr_b32 %s, s2, 3", s0)
        a("s_mul_i32 %s, %s, %d", s1, s0, 98 * 128)
        a("s_add_u32 %s, %s, %s", s1, s1, hex(BIAS))
        a("s_cmp_lt_u32 %s, 2", sw)
        a("s_cselect_b32 %s, %s, %s", s1, s1, hex(OOR))
        a("v_lshlrev_b32 %s, 3, %s", t0, o16)
        a("buffer_load_dword %s, %s, %s, %s offen", T[23], t0, rPOS, s1)
        a("s_mul_i32 %s, %s, %d", s1, s0, (PF - 1) * 32768)
        for i in range(PF - 1):
            a("s_add_u32 %s, %s, %s", s0, s1, hex(BIAS + i * 32768))
            a("buffer_load_dword %s, %s, %s, %s offen", T[23], t0, rBP, s0)
    ts.stamp(2)
    gemm(0, R("v", adr.i, 32), 8)
    a("v_add_u32 %s, %d, %s", wa, L_GT, wa)

    a.label("K2_R4")
    a("v_lshlrev_b32 %s, 2, %s", psrc[3], lane)
    ts.stamp(3)
    cn, mx, st, l4 = pdst[0], pdst[1], pdst[2], psrc[3]
    a("ds_read_b32 %s, %s offset:%d", cn, l4, L_HIST)
    a("s_mov_b32 %s, -1", sx[0])
    a("s_mov_b32 %s, 0x1ffff", sx[1])
    a("s_waitcnt lgkmcnt(0)")
    a("v_readlane_b32 %s, %s, 63", smore, cn)
    a("v_max_u32 %s, 16, %s", mx, cn)
    a("v_cndmask_b32 %s, 0, %s, %s", mx, mx, sx)
    a("v_mov_b32 %s, %s", st, mx)
    wave_scan(a, st)
    a("s_nop 0")
    a("v_readlane_b32 %s, %s, 63", stot, st)
    a("v_sub_u32 %s, %s, %s", st, st, mx)
    a("v_lshlrev_b32 %s, 2, %s", st, st)
    a("s_cmp_gt_u32 %s, %d", stot, CAP)
    a("s_cbranch_scc1 K2_RETRY")
    a("s_add_u32 %s, %s, 15", sU, stot)
    a("s_lshr_b32 %s, %s, 4", sU, sU)
    a("s_cmp_lt_u32 %s, 4", sw)
    a("s_cbranch_scc1 K2_R7")
    a("ds_write_b32 %s, %s offset:%d", l4, st, L_START)
    for k in range(QF):
        if k % 2 == 0:
            a("s_cmp_le_u32 %s, %d", snr, k)
            a("s_cbranch_scc1 K2_R5")
        a("ds_read_b32 %s, %s offset:%d", stv[k], bn[k], L_START)
    a.label("K2_R5")
    a("v_mov_b32 %s, %s", t2, hex(DUMMY_S))
    a("s_cmp_lt_u32 %s, 6", sw)
    a("s_cbranch_scc1 K2_R6")
    a("s_cmp_eq_u32 %s, 6", sw)
    a("s_cbranch_scc1 K2_R5B")
    a("v_add_lshl_u32 %s, %s, %s, 2", t0, lane, stot)
    a("v_mov_b32 %s, 192", t1)
    a("ds_write2st64_b32 %s, %s, %s offset0:%d offset1:%d", t0, t2, t1, L_S // 256, L_E // 256)
    a("ds_write2st64_b32 %s, %s, %s offset0:%d offset1:%d", t0, t2, t1, L_S // 256 + 1, L_E // 256 + 1)
    a("s_branch K2_R6")
    a.label("K2_R5B")
    a("v_lshl_add_u32 %s, %s, 2, %s", t0, cn, st)
    a("s_mov_b64 exec, %s", sx)
    a.label("K2_R5C")
    a("v_cmpx_gt_u32 vcc, 16, %s", cn)
    a("s_cbranch_execz K2_R6")
    a("ds_write2st64_b32 %s, %s, %s offset0:%d offset1:%d", t0, t2, l4, L_S // 256, L_E // 256)
    a("v_add_u32 %s, 4, %s", t0, t0)
    a("v_add_u32 %s, 1, %s", cn, cn)
    a("s_branch K2_R5C")
    a.label("K2_R6")
    if "lateprio" in X:
        a("s_setprio 2")
    a("s_mov_b64 exec, -1")
    a("s_waitcnt lgkmcnt(0)")
    for k in range(QF):
        a("v_cmpx_lt_i32 vcc, %d, %s", k, vrem)
        if k % 2 == 0:
            a("s_cbranch_execz K2_R7")
        a("v_lshl_add_u32 %s, %s, 2, %s", stv[k], rk[k], stv[k])
        a("ds_write2st64_b32 %s, %s, %s offset0:%d offset1:%d", stv[k], ent[2 * k], ent[2 * k + 1], L_S // 256, L_E // 256)
    a.label("K2_R7")
    a("s_mov_b64 exec, -1")
    a("s_lshr_b32 %s, %s, 3", s0, sU)
    a("s_and_b32 %s, %s, 7", s1, sU)
    a("s_mul_i32 %s, %s, %s", su0, s0, sw)
    a("s_min_u32 %s, %s, %s", s2_, s1, sw)
    a("s_add_u32 %s, %s, %s", su0, su0, s2_)
    a("s_cmp_lt_u32 %s, %s", sw, s1)
    a("s_addc_u32 %s, %s, 0", snu, s0)
    a("v_add_lshl_u32 %s, %s, %s, 6", t0, lane, su0)
    a("v_add_u32 %s, %d, %s", t0, L_E, t0)
    a("s_lshl_b32 m0, %s, 6", su0)
    a("s_waitcnt lgkmcnt(0)")
    a("s_barrier")
    ts.stamp(4)

    def stageA0():
        a("ds_read_addtid_b32 %s offset:%d", bS, L_S)
        a("ds_read_addtid_b32 %s offset:%d", bE, L_E)

    def stageA1(x0):
        a("v_dot2_f32_bf16 %s, %s, %s, %s", x0, bS, sdot, posc)
        a("v_lshlrev_b32_sdwa %s, 3, %s " + SDWA, bP, bE, "BYTE_0")
        a("v_cmp_gt_u32 vcc, %s, %s", hex(DUMMY_S), bS)
        a("ds_read_b96 %s, %s offset:%d", pdst.sub(0, 3), bP, L_POS)
        a("buffer_load_dwordx3 %s, %s, %s, 0 offen", psrc.sub(0, 3), zero[0] if "nopos" in X else x0, rPOS)
        a("s_mov_b64 %s, vcc", sval)

    def stageB():
        x0, x1, x2, x3, row = T[0], T[1], T[2], T[3], T.sub(4, 4)
        for o in (1024, 2048, 1024 + PS, 2048 + PS):
            a("ds_write_b128 %s, %s offset:%d", tb16, zero, o)
        for c in range(3):
            a("v_sub_f32 %s, %s, %s", pdst[c], pdst[c], psrc[c])
        a("v_cvt_pk_bf16_f32 %s, %s, %s", x0, pdst[0], pdst[1])
        a("v_cvt_pk_bf16_f32 %s, %s, 0", x1, pdst[2])
        a("v_add_u32_sdwa %s, %s, %s " + SDWA, x3, tb32, bE, "BYTE_1")
        if OPT["exactd"]:
            a("v_lshlrev_b32 %s, 16, %s", pdst[0], x0)
            a("v_and_b32 %s, 0xffff0000, %s", pdst[1], x0)
            a("v_lshlrev_b32 %s, 16, %s", pdst[2], x1)
            for c in range(3):
                a("v_mul_f32 %s, %s, %s", pdst[c], pdst[c], pdst[c])
            a("v_cvt_pk_bf16_f32 %s, %s, %s", pdst[0], pdst[0], pdst[1])
            a("v_cvt_pk_bf16_f32 %s, %s, 0", pdst[2], pdst[2])
            a("s_mov_b32 %s, 0x3f803f80", s4)
            a("v_dot2_f32_bf16 %s, %s, %s, 0", x2, pdst[2], s4)
            a("v_dot2_f32_bf16 %s, %s, %s, %s", x2, pdst[0], s4, x2)
        else:
            a("v_dot2_f32_bf16 %s, %s, %s, 0", x2, x1, x1)
            a("v_dot2_f32_bf16 %s, %s, %s, %s", x2, x0, x0, x2)
        a("v_lshlrev_b64 %s, %s, %s", row.sub(0, 2), bP, c64)
        a("s_mov_b64 exec, %s", sval)
        a("ds_write_b16 %s, %s", x3, one)
        a("ds_write_b16 %s, %s offset:4", x3, x0)
        a("ds_write_b16_d16_hi %s, %s offset:%d", x3, x0, PS)
        a("ds_write_b16 %s, %s offset:%d", x3, x1, PS + 4)
        a("s_mov_b64 exec, -1")
        a("v_cvt_pk_bf16_f32 %s, %s, %s", row[2], x2, bE)
        a("v_cvt_pk_bf16_f32 %s, %s, %s", row[3], x2, bE)
        a("ds_write_b128 %s, %s", tb16, row)

    def loadAp(par):
        a("ds_read_addtid_b32 %s offset:%d", Bop[0][par], L_AT)
        a("ds_read_addtid_b32 %s offset:%d", Bop[1][par], L_AT + 256)

    def gld(xy, r):
        if "nogld" in X:
            a("s_nop 0")
            return
        a("buffer_load_dword %s, %s, %s, 0 offen offset:%d %s", ld[xy][r], fbase if "hitgld" in X else adr[r], rBP, 128 * xy, OPT["ldg"])

    def dmaWh2():
        a("s_mul_i32 %s, %s, %d", s1, sw, RS)
        a("s_add_u32 m0, %s, %d", s1, L_RING)
        a("s_lshl_b32 %s, %s, 12", s1, sw)
        a("s_add_u32 %s, %s, %s", s1, s1, hex(WS_WF + 65536))
        a("v_lshlrev_b32 %s, 4, %s", t0, lane)
        a("s_waitcnt lgkmcnt(0)")
        for i in range(4):
            a("buffer_load_dwordx4 %s, %s, %s offen offset:%d lds", t0, rWS, s1, 1024 * i)

    def rng(f, xy, r0, r1):
        for r in range(r0, r1):
            f(xy, r)

    ea, eb = T[8], T.sub(10, 2)
    a("ds_read_addtid_b32 %s offset:%d", aA[0], L_S)
    stageA0()
    a("ds_read_b32 %s, %s", ea, t0)
    a("ds_read2_b32 %s, %s offset0:15 offset1:16", eb, t0)
    a("s_waitcnt lgkmcnt(4)")
    a(MF8, adr, aA, aB, "0")
    a("ds_read_addtid_b32 %s offset:%d", aA[0], L_S + 64)
    a("s_waitcnt lgkmcnt(3)")
    stageA1(t1)
    a("s_sub_u32 %s, %s, 1", s4, snu)
    a("s_mov_b32 %s, 0", su)
    a("s_mov_b32 %s, -1", sflu)
    a("s_mov_b32 %s, 0", sret)
    rng(gld, 0, 0, 8)
    rng(gld, 1, 0, 8)
    a("s_waitcnt lgkmcnt(0)")
    a(MF8, adr, aA, aB, "0")
    a("v_and_b32 %s, 0xfc, %s", ea, ea)
    a("v_and_b32 %s, 0xfc, %s", eb[1], eb[1])
    a("v_readfirstlane_b32 %s, %s", spa, ea)
    a("v_readlane_b32 %s, %s, %s", sql, eb[0], s4)
    a("v_readlane_b32 %s, %s, %s", sshr, eb[1], s4)
    a("v_cmp_ne_u32 vcc, %s, %s", ea, eb[1])
    a("s_cmp_lg_u32 %s, 2", sfirst)
    a("s_cbranch_scc1 K2_P1")
    a("s_mov_b32 %s, 0", sfirst)
    a("s_waitcnt vmcnt(%d)", 20 + PF)
    gemm(1, yall, 8)
    a.label("K2_P1")
    for b in range(4):
        a(MF8, Q[b], zero.sub(0, 2), zero.sub(0, 2), "0")
    a(MF8, e[1], zero.sub(0, 2), zero.sub(0, 2), "0")
    a("s_lshl_b32 %s, vcc_lo, 1", sinc)
    a("s_lshr_b32 %s, %s, 2", spa, spa)
    a("s_add_u32 %s, %s, 1", s0, spa)
    a("s_and_b32 %s, %s, -2", s0, s0)
    a("s_lshl_b32 m0, %s, 9", s0)
    a("s_or_b32 %s, %s, 1", s0, spa)
    loadAp(0)
    a("s_lshl_b32 m0, %s, 9", s0)
    a("s_bfe_u32 %s, %s, 0x50003", sql, sql)
    loadAp(1)
    a("s_lshr_b32 %s, %s, 3", sshr, sshr)
    a("s_cmp_eq_u32 %s, %s", sshr, sql)
    a("s_cselect_b32 %s, 1, 0", sshr)
    a("s_cmp_eq_u32 %s, 7", sw)
    a("s_cselect_b32 %s, 0, %s", sshr, sshr)
    a("s_mov_b32 %s, %s", srmw, srnd)
    for i in range(4):
        a("v_mov_b32 %s, 0", S4[i])
    a("s_lshl_b32 %s, %s, 6", s0, su0)
    a("s_add_u32 m0, %s, 256", s0)
    a("s_waitcnt vmcnt(16)")
    stageB()
    a("ds_read_b128 %s, %s", oh, bOH)
    stageA0()
    a("s_waitcnt lgkmcnt(2)")
    a(MF16, y[0], oh, Bop[0], "0")
    a("s_waitcnt vmcnt(8)")
    a(SMF, y[0], sel, ld[0], isel)
    rng(gld, 0, 0, 8)
    a("s_waitcnt lgkmcnt(0)")
    a("s_nop 1")
    ts.stamp(5)

    EXP = lambda xy, r: a("v_exp_f32 %s, -%s", e[xy][r], y[xy][r])
    RCP = lambda xy, r: a("v_rcp_f32 %s, %s", e[xy][r], e[xy][r])
    SEG = lambda b: a(SMF, Q[b], S4, e[b >> 1].sub(8 * (b & 1), 8), iseg)

    def MUL(xy):
        for r in range(0, 16, 2):
            a("v_pk_mul_f32 %s, %s, %s", e[xy].sub(r, 2), e[xy].sub(r, 2), y[xy].sub(r, 2))

    def half(xy, F):
        a(MF16, y[xy], oh, Bop[xy], "0")
        rng(F, 1 - xy, 0, 4)
        a("s_waitcnt vmcnt(8)")
        a(SMF, y[xy], sel, ld[xy], isel)
        rng(gld, xy, 0, 4)
        rng(F, 1 - xy, 4, 8)
        SEG(2 * xy)
        rng(gld, xy, 4, 8)
        rng(F, 1 - xy, 8, 12)
        SEG(2 * xy + 1)

    a(".p2align 6")
    a.label("K2_LOOP")
    half(1, EXP)
    a("s_and_b32 %s, %s, 3", s0, su)
    a("s_lshl_b32 %s, %s, 9", s0, s0)
    a("s_add_u32 %s, %s, 1", su, su)
    a("s_and_b32 %s, %s, 3", s3, su)
    a("s_lshl_b32 %s, %s, 8", s1, s3)
    a("v_add_u32 %s, %s, %s", pS4, s0, bS4)
    a("v_add_u32 %s, %s, %s", pOH, s1, bOH)
    rng(EXP, 0, 12, 16)
    a("s_add_u32 %s, %s, 1", s0, su)
    a("s_add_u32 %s, %s, %s", s1, s0, su0)
    a("s_cmp_lt_u32 %s, %s", s0, snu)
    a("s_cselect_b32 %s, %s, %s", s1, s1, sU)
    a("s_lshl_b32 m0, %s, 6", s1)
    rng(EXP, 1, 0, 2)
    a(MF8, e[0], ones, ones, e[0])
    a("ds_read_addtid_b32 %s offset:%d", aA[0], L_S)
    a("ds_read_b64_tr_b16 %s, %s", S4.sub(0, 2), pS4)
    a("ds_read_b64_tr_b16 %s, %s offset:128", S4.sub(2, 2), pS4)
    a("s_cmp_eq_u32 %s, %s", su, snu)
    a("s_cbranch_scc1 K2_LAST")
    a("s_cmp_le_u32 %s, 1", s3)
    a("s_cbranch_scc1 K2_BATCH" if "nobt" not in X else "s_nop 0")
    a.label("K2_L1")
    a("s_bitcmp1_b32 %s, %s", sinc, su)
    a("s_cbranch_scc1 K2_INC" if "noinc" not in X else "s_nop 0")
    a.label("K2_L2")
    a("ds_read_b128 %s, %s", oh, pOH)
    rng(EXP, 1, 2, 16)
    rng(RCP, 0, 0, 2)
    a(MF8, e[1], ones, ones, e[1])
    rng(RCP, 0, 2, 6)
    a("s_waitcnt lgkmcnt(0)")
    a(MF8, adr, aA, aB, "0")
    rng(RCP, 0, 6, 16)
    MUL(0)
    a("s_cmp_eq_u32 %s, %s", su, sflu)
    a("s_cbranch_scc1 K2_FLUSH")
    a.label("K2_L3")
    half(0, RCP)
    a("s_cmp_lt_u32 %s, %s", su, snu)
    rng(RCP, 1, 12, 16)
    MUL(1)
    a("s_cbranch_scc1 K2_LOOP")
    a("s_lshr_b32 %s, %s, 1", sfq, spa)
    SEG(2)
    SEG(3)
    a("s_mov_b32 %s, 1", sret)
    a("s_nop 7")
    a("s_cmp_lt_u32 %s, %s", sfq, sql)
    a("s_cbranch_scc1 K2_FLUSH")
    a.label("K2_D1")
    a("s_mov_b32 %s, %s", sfq, sql)
    a("s_mov_b32 %s, 2", sret)
    a("s_cmp_eq_u32 %s, 0", sshr)
    a("s_cbranch_scc1 K2_FLUSH")
    a("s_mov_b32 %s, 1", srmw)
    a.label("K2_D2")
    a("ds_read_b32 %s, %s offset:%d", t0, vflag, L_FLAG + 4)
    a("s_waitcnt lgkmcnt(0)")
    a("v_readfirstlane_b32 %s, %s", s0, t0)
    a("s_cmp_eq_u32 %s, 0", s0)
    a("s_cbranch_scc1 K2_D2")
    a.label("K2_FLUSH")
    fa, tt, Rm = T[20], T.sub(0, 6), T.sub(12, 7)
    offs = [nl * 272 + xy * 128 for nl in range(2) for xy in range(2)] + [528 + c * 128 for c in range(3)]
    a("s_cmp_lg_u32 %s, 0", sgd)
    a("s_cbranch_scc1 K2_GDW")
    a.label("K2_FLA")
    a("s_mul_i32 %s, %s, %d", s0, sfq, 2 * PB)
    a("v_add_u32 %s, %s, %s", fa, s0, fbase)
    a("s_cmp_eq_u32 %s, 0", srmw)
    a("s_cbranch_scc1 K2_FL0")
    for i in range(7):
        a("ds_read_b32 %s, %s offset:%d", Rm[i], fa, offs[i])
    a.label("K2_FL0")
    a("s_bitcmp1_b32 %s, 0", sfq)
    a("s_cbranch_scc1 K2_FLP1")
    for p in range(2):
        o = 8 * p
        a.label("K2_FLP%d" % p)
        for b in range(4):
            for c in range(3):
                q = Q[b].sub(o + 2 + 2 * c, 2)
                if b == 0:
                    a("v_pk_mul_f32 %s, %s, %s op_sel_hi:[1,0]", tt.sub(2 * c, 2), q, WX.sub(0, 2))
                else:
                    a("v_pk_fma_f32 %s, %s, %s, %s op_sel:[0,%d,0] op_sel_hi:[1,%d,1]", tt.sub(2 * c, 2), q, WX.sub(b & 2, 2),
                      tt.sub(2 * c, 2), b & 1, b & 1)
        a("s_cmp_eq_u32 %s, 0", srmw)
        a("s_cbranch_scc1 K2_FLN%d", p)
        a("s_waitcnt lgkmcnt(0)")
        for nl in range(2):
            for xy in range(2):
                for lh in range(2):
                    q = Q[2 * xy + lh][o + nl]
                    a("v_dot2_f32_bf16 %s, %s, %s, %s", q, Rm[2 * nl + xy], shi if lh else slo, q)
        for c in range(3):
            for nl in range(2):
                a("v_dot2_f32_bf16 %s, %s, %s, %s", tt[2 * c + nl], Rm[4 + c], shi if nl else slo, tt[2 * c + nl])
        a.label("K2_FLN%d" % p)
        ZQ = lambda b, k: a("v_mfma_f32_16x16x16_bf16 %s, %s, %s, 0", Q[b].sub(o + 4 * k, 4), zero.sub(0, 2), zero.sub(0, 2))
        for xy in range(2):
            ZQ(2 * xy, 1)
            for nl in range(2):
                x = T[6 + 2 * nl + xy]
                a("v_cvt_pk_bf16_f32 %s, %s, %s", x, Q[2 * xy][o + nl], Q[2 * xy + 1][o + nl])
                a("ds_write_b32 %s, %s offset:%d", fa, x, offs[2 * nl + xy])
            ZQ(2 * xy + 1, 1)
        for c in range(3):
            a("v_cvt_pk_bf16_f32 %s, %s, %s", tt[2 * c], tt[2 * c], tt[2 * c + 1])
            ZQ(c, 0)
            a("ds_write_b32 %s, %s offset:%d", fa, tt[2 * c], offs[4 + c])
        a("ds_write_b32 %s, %s offset:%d", vflag, one, L_FLAG)
        a("s_cmp_eq_u32 %s, 0", sret)
        ZQ(3, 0)
        a("s_cbranch_scc1 K2_L3")
        if p == 0:
            a("s_branch K2_FLR")
    a.label("K2_FLR")
    a("s_cmp_eq_u32 %s, 1", sret)
    a("s_cbranch_scc1 K2_D1")
    a("s_cmp_eq_u32 %s, 0", smore)
    a("s_cbranch_scc1 K2_FIN")
    a("s_add_u32 %s, %s, %s", sJ, sJ, sq)
    a("s_mov_b32 %s, %d", sq, QF)
    a("s_mov_b32 %s, 1", srnd)
    a("s_branch K2_AGAIN")
    a.label("K2_RETRY")
    a("s_mov_b32 %s, %d", sq, QS)
    a.label("K2_AGAIN")
    a("s_waitcnt vmcnt(0) lgkmcnt(0)")
    a("s_barrier")
    a("v_lshlrev_b32 %s, 3, %s", t3, lane)
    a("ds_write_b64 %s, %s offset:%d", t3, zero.sub(0, 2), L_HIST)
    a("s_waitcnt lgkmcnt(0)")
    a("s_barrier")
    a("s_cmp_lt_u32 %s, 4", sw)
    a("s_cbranch_scc1 K2_GROUND")
    offaddr()
    a("v_and_b32 %s, 255, %s", seg, tid)
    a("v_lshlrev_b32 %s, 4, %s", t0, seg)
    a("buffer_load_dword %s, %s, %s, %s offen", voff, t0, rWS, s0)
    a("s_waitcnt vmcnt(0)")
    a("s_branch K2_ROUND")

    a.label("K2_GDW")
    a("ds_read_b128 %s, %s offset:%d", T.sub(0, 4), zero[0], L_GD)
    a("s_waitcnt lgkmcnt(0)")
    a("v_and_b32 %s, %s, %s", t0, t0, t1)
    a("v_and_b32 %s, %s, %s", t2, t2, t3)
    a("v_and_b32 %s, %s, %s", t0, t0, t2)
    a("s_nop 0")
    a("v_readfirstlane_b32 %s, %s", s0, t0)
    a("s_cmp_eq_u32 %s, 0", s0)
    a("s_cbranch_scc1 K2_GDW")
    a("s_mov_b32 %s, 0", sgd)
    a("s_branch K2_FLA")
    a.label("K2_LAST")
    a("s_cmp_lg_u32 %s, 0", smore)
    a("s_cbranch_scc1 K2_L2")
    dmaWh2()
    a("s_branch K2_L2")
    a.label("K2_BATCH")
    a("s_cmp_eq_u32 %s, 1", s3)
    a("s_cbranch_scc1 K2_BATCH1")
    a("s_add_u32 %s, %s, %s", s0, su, su0)
    a("s_lshl_b32 %s, %s, 6", s0, s0)
    a("s_add_u32 m0, %s, 256", s0)
    if OPT["prio"] % 4 == 0:
        a("s_cmp_lt_u32 %s, %d", su, OPT["prio"])
        a("s_cbranch_scc1 K2_BATCH0")
        a("s_setprio 0")
        a.label("K2_BATCH0")
    stageB()
    stageA0()
    a("s_branch K2_L1")
    a.label("K2_BATCH1")
    if OPT["prio"] % 4 == 1:
        a("s_cmp_lt_u32 %s, %d", su, OPT["prio"])
        a("s_cbranch_scc1 K2_BATCH2")
        a("s_setprio 0")
        a.label("K2_BATCH2")
    a("s_add_u32 %s, %s, 3", s0, su)
    a("s_cmp_ge_u32 %s, %s", s0, snu)
    a("s_cbranch_scc1 K2_L1")
    stageA1(t0)
    a("s_branch K2_L1")
    a.label("K2_INC")
    a("s_add_u32 %s, %s, 2", s0, spa)
    a("s_lshl_b32 m0, %s, 9", s0)
    a("s_add_u32 %s, %s, 1", spa, spa)
    a("s_bitcmp1_b32 %s, 0", spa)
    a("s_cbranch_scc1 K2_INC1")
    loadAp(1)
    a("s_lshr_b32 %s, %s, 1", sfq, spa)
    a("s_sub_u32 %s, %s, 1", sfq, sfq)
    a("s_add_u32 %s, %s, %d", sflu, su, 100 if "nofl" in X else 1)
    a("s_branch K2_L2")
    a.label("K2_INC1")
    loadAp(0)
    a("s_branch K2_L2")

    a.label("K2_FIN")
    ts.stamp(6)
    a("s_setprio 0")
    rO, rP = rBP, rPOS
    fac = [y[0], y[1]]
    g = [e[0].sub(0, 8), e[0].sub(8, 8)]
    hr = e[1]
    ga, ra, rb, so, pa, pp = T[4], T[5], T[6], T[7], T[8], T[9]
    col = T[10]
    a("s_lshr_b32 %s, %s, 1", s2_, sw)
    a("s_and_b32 %s, %s, 1", s3, sw)
    a("v_and_b32 %s, 31, %s", col, lane)
    a("v_lshlrev_b32 %s, 2, %s", so, col)
    a("v_lshl_add_u32 %s, %s, 10, %s", so, vh, so)
    a("s_mul_i32 %s, %s, 24", s4, s2_)
    a("s_add_u32 %s, %s, %s", s0, s4, snb)
    a("s_lshl_b32 %s, %s, 1", s0, s0)
    a("s_add_u32 %s, %s, %s", s0, s0, s3)
    a("s_lshl_b32 %s, %s, 7", su0, s0)
    a("s_add_u32 %s, %s, 4096", snu, su0)
    rowof = lambda r: 8 * (r // 4) + r % 4
    for r in range(14):
        a("buffer_load_dword %s, %s, %s, %s offen offset:%d", hr[r], so, rH, snu if rowof(r) >= 16 else su0, (rowof(r) % 16) * 256)
    a("s_add_u32 %s, %s, %s", s0, s4, s3)
    a("s_lshl_b32 %s, %s, 8", s0, s0)
    a("s_add_u32 %s, %s, %d", s0, s0, L_GT)
    a("v_add_u32 %s, %s, %s", ga, s0, so)
    a("v_add_u32 %s, 128, %s", t3, ga)
    for par in range(2):
        for ip in range(3):
            a("ds_read2st64_b32 %s, %s offset0:%d offset1:%d", g[par].sub(2 * ip, 2), t3 if par else ga, 8 * ip, 8 * ip + 2)
        a("ds_read_b32 %s, %s offset:%d", g[par][6], t3 if par else ga, 24 * 256)
    a("v_add_u32 %s, %s, %s", t0, s4, col)
    a("v_min_u32 %s, 97, %s", t0, t0)
    a("v_lshrrev_b32 %s, 1, %s", t1, t0)
    a("v_and_b32 %s, 1, %s", t0, t0)
    a("v_mul_u32_u24 %s, %d, %s", t1, PB, t1)
    a("v_mul_u32_u24 %s, 272, %s", t0, t0)
    a("v_lshlrev_b32 %s, 4, %s", t2, vh)
    a("v_add_u32 %s, %d, %s", t2, L_MACC, t2)
    a("v_add3_u32 %s, %s, %s, %s", ra, t0, t1, t2)
    a("s_mul_i32 %s, %s, %d", s0, s3, 4 * RS)
    a("s_add_u32 %s, %s, %d", s0, s0, L_RING)
    a("v_lshl_add_u32 %s, %s, 4, %s", rb, lane, s0)
    a("s_lshl_b32 %s, %s, 5", s0, sw)
    a("v_add_u32 %s, %s, %s", t0, s0, col)
    a("v_mul_u32_u24 %s, 171, %s", t1, t0)
    a("v_lshrrev_b32 %s, 9, %s", t1, t1)
    a("v_cmp_gt_u32 vcc, 147, %s", t0)
    a("v_mad_i32_i24 %s, %s, -3, %s", t0, t1, t0)
    a("s_mov_b32 %s, vcc_lo", sval[0])
    a("s_mov_b32 %s, 0", sval[1])
    a("v_mul_u32_u24 %s, %d, %s", pa, PB, t1)
    a("v_lshl_add_u32 %s, %s, 7, %s", pa, t0, pa)
    a("v_add_u32 %s, %s, %s", pa, pa, t2)
    a("v_lshlrev_b32 %s, 5, %s", t3, t1)
    a("v_lshl_add_u32 %s, %s, 2, %s", t3, t0, t3)
    px = psrc.sub(0, 2)
    a("v_add_u32 %s, %d, %s", t3, L_POS, t3)
    a("ds_read2_b32 %s, %s offset0:0 offset1:4", px, t3)
    a("v_mul_u32_u24 %s, 12, %s", pp, t1)
    a("v_lshl_add_u32 %s, %s, 1, %s", pp, t0, pp)
    a("v_lshlrev_b32 %s, 4, %s", t0, col)
    a("v_cmp_gt_u32 vcc, 2, %s", col)
    a("v_lshlrev_b32 %s, %s, %s", t0, t0, one)
    srd(a, rO, P["out"], 0, N * 256)
    for i in range(4):
        a("v_cndmask_b32 %s, 0, %s, vcc", S4[i], t0)
    srd(a, rP, P["out"], N * 256, N * 6)
    stw, str_, stg = T[11], T[12], T[13]
    a("s_lshl_b32 %s, %s, 12", s0, sw)
    a("v_lshl_add_u32 %s, %s, 2, %s", stw, col, s0)
    a("v_lshl_add_u32 %s, %s, 9, %s", stw, vh, stw)
    a("v_lshl_add_u32 %s, %s, 4, %s", str_, lane, s0)
    a("v_lshrrev_b32 %s, 3, %s", t0, lane)
    a("v_and_b32 %s, 7, %s", t1, lane)
    a("v_lshlrev_b32 %s, 4, %s", t1, t1)
    a("v_lshl_add_u32 %s, %s, 8, %s", stg, t0, t1)
    a("s_waitcnt lgkmcnt(0)")
    for par in range(2):
        for i in range(7):
            a("v_lshlrev_b32 %s, 16, %s", fac[par][2 * i], g[par][i])
            a("v_and_b32 %s, 0xffff0000, %s", fac[par][2 * i + 1], g[par][i])
    a("s_waitcnt vmcnt(14)")
    a("s_barrier")
    Af = lambda ks: ldall.sub(4 * (ks & 3), 4)
    Bf = lambda ks, par: Qall.sub(8 * ks + 4 * par, 4)

    def rdF(ks):
        a("ds_read_b128 %s, %s offset:%d", Af(ks), ra, 32 * ks)
        for par in range(2):
            a("ds_read_b128 %s, %s offset:%d", Bf(ks, par), rb, (2 * par + ks // 4) * RS + (ks % 4) * 1024)
    for ks in range(3):
        rdF(ks)
    for ks in range(8):
        if ks + 3 < 8:
            rdF(ks + 3)
        a("s_waitcnt lgkmcnt(%d)", 3 * min(3, 7 - ks))
        for par in range(2):
            a(MF16, fac[par], Af(ks), Bf(ks, par), fac[par])
    a("s_mov_b32 %s, %s", s1, hex(f32(1 + DELTA)))
    a("s_mov_b32 %s, %s", sx[0], hex(LOG2E))
    a("s_mov_b32 %s, %s", sx[1], hex(LOG2E))
    a("s_cmp_gt_u32 %s, 4", sw)
    a("s_cbranch_scc1 K2_F1")
    for ks in range(4):
        a("ds_read_b128 %s, %s offset:%d", Af(ks), pa, 528 + 32 * ks)
    for ks in range(4):
        a("s_waitcnt lgkmcnt(%d)", 3 - ks)
        a(MF16, adr, S4, Af(ks), adr if ks else "0")
    a.label("K2_F1")
    ee = [Q[0], Q[1]]
    hh = [Q[2], Q[3]]

    def fin(r0, r1):
        if r0 == 0:
            a("s_waitcnt vmcnt(0)")
        for r in range(r0, r1):
            a("v_lshlrev_b32 %s, 16, %s", hh[0][r], hr[r])
            a("v_and_b32 %s, 0xffff0000, %s", hh[1][r], hr[r])
        for par in range(2):
            for r in range(r0, r1):
                a("v_mul_f32 %s, %s, %s", fac[par][r], s1, fac[par][r])
        for par in range(2):
            for r in range(r0, r1):
                a("v_exp_f32 %s, -%s", ee[par][r], fac[par][r])
        a("s_nop 0")
        for par in range(2):
            for r in range(r0, r1, 2):
                a("v_pk_fma_f32 %s, %s, %s, %s", ee[par].sub(r, 2), ee[par].sub(r, 2), sx, sx)
        for r in range(r0, r1, 2):
            for par in range(2):
                a("v_rcp_f32 %s, %s", ee[par][r], ee[par][r])
                a("v_rcp_f32 %s, %s", ee[par][r + 1], ee[par][r + 1])
            a("s_nop 0")
            for par in range(2):
                a("v_pk_fma_f32 %s, %s, %s, %s", fac[par].sub(r, 2), fac[par].sub(r, 2), ee[par].sub(r, 2), hh[par].sub(r, 2))
            for q in (r, r + 1):
                a("v_cvt_pk_bf16_f32 %s, %s, %s", fac[0][q], fac[0][q], fac[1][q])
                a("ds_write_b32 %s, %s offset:%d", stw, fac[0][q], rowof(q) * 128)
            if r % 4 == 2 or r == 12:
                i = r // 4
                a("ds_read_b128 %s, %s offset:%d", e[0].sub(4 * i, 4), str_, 1024 * i)
                if 0 < i < 3:
                    a("s_waitcnt lgkmcnt(5)")
                    sto(i - 1)

    def sto(i):
        a("buffer_store_dwordx4 %s, %s, %s, %s offen offset:%d %s", e[0].sub(4 * i, 4), stg, rO, snu if i >= 2 else su0,
          (i & 1) * 2048, OPT["st2"])
    fin(0, 12)
    a("s_waitcnt lgkmcnt(0)")
    sto(2)
    a("s_cmp_lg_u32 %s, 3", s2_)
    a("s_cbranch_scc1 K2_F2")
    fin(12, 14)
    a("s_mov_b64 exec, 0xffff")
    a("s_waitcnt lgkmcnt(0)")
    sto(3)
    a.label("K2_F2")
    a("s_cmp_gt_u32 %s, 4", sw)
    a("s_cbranch_scc1 K2_F3")
    a("v_add_f32 %s, %s, %s", px[0], px[0], adr[0])
    a("v_add_f32 %s, %s, %s", px[1], px[1], adr[1])
    a("v_cvt_pk_bf16_f32 %s, %s, %s", px[0], px[0], px[1])
    a("s_mul_i32 %s, %s, 6", s0, snb)
    a("s_mov_b64 exec, %s", sval)
    a("buffer_store_short %s, %s, %s, %s offen %s", px[0], pp, rP, s0, OPT["st2"])
    a("buffer_store_short_d16_hi %s, %s, %s, %s offen offset:6 %s", px[0], pp, rP, s0, OPT["st2"])
    a.label("K2_F3")
    if OPT["ts"]:
        a("s_waitcnt vmcnt(0)")
        ts.stamp(7)
        ts.dump(P["ws"], sw, t0, t1)
    a.label("K2_END")
    a("s_endpgm")
    return V.hi, S.hi


def gen_probe(a):
    kern, first, cnt, idx, agg, mode = OPT["probe"].split(",")
    kernel_head(a, "egnn_probe_kernel")
    a("s_cmp_ge_u32 s2, 1")
    a("s_cbranch_scc1 K3_END")
    a("s_load_dwordx2 s[4:5], s[0:1], 80")
    a("s_waitcnt lgkmcnt(0)")
    srd(a, R("s", 8, 4), R("s", 4, 2), WS_TS, 0x200000)
    a("v_lshlrev_b32 v1, 9, v0")
    for i in range(8):
        a("s_mov_b32 s3, %d", i * 64 * 512)
        a("buffer_load_dword v%d, v1, s[8:11], s3 offen", 8 + i)
    step = 64 if kern == "1" else 512
    a("v_mul_u32_u24 v1, %d, v0", step)
    for i in range(int(cnt)):
        a("s_mov_b32 s3, %d", int(kern) * 0x100000 + (int(first) + i * 64) * step + 4 * int(idx))
        a("buffer_load_dword v%d, v1, s[8:11], s3 offen", 16 + i)
    a("s_waitcnt vmcnt(0)")
    for i in range(1, 8):
        a("v_min_u32 v8, v8, v%d", 8 + i)
    for i in range(1, int(cnt)):
        a("v_%s_u32 v16, v16, v%d", agg, 16 + i)
    a("s_nop 1")
    a("v_readlane_b32 s12, v8, 0")
    a("v_readlane_b32 s13, v16, 0")
    for l in range(1, 64):
        a("v_readlane_b32 s14, v8, %d", l)
        a("v_readlane_b32 s15, v16, %d", l)
        a("s_min_u32 s12, s12, s14")
        a("s_%s_u32 s13, s13, s15", agg)
    a("s_sub_u32 s13, s13, s12")
    a("s_min_u32 s13, s13, 10000")
    a("s_lshl_b32 s13, s13, 4")
    a("s_add_u32 s13, s13, 5000")
    a("s_mov_b32 s3, 0x1f0000")
    a("v_mov_b32 v1, 0")
    a("buffer_load_dword v2, v1, s[8:11], s3 offen")
    a("s_waitcnt vmcnt(0)")
    a("v_readfirstlane_b32 s14, v2")
    a("v_mov_b32 v2, 0x13572468")
    a("buffer_store_dword v2, v1, s[8:11], s3 offen")
    a("s_cmp_eq_u32 s14, 0x13572468")
    a("s_cselect_b32 s13, %s", "0, s13" if mode == "f" else "s13, 0")
    a("s_memrealtime s[16:17]")
    a("s_waitcnt lgkmcnt(0)")
    a.label("K3_L")
    a("s_memrealtime s[18:19]")
    a("s_waitcnt lgkmcnt(0)")
    a("s_sub_u32 s14, s18, s16")
    a("s_cmp_lt_u32 s14, s13")
    a("s_cbranch_scc1 K3_L")
    a.label("K3_END")
    a("s_endpgm")


def descriptor(name, nv, ns):
    return """.p2align 6
.amdhsa_kernel %s
  .amdhsa_next_free_vgpr %d
  .amdhsa_next_free_sgpr %d
  .amdhsa_accum_offset %d
  .amdhsa_group_segment_fixed_size 0
  .amdhsa_kernarg_size 88
  .amdhsa_user_sgpr_count 2
  .amdhsa_user_sgpr_kernarg_segment_ptr 1
  .amdhsa_system_sgpr_workgroup_id_x 1
.end_amdhsa_kernel
""" % (name, nv, ns, (nv + 3) // 4 * 4)


def build():
    ref = open("standalone__cheap_equivariant_egnn__graph.s.ref").read().split("\n")
    head = [l for l in ref if l.startswith(";") and "@launch" not in l and "Override" not in l and "grid=ceil" not in l]
    head.append("; @launch kernel=egnn_part_kernel grid=(512,1,1) block=(512,1,1) lds=%d" % K1_LDS)
    head.append("; @launch kernel=egnn_main_kernel grid=(256,1,1) block=(512,1,1) lds=%d" % K2_LDS)
    a1, a2, a3 = Asm(), Asm(), Asm()
    if OPT["probe"]:
        head.append("; @launch kernel=egnn_probe_kernel grid=(1,1,1) block=(64,1,1) lds=0")
        gen_probe(a3)
    v1, s1 = gen_k1(a1)
    v2, s2 = gen_k2(a2)
    nb = 0
    for nm, x in (("k1", a1), ("k2", a2)):
        bad, n = check_hazards(x.lines)
        nb += bad
        print("%s: %d instructions, %d hazards" % (nm, n, bad), file=sys.stderr)
    print("k1 v%d s%d lds %d; k2 v%d s%d lds %d" % (v1, s1, K1_LDS, v2, s2, K2_LDS), file=sys.stderr)
    txt = "\n".join(head) + "\n.amdgcn_target \"amdgcn-amd-amdhsa--gfx950\"\n.text\n" + a1.text() + a2.text() + a3.text()
    txt += ".section .rodata,\"a\"\n" + descriptor("egnn_part_kernel", v1, s1) + descriptor("egnn_main_kernel", v2, s2)
    if OPT["probe"]:
        txt += descriptor("egnn_probe_kernel", 64, 32)
    return txt, nb


if __name__ == "__main__":
    out = "standalone__cheap_equivariant_egnn__graph.s"
    for arg in sys.argv[1:]:
        if "=" in arg:
            k, v = arg.split("=", 1)
            if k == "out":
                out = v
            else:
                assert k in OPT, k
                OPT[k] = int(v) if isinstance(OPT[k], int) else v.replace("_", " ")
    txt, nb = build()
    open(out, "w").write(txt)
    sys.exit(1 if nb else 0)
```

```python
import struct, sys, os
sys.path.insert(0, os.path.dirname(os.path.abspath(__file__)))
from asmlib import Asm, Regs, R, check_hazards

N, E = 25000, 400000
BN, CH = 98, 1564
CHB = CH * 8
BIAS = 0x0C000000
WS_BP = BIAS
POS_BASE = 0x00800000
WS_ENT = 0x0D000000
WS_OFF = 0x0D400000
OFS = 4096 + 256
WS_WF = 0x0D480000
WS_W3 = WS_WF + 98304
WS_WX = WS_W3 + 1024
WS_ACC = 0x02000000
WS_TS = 0x0E000000
WS_SIZE = 268435456
OOR = 0x40000000
LOG2E = 0x3FB8AA3B
LN2 = 0x3F317218
CAP = 2048
DUMMY_S = 0x437F0000

DELTA = 0.0027
OPT = dict(st3="", a1=2, ldp="", bias=2, tsg=0, gb=30, own=0, ldg="", cpf=0, pf=2, probe="", x="", prio=8, ts=0, exactd=0, k1_gemm_first=0, st1="sc1", st2="sc1")

SDWA = "dst_sel:DWORD dst_unused:UNUSED_PAD src0_sel:DWORD src1_sel:%s"
MF16 = "v_mfma_f32_32x32x16_bf16 %s, %s, %s, %s"
MF8 = "v_mfma_f32_32x32x8_bf16 %s, %s, %s, %s"
SMF = "v_smfmac_f32_32x32x32_bf16 %s, %s, %s, %s"


def f32(x):
    return struct.unpack("<I", struct.pack("<f", x))[0]


def srd(a, d, base, off, size):
    if isinstance(off, int) and off == 0:
        a("s_mov_b32 %s, %s", d[0], base[0])
        a("s_mov_b32 %s, %s", d[1], base[1])
    else:
        a("s_add_u32 %s, %s, %s", d[0], base[0], hex(off) if isinstance(off, int) else off)
        a("s_addc_u32 %s, %s, 0", d[1], base[1])
    a("s_mov_b32 %s, %s", d[2], hex(size))
    a("s_mov_b32 %s, 0x20000", d[3])


def wave_scan(a, t):
    for sh in (1, 2, 4, 8):
        a("s_nop 1")
        a("v_add_u32_dpp %s, %s, %s row_shr:%d row_mask:0xf bank_mask:0xf", t, t, t, sh)
    a("s_nop 1")
    a("v_add_u32_dpp %s, %s, %s row_bcast:15 row_mask:0xa bank_mask:0xf", t, t, t)
    a("s_nop 1")
    a("v_add_u32_dpp %s, %s, %s row_bcast:31 row_mask:0xc bank_mask:0xf", t, t, t)


class TS:
    def __init__(self, a, S, n, kern):
        self.a, self.on, self.kern = a, OPT["ts"], kern
        if self.on:
            self.r = S.get(2 * n, 2)
            self.srd = S.get(4, 4)
            self.tmp = S.get(1)
            self.n = n

    def init(self):
        if self.on:
            for i in range(self.n):
                self.a("s_mov_b64 %s, 0", self.r.sub(2 * i, 2))

    def stamp(self, i, grp=0):
        if self.on and (grp == OPT["tsg"] or self.kern == 0 or i in (0, 7)):
            self.a("s_memrealtime %s" if self.on == 1 else "s_memtime %s", self.r.sub(2 * i, 2))
            self.a("s_waitcnt lgkmcnt(0)")

    def dump(self, ws, swave, v0, v1):
        if not self.on:
            return
        a = self.a
        srd(a, self.srd, ws, WS_TS + self.kern * 0x100000, 0x100000)
        a("s_mov_b64 exec, -1")
        a("s_lshl_b32 %s, s2, 3", self.tmp)
        a("s_add_u32 %s, %s, %s", self.tmp, self.tmp, swave)
        a("s_lshl_b32 %s, %s, 6", self.tmp, self.tmp)
        a("v_mov_b32 %s, 0", v0)
        for i in range(self.n):
            a("v_mov_b32 %s, %s", v1, self.r[2 * i])
            a("buffer_store_dword %s, %s, %s, %s offen offset:%d", v1, v0, self.srd, self.tmp, 4 * i)


def kernel_head(a, name):
    a(".globl %s", name)
    a(".p2align 8")
    a(".type %s,@function", name)
    a.label(name)


def code_prefetch(a, r, vtmp, vdst, first, last, shift):
    a("s_getpc_b64 %s", r.sub(0, 2))
    lab = "PF_%s_%s" % (first, len(a.lines))
    a.label(lab)
    a("s_add_u32 %s, %s, %s-%s", r[0], r[0], first, lab)
    a("s_addc_u32 %s, %s, 0", r[1], r[1])
    a("s_mov_b32 %s, %s-%s", r[2], last, first)
    a("s_mov_b32 %s, 0x20000", r[3])
    a("v_lshlrev_b32 %s, %d, v0", vtmp, shift)
    a("buffer_load_dword %s, %s, %s, 0 offen", vdst, vtmp, r)


def load_ptrs(a):
    a("s_load_dwordx16 s[4:19], s[0:1], 0")
    a("s_load_dwordx2 s[20:21], s[0:1], 64")
    a("s_load_dwordx2 s[22:23], s[0:1], 80")
    P = {}
    for i, n in enumerate(["h", "pos", "ea", "src", "dst", "we", "wx", "wh", "out", "ws"]):
        P[n] = R("s", 4 + 2 * i, 2)
    return P


K1_LW, K1_LH = 0, 128 * 320
K1_LDS = K1_LH + 128 * 272
K1_HIST, K1_START, K1_STAGE = 0, 1024, 2048


def gen_k1(a):
    S = Regs("s", 24, 96)
    V = Regs("v", 1, 128)
    kernel_head(a, "egnn_part_kernel")
    ts = TS(a, S, 8, 0)
    a("s_cmp_ge_u32 s2, 512")
    a("s_cbranch_scc1 K1_END")
    P = load_ptrs(a)
    ts.init()
    ts.stamp(0)
    tid = R("v", 0)
    lane, t0, t1 = V.get(), V.get(), V.get()
    sw, sc, s0, s1, s2_, s3 = (S.get() for _ in range(6))
    r0, r1, r2, r3, r4 = (S.get(4, 4) for _ in range(5))
    sv = S.get(2, 2)
    a("v_lshrrev_b32 %s, 6, %s", t0, tid)
    a("v_and_b32 %s, 63, %s", lane, tid)
    a("v_readfirstlane_b32 %s, %s", sw, t0)
    a("s_and_b32 %s, s2, 255", sc)
    a("s_cmp_ge_u32 s2, 256")
    a("s_waitcnt lgkmcnt(0)")
    a("s_cbranch_scc%d K1_GEMM", 0 if OPT["k1_gemm_first"] else 1)
    a("s_cmp_eq_u32 %s, 7", sw)
    a("s_cbranch_scc1 K1_PREP")
    m = V.mark()
    dst, src, ea = V.get(4), V.get(4), V.get(2)
    b4, rk, ent = V.get(4), V.get(4), V.get(8)
    cnt, st, z4 = V.get(4), V.get(4), V.get(4)
    off16, one = V.get(), V.get()
    srd(a, r0, P["dst"], 0, E * 4)
    srd(a, r1, P["src"], 0, E * 4)
    srd(a, r2, P["ea"], 0, E * 2)
    a("s_mul_i32 %s, %s, %d", s0, sc, CH * 4)
    a("s_lshr_b32 %s, %s, 1", s1, s0)
    a("v_lshlrev_b32 %s, 4, %s", off16, tid)
    a("v_lshlrev_b32 %s, 3, %s", t0, tid)
    a("buffer_load_dwordx4 %s, %s, %s, %s offen", dst, off16, r0, s0)
    a("buffer_load_dwordx4 %s, %s, %s, %s offen", src, off16, r1, s0)
    a("buffer_load_dwordx2 %s, %s, %s, %s offen", ea, t0, r2, s1)
    for i in range(4):
        a("v_mov_b32 %s, 0", z4[i])
    a("v_lshlrev_b32 %s, 4, %s", t1, lane)
    a("ds_write_b128 %s, %s offset:%d", t1, z4, K1_HIST)
    a("v_mov_b32 %s, 1", one)
    a("s_sub_u32 %s, %d, %s", s2_, E * 4, s0)
    a("s_min_u32 %s, %s, %d", s2_, s2_, CH * 4)
    a("v_cmp_gt_u32 %s, %s, %s", sv, s2_, off16)
    a("s_mul_i32 %s, %s, %d", s0, sc, CHB)
    a("s_add_u32 %s, %s, %s", s0, s0, hex(WS_ENT))
    srd(a, r3, P["ws"], s0, CHB)
    srd(a, r4, P["ws"], WS_OFF, 64 * OFS)
    a("s_mov_b32 %s, 42800", s0)
    a("s_mov_b32 %s, -49", s1)
    a("s_mov_b32 %s, 0xffff0000", s3)
    a("s_waitcnt lgkmcnt(0)")
    a("s_barrier")
    a("s_waitcnt vmcnt(2)")
    ts.stamp(1)
    for k in range(4):
        a("v_mul_u32_u24 %s, %s, %s", b4[k], s0, dst[k])
    for k in range(4):
        a("v_lshrrev_b32 %s, 22, %s", b4[k], b4[k])
    for k in range(4):
        a("v_lshlrev_b32 %s, 2, %s", b4[k], b4[k])
    a("s_mov_b64 exec, %s", sv)
    a("s_cbranch_execz K1_P1")
    for k in range(4):
        a("ds_add_rtn_u32 %s, %s, %s offset:%d", rk[k], b4[k], one, K1_HIST)
    a.label("K1_P1")
    a("s_mov_b64 exec, -1")
    for k in range(4):
        a("v_lshlrev_b32 %s, 1, %s", dst[k], dst[k])
        a("v_mad_i32_i24 %s, %s, %s, %s", dst[k], b4[k], s1, dst[k])
        a("v_and_b32 %s, 12, %s", st[k], dst[k])
        a("v_and_b32 %s, 14, %s", cnt[k], dst[k])
        a("v_add_u32 %s, %s, %s", st[k], st[k], cnt[k])
        a("v_lshl_or_b32 %s, %s, 8, %s", dst[k], st[k], dst[k])
    a("s_waitcnt lgkmcnt(0)")
    a("s_barrier")
    a("ds_read_b128 %s, %s offset:%d", cnt, t1, K1_HIST)
    a("s_waitcnt vmcnt(0)")
    for k in range(4):
        a("v_cvt_f32_ubyte0 %s, %s", ent[2 * k], src[k])
        a("v_or_b32 %s, 0x8000, %s", src[k], src[k])
        a("v_cvt_f32_ubyte1 %s, %s", src[k], src[k])
        a("v_cvt_pk_bf16_f32 %s, %s, %s", ent[2 * k], ent[2 * k], src[k])
        if k % 2 == 0:
            a("v_lshl_or_b32 %s, %s, 16, %s", ent[2 * k + 1], ea[k // 2], dst[k])
        else:
            a("v_and_or_b32 %s, %s, %s, %s", ent[2 * k + 1], ea[k // 2], s3, dst[k])
    a("s_waitcnt lgkmcnt(0)")
    a("v_add_u32 %s, %s, %s", st[2], cnt[0], cnt[1])
    a("v_add_u32 %s, %s, %s", st[3], st[2], cnt[2])
    a("v_add_u32 %s, %s, %s", st[1], st[3], cnt[3])
    a("v_mov_b32 %s, %s", t0, st[1])
    wave_scan(a, t0)
    a("v_sub_u32 %s, %s, %s", st[0], t0, st[1])
    a("v_add_u32 %s, %s, %s", st[1], st[0], cnt[0])
    a("v_add_u32 %s, %s, %s", st[2], st[0], st[2])
    a("v_add_u32 %s, %s, %s", st[3], st[0], st[3])
    a("ds_write_b128 %s, %s offset:%d", t1, st, K1_START)
    for k in range(4):
        a("ds_read_b32 %s, %s offset:%d", dst[k], b4[k], K1_START)
    a("s_cmp_lg_u32 %s, 0", sw)
    a("s_cbranch_scc1 K1_P2")
    for k in range(4):
        a("v_lshl_or_b32 %s, %s, 16, %s", cnt[k], cnt[k], st[k])
    a("v_mul_u32_u24 %s, %d, %s", t0, OFS, lane)
    a("s_lshl_b32 %s, %s, 4", s0, sc)
    a("buffer_store_dwordx4 %s, %s, %s, %s offen %s", cnt, t0, r4, s0, OPT["st1"])
    a.label("K1_P2")
    a("s_waitcnt lgkmcnt(0)")
    for k in range(4):
        a("v_add_lshl_u32 %s, %s, %s, 3", dst[k], dst[k], rk[k])
    a("s_mov_b64 exec, %s", sv)
    a("s_cbranch_execz K1_P3")
    for k in range(4):
        a("ds_write_b64 %s, %s offset:%d", dst[k], ent.sub(2 * k, 2), K1_STAGE)
    a.label("K1_P3")
    a("s_mov_b64 exec, -1")
    a("s_waitcnt lgkmcnt(0)")
    a("s_barrier")
    a("ds_read_b128 %s, %s offset:%d", dst, off16, K1_STAGE)
    a("ds_read_b128 %s, %s offset:%d", src, off16, K1_STAGE + 448 * 16)
    a("s_mov_b32 %s, %d", s0, 448 * 16)
    a("s_waitcnt lgkmcnt(1)")
    a("buffer_store_dwordx4 %s, %s, %s, 0 offen %s", dst, off16, r3, OPT["st1"])
    a("s_waitcnt lgkmcnt(0)")
    a("buffer_store_dwordx4 %s, %s, %s, %s offen %s", src, off16, r3, s0, OPT["st1"])
    ts.stamp(2)
    if OPT["ts"]:
        a("s_waitcnt vmcnt(0)")
        ts.stamp(3)
        ts.dump(P["ws"], sw, t0, t1)
    a("s_endpgm")

    V.reset(m)
    a.label("K1_PREP")
    pa, pb, w = V.get(4), V.get(4), V.get(8)
    col, kh, ad, ad2, ks, o16 = (V.get() for _ in range(6))
    srd(a, r0, P["pos"], 0, N * 6)
    srd(a, r1, P["ws"], POS_BASE + BIAS, N * 16)
    srd(a, r4, P["ws"], WS_WF, 98304 + 2048)
    if OPT["cpf"] & 2:
        a("v_mov_b32 v0, %s", lane)
        code_prefetch(a, r3, t0, ks, "K1_END", "K2_END", 7)
        a("s_mov_b32 %s, 8192", s0)
        a("buffer_load_dword %s, %s, %s, %s offen", ks, t0, r3, s0)
    a("s_mul_i32 %s, %s, %d", s0, sc, BN * 6)
    a("v_mul_u32_u24 %s, 6, %s", t0, lane)
    for j in range(3):
        a("buffer_load_ushort %s, %s, %s, %s offen offset:%d", pa[j], t0, r0, s0, 2 * j)
    for j in range(3):
        a("buffer_load_ushort %s, %s, %s, %s offen offset:%d", pb[j], t0, r0, s0, 384 + 2 * j)
    a("v_and_b32 %s, 31, %s", col, lane)
    a("v_lshrrev_b32 %s, 5, %s", kh, lane)
    a("v_lshlrev_b32 %s, 4, %s", o16, lane)
    a("v_mov_b32 %s, 0", pa[3])
    a("v_mov_b32 %s, 0", pb[3])
    a("s_cmp_ge_u32 %s, 96", sc)
    a("s_cbranch_scc1 K1_PREP_X")
    a("s_and_b32 %s, %s, 7", s1, sc)
    a("s_bfe_u32 %s, %s, 0x20003", s2_, sc)
    a("s_cmp_ge_u32 %s, 32", sc)
    a("s_cbranch_scc1 K1_PREP_H")
    srd(a, r2, P["we"], 0, 258 * 256)
    a("s_lshl_b32 %s, %s, 6", s2_, s2_)
    a("v_lshlrev_b32 %s, 1, %s", ad, col)
    a("s_branch K1_PREP_K")
    a.label("K1_PREP_H")
    srd(a, r2, P["wh"], 0, 256 * 256)
    a("s_and_b32 %s, %s, 1", s3, s2_)
    a("s_lshr_b32 %s, %s, 1", s2_, s2_)
    a("s_lshl_b32 %s, %s, 6", s2_, s2_)
    a("s_add_u32 %s, %s, %s", s2_, s2_, s3)
    a("s_lshl_b32 %s, %s, 1", s2_, s2_)
    a("v_lshlrev_b32 %s, 2, %s", ad, col)
    a("s_cmp_ge_u32 %s, 64", sc)
    a("s_cbranch_scc1 K1_PREP_H2")
    a.label("K1_PREP_K")
    a("s_lshl_b32 %s, %s, 12", s1, s1)
    a("s_add_u32 %s, %s, %s", s1, s1, s2_)
    a("v_lshl_add_u32 %s, %s, 11, %s", ad, kh, ad)
    for j in range(8):
        a("buffer_load_ushort %s, %s, %s, %s offen offset:%d", w[j], ad, r2, s1, 256 * j)
    a("s_branch K1_PREP_W")
    a.label("K1_PREP_H2")
    a("s_lshr_b32 %s, %s, 2", s3, s1)
    a("s_lshl_b32 %s, %s, 6", s3, s3)
    a("s_and_b32 %s, %s, 3", s1, s1)
    a("s_lshl_b32 %s, %s, 3", s1, s1)
    a("s_add_u32 %s, %s, %s", s1, s1, s3)
    a("s_add_u32 %s, %s, 128", s1, s1)
    a("s_lshl_b32 %s, %s, 8", s1, s1)
    a("s_add_u32 %s, %s, %s", s1, s1, s2_)
    a("v_lshl_add_u32 %s, %s, 10, %s", ad, kh, ad)
    a("v_add_u32 %s, 8192, %s", ad2, ad)
    for j in range(8):
        a("buffer_load_ushort %s, %s, %s, %s offen offset:%d", w[j], ad2 if j & 1 else ad, r2, s1, 256 * (j >> 1))
    a.label("K1_PREP_W")
    a("s_barrier\ns_barrier\ns_barrier\ns_waitcnt vmcnt(0)")
    for j in range(4):
        a("v_lshl_or_b32 %s, %s, 16, %s", w[j], w[2 * j + 1], w[2 * j])
    a("s_lshl_b32 %s, %s, 10", s1, sc)
    a("buffer_store_dwordx4 %s, %s, %s, %s offen %s", w.sub(0, 4), o16, r4, s1, OPT["st1"])
    a("s_branch K1_PREP_P2")
    a.label("K1_PREP_X")
    a("s_cmp_gt_u32 %s, 97", sc)
    a("s_cbranch_scc1 K1_PREP_P")
    a("s_cmp_eq_u32 %s, 97", sc)
    a("s_cbranch_scc1 K1_PREP_WX")
    srd(a, r2, P["we"], 0, 258 * 256)
    a("v_lshlrev_b32 %s, 1, %s", ad, lane)
    a("s_mov_b32 %s, 65536", s1)
    for xy in range(2):
        a("buffer_load_ushort %s, %s, %s, %s offen offset:%d", w[4 + 2 * xy], ad, r2, s1, 128 * xy)
        a("buffer_load_ushort %s, %s, %s, %s offen offset:%d", w[5 + 2 * xy], ad, r2, s1, 256 + 128 * xy)
    a("s_barrier\ns_barrier\ns_barrier\ns_waitcnt vmcnt(0)")
    for j in range(4, 8):
        a("v_lshlrev_b32 %s, 16, %s", w[j], w[j])
        a("v_mul_f32 %s, %s, %s", w[j], hex(LOG2E), w[j])
    for xy in range(2):
        d_, a_ = w[4 + 2 * xy], w[5 + 2 * xy]
        a("v_cvt_pk_bf16_f32 %s, %s, %s", w[2 * xy], d_, a_)
        a("v_lshlrev_b32 %s, 16, %s", t0, w[2 * xy])
        a("v_and_b32 %s, 0xffff0000, %s", t1, w[2 * xy])
        a("v_sub_f32 %s, %s, %s", d_, d_, t0)
        a("v_sub_f32 %s, %s, %s", a_, a_, t1)
        a("v_cvt_pk_bf16_f32 %s, %s, %s", w[2 * xy + 1], d_, a_)
    a("s_mov_b32 %s, 98304", s1)
    a("buffer_store_dwordx4 %s, %s, %s, %s offen %s", w.sub(0, 4), o16, r4, s1, OPT["st1"])
    a("s_branch K1_PREP_P2")
    a.label("K1_PREP_WX")
    srd(a, r2, P["wx"], 0, 256)
    a("v_lshlrev_b32 %s, 1, %s", ad, col)
    for j in range(4):
        a("buffer_load_ushort %s, %s, %s, 0 offen offset:%d", w[j], ad, r2, 64 * j)
    a("s_barrier\ns_barrier\ns_barrier\ns_waitcnt vmcnt(0)")
    for j in range(4):
        a("v_lshlrev_b32 %s, 16, %s", w[j], w[j])
        a("v_mul_f32 %s, %s, %s", w[j], hex(f32(0.6931471805599453 * (1 + DELTA))), w[j])
    a("s_mov_b32 %s, %d", s1, 98304 + 1024)
    a("buffer_store_dwordx4 %s, %s, %s, %s offen %s", w.sub(0, 4), o16, r4, s1, OPT["st1"])
    a("s_branch K1_PREP_P2")
    a.label("K1_PREP_P")
    a("s_barrier\ns_barrier\ns_barrier\ns_waitcnt vmcnt(0)")
    a.label("K1_PREP_P2")
    for j in range(3):
        a("v_lshlrev_b32 %s, 16, %s", pa[j], pa[j])
        a("v_lshlrev_b32 %s, 16, %s", pb[j], pb[j])
    a("s_mul_i32 %s, %s, %d", s0, sc, BN * 16)
    a("buffer_store_dwordx4 %s, %s, %s, %s offen %s", pa, o16, r1, s0, OPT["st1"])
    a("s_mov_b32 exec_hi, 3")
    a("buffer_store_dwordx4 %s, %s, %s, %s offen offset:1024 %s", pb, o16, r1, s0, OPT["st1"])
    a("s_endpgm")

    V.reset(m)
    a.label("K1_GEMM")
    ts.stamp(4)
    a("s_and_b32 %s, %s, 7", s0, sc)
    a("s_lshr_b32 %s, %s, 3", s1, sc)
    a("s_lshl_b32 %s, %s, 5", sc, s0)
    a("s_add_u32 %s, %s, %s", sc, sc, s1)
    o16, aw, ah, ar, br, so, sg = (V.get() for _ in range(7))
    hv = V.get(16, 4)
    acc = [V.get(16, 4), V.get(16, 4)]
    wv = acc[0]
    bf = V.get(64, 4)
    srd(a, r1, P["we"], 32768, 32768)
    a("v_lshlrev_b32 %s, 4, %s", o16, tid)
    for i in range(4):
        if i:
            a("s_mov_b32 %s, %d", s1, 8192 * i)
        a("buffer_load_dwordx4 %s, %s, %s, %s offen", wv.sub(4 * i, 4), o16, r1, s1 if i else "0")
    srd(a, r0, P["h"], 0, N * 256)
    a("s_mul_i32 %s, %s, %d", s0, sc, BN * 256)
    for i in range(4):
        if i:
            a("s_add_u32 %s, %s, %d", s1, s0, 8192 * i)
        if i == 3:
            a("s_cmp_lt_u32 %s, 2", sw)
            a("s_cselect_b32 %s, %s, %s", s1, s1, hex(OOR))
        a("buffer_load_dwordx4 %s, %s, %s, %s offen", hv.sub(4 * i, 4), o16, r0, s1 if i else s0)
    srd(a, r2, P["ws"], WS_BP, N * 256)
    NJ = 0
    if OPT["own"]:
        NJ = 1
        a("v_lshlrev_b32 %s, %d, %s", t0, OPT["own"], tid)
        a("v_cmp_gt_u32 vcc, %d, %s", BN * 256, t0)
        a("v_mov_b32 %s, %s", t1, hex(OOR))
        a("s_nop 0")
        a("v_cndmask_b32 %s, %s, %s, vcc", t0, t1, t0)
        a("buffer_store_dword %s, %s, %s, %s offen %s", t1, t0, r2, s0, OPT["st1"])
    a("v_lshrrev_b32 %s, 4, %s", t0, tid)
    a("v_lshl_add_u32 %s, %s, 6, %s", aw, t0, o16)
    a("v_lshl_add_u32 %s, %s, 4, %s", ah, t0, o16)
    a("v_add_u32 %s, %d, %s", ah, K1_LH, ah)
    a("s_lshr_b32 %s, %s, 1", s2_, sw)
    a("s_and_b32 %s, %s, 1", s3, sw)
    a("v_and_b32 %s, 31, %s", t0, lane)
    a("v_lshrrev_b32 %s, 5, %s", t1, lane)
    a("v_mul_u32_u24 %s, 272, %s", ar, t0)
    a("v_lshl_add_u32 %s, %s, 4, %s", ar, t1, ar)
    a("s_mul_i32 %s, %s, %d", s1, s2_, 24 * 272)
    a("s_add_u32 %s, %s, %d", s1, s1, K1_LH)
    a("v_add_u32 %s, %s, %s", ar, s1, ar)
    a("s_lshl_b32 %s, %s, 12", s1, sw)
    a("v_lshl_add_u32 %s, %s, 2, %s", so, t0, s1)
    a("v_lshl_add_u32 %s, %s, 9, %s", so, t1, so)
    a("v_bfe_u32 %s, %s, 2, 2", br, lane)
    a("v_lshl_add_u32 %s, %s, 3, %s", br, t1, br)
    a("v_mul_u32_u24 %s, 320, %s", br, br)
    a("v_bfe_u32 %s, %s, 4, 1", t0, lane)
    a("v_lshl_add_u32 %s, %s, 5, %s", br, t0, br)
    a("v_and_b32 %s, 3, %s", t0, lane)
    a("v_lshl_add_u32 %s, %s, 3, %s", br, t0, br)
    a("s_lshl_b32 %s, %s, 7", s3, s3)
    a("v_add_u32 %s, %s, %s", br, s3, br)
    a("v_lshl_add_u32 %s, %s, 4, %s", o16, lane, s1)
    a("v_lshrrev_b32 %s, 3, %s", t0, lane)
    a("v_and_b32 %s, 7, %s", t1, lane)
    a("v_lshlrev_b32 %s, 4, %s", t1, t1)
    a("v_lshl_add_u32 %s, %s, 8, %s", sg, t0, t1)
    a("s_mul_i32 %s, %s, %d", s1, s2_, 24 * 256)
    a("s_add_u32 %s, %s, %s", s0, s0, s1)
    a("s_add_u32 %s, %s, %s", s0, s0, s3)
    a("s_add_u32 %s, %s, 4096", s1, s0)
    a("s_mov_b32 %s, %s", sv[0], hex(LOG2E))
    a("s_mov_b32 %s, %s", sv[1], hex(LOG2E))
    ts.stamp(5)
    for i in range(4):
        a("s_waitcnt vmcnt(%d)", 7 - i + NJ)
        a("ds_write_b128 %s, %s offset:%d", aw, wv.sub(4 * i, 4), K1_LW + 32 * 320 * i)
    a("s_waitcnt lgkmcnt(0)")
    ts.stamp(6)
    a("s_barrier")
    for ks in range(8):
        for lh in range(2):
            for i in range(2):
                a("ds_read_b64_tr_b16 %s, %s offset:%d", bf.sub(8 * ks + 4 * lh + 2 * i, 2), br,
                  K1_LW + (16 * ks + 4 * i) * 320 + 64 * lh)
    ts.stamp(7)
    for i in range(4):
        a("s_waitcnt vmcnt(%d)", 3 - i + NJ)
        a("ds_write_b128 %s, %s offset:%d", ah, hv.sub(4 * i, 4), 32 * 272 * i)
    a("s_waitcnt lgkmcnt(0)")
    ts.stamp(1)
    a("s_barrier")
    rd = lambda ks: a("ds_read_b128 %s, %s offset:%d", hv.sub(4 * (ks & 3), 4), ar, 32 * ks)
    for ks in range(4):
        rd(ks)
    for ks in range(8):
        a("s_waitcnt lgkmcnt(%d)", min(3, 7 - ks))
        for lh in range(2):
            a(MF16, acc[lh], hv.sub(4 * (ks & 3), 4), bf.sub(8 * ks + 4 * lh, 4), acc[lh] if ks else "0")
        if ks < 4:
            rd(ks + 4)
    if NJ:
        a("s_waitcnt vmcnt(0)")
        a("s_barrier")
    a("s_nop 11")

    def fin(r0_, r1_):
        for r in range(r0_, r1_, 2):
            for lh in range(2):
                a("v_pk_mul_f32 %s, %s, %s", acc[lh].sub(r, 2), acc[lh].sub(r, 2), sv)
            for q in (r, r + 1):
                a("v_cvt_pk_bf16_f32 %s, %s, %s", acc[0][q], acc[0][q], acc[1][q])
                a("ds_write_b32 %s, %s offset:%d", so, acc[0][q], (8 * (q // 4) + q % 4) * 128)
            if r % 4 == 2 or r == 12:
                i = r // 4
                a("ds_read_b128 %s, %s offset:%d", hv.sub(4 * i, 4), o16, 1024 * i)
                if 0 < i < 3:
                    a("s_waitcnt lgkmcnt(5)")
                    sto(i - 1)

    def sto(i):
        a("buffer_store_dwordx4 %s, %s, %s, %s offen offset:%d %s", hv.sub(4 * i, 4), sg, r2, s1 if i >= 2 else s0,
          (i & 1) * 2048, OPT["st1"])
    fin(0, 12)
    a("s_waitcnt lgkmcnt(0)")
    sto(2)
    a("s_cmp_lg_u32 %s, 3", s2_)
    a("s_cbranch_scc1 K1_G_END")
    fin(12, 14)
    a("s_mov_b64 exec, 0xffff")
    a("s_waitcnt lgkmcnt(0)")
    sto(3)
    a.label("K1_G_END")
    ts.stamp(2)
    if OPT["ts"]:
        a("s_waitcnt vmcnt(0)")
        ts.stamp(3)
        ts.dump(P["ws"], sw, t0, t1)
    a.label("K1_END")
    a("s_endpgm")
    return V.hi, S.hi


L_AT = 0
L_S = 49 * 512
L_E = L_S + (CAP + 128) * 4
L_HIST = L_E + (CAP + 128) * 4
L_FLAG = L_HIST + 256
L_START = L_FLAG + 256
L_POS = L_START + 256
L_GT = L_POS + 2048
L_RING = L_GT + 49 * 512
PS = 2048 + 128
RS = 1024 + PS + 2048
L_MACC = L_RING + 8 * RS
PB = 928
K2_LDS = L_MACC + 50 * PB
L_H = L_MACC
assert L_S % 256 == 0 and L_E % 256 == 0 and K2_LDS <= 163840 and 112 * 272 <= 49 * PB
LOOR = 0x80000
QF, QS = 24, 4
assert 256 * QS + 49 * 16 <= CAP


def gen_k2(a):
    S = Regs("s", 10, 102)
    V = Regs("v", 1, 256)
    kernel_head(a, "egnn_main_kernel")
    ts = TS(a, S, 8, 1)
    a("s_cmp_ge_u32 s2, 256")
    a("s_cbranch_scc1 K2_END")
    P = dict(h=R("s", 4, 2), out=R("s", 6, 2), ws=R("s", 8, 2))
    a("s_load_dwordx2 s[8:9], s[0:1], 80")
    a("s_load_dwordx2 s[4:5], s[0:1], 0")
    a("s_load_dwordx2 s[6:7], s[0:1], 64")
    ts.init()
    ts.stamp(0)
    tid = R("v", 0)
    lane, vh, fbase, tb16, tb32, bS4, bOH, nS, nE, bE, bP, posc, isel, iseg, vflag = (V.get() for _ in range(15))
    pp2 = V.get(2)
    clr = V.get()
    Q = [V.get(16, 4) for _ in range(4)]
    Qall = R("v", Q[0].i, 64)
    y = [V.get(16, 4), V.get(16, 4)]
    yall = R("v", y[0].i, 32)
    e = [V.get(16, 4), V.get(16, 4)]
    eall = R("v", e[0].i, 32)
    adr = V.get(16, 4)
    ldall = V.get(16, 4)
    ld = [ldall.sub(0, 8), ldall.sub(8, 8)]
    sel, zero = V.get(4, 4), V.get(4, 4)
    Bop = [V.get(4, 4), V.get(4, 4)]
    WX, oh, S4 = V.get(4, 4), V.get(4, 4), V.get(4, 4)
    psrc, pdst = V.get(4, 4), V.get(4, 4)
    ones, aB, aA, c64 = V.get(2), V.get(2), V.get(2), V.get(2)
    one = c64[0]
    T = V.get(24, 4)
    selG, C4 = V.get(4, 4), V.get(4, 4)
    rBP, rPOS, rWS, rH = (S.get(4, 4) for _ in range(4))
    (sw, snb, sJ, sq, smore, stot, sU, snu, su0, su, spa, sinc, sflu, sfq, sret, srmw, srnd, sql, sshr,
     sev, sbat, srare) = (S.get() for _ in range(22))
    snr = su
    s0, s1, s2_, s3, s4, sdot, slo, shi = (S.get() for _ in range(8))
    sval, sx, sstep, swrap, spm = (S.get(2, 2) for _ in range(5))
    srt, so0, so1 = (S.get() for _ in range(3))
    t0, t1, t2, t3 = T[0], T[1], T[2], T[3]
    X = OPT["x"]
    if OPT["cpf"] & 1:
        code_prefetch(a, rBP, t0, T[14], "K2_ROUND", "K2_END", 7)

    a("v_lshrrev_b32 %s, 6, %s", t0, tid)
    a("v_and_b32 %s, 63, %s", lane, tid)
    a("v_readfirstlane_b32 %s, %s", sw, t0)
    a("s_and_b32 %s, s2, 7", s0)
    a("s_lshr_b32 %s, s2, 3", s1)
    a("s_lshl_b32 %s, %s, 5", snb, s0)
    a("s_add_u32 %s, %s, %s", snb, snb, s1)
    a("s_mul_i32 %s, %s, %d", snb, snb, BN)
    ent = Qall.sub(0, 48)
    rk, bn = yall.sub(0, 24), eall.sub(0, 24)
    stv = R("v", adr.i, 24)
    voff, vrem, vea, seg = T[20], T[21], T[22], T[23]
    hst = R("v", adr.i, 28)
    Wf = [yall, eall]
    acc = Q
    o16, l16 = T[18], T[19]
    a("v_and_b32 %s, 255, %s", seg, tid)
    a("v_lshlrev_b32 %s, 4, %s", o16, seg)
    a("v_lshlrev_b32 %s, 4, %s", l16, lane)
    for i in range(4):
        a("v_mov_b32 %s, 0", zero[i])
    a("v_lshrrev_b32 %s, 5, %s", vh, lane)
    a("v_and_b32 %s, 31, %s", t0, lane)
    a("v_lshlrev_b32 %s, 2, %s", t1, t0)
    a("v_mul_u32_u24 %s, %d, %s", t2, PB, vh)
    a("s_mov_b32 %s, %d", s0, L_MACC)
    a("v_add3_u32 %s, %s, %s, %s", fbase, t1, t2, s0)
    a("v_mov_b32 %s, 0x3f80", c64[0])
    a("v_mov_b32 %s, 0", c64[1])
    a("v_mov_b32 %s, 0x3f003f00", ones[0])
    a("v_mov_b32 %s, 0", ones[1])
    a("v_mov_b32 %s, 0x3f80", aA[1])
    a("v_mov_b32 %s, 0xdddd", iseg)
    a("v_mov_b32 %s, %s", posc, hex(f32((2.0 ** 23 - 2.0 ** 19) * 2.0 ** -126)))
    a("s_mov_b32 %s, %s", sdot, hex((5 << 7) | (13 << 23)))
    a("s_mov_b32 %s, 512", sstep[0])
    a("s_mov_b32 %s, 256", sstep[1])
    a("s_mov_b32 %s, -2048", swrap[0])
    a("s_mov_b32 %s, -1025", swrap[1])
    a("s_mov_b32 %s, 0x3f80", slo)
    a("s_mov_b32 %s, 0x3f800000", shi)
    a("v_cvt_f32_u32 %s, %s", t1, t1)
    a("v_mul_f32 %s, 0x00800000, %s", t1, t1)
    a("v_lshrrev_b32 %s, 16, %s", t1, t1)
    a("v_cmp_gt_u32 vcc, 32, %s", lane)
    a("v_mov_b32 %s, %s", t2, hex((9 << 7) | (17 << 23)))
    a("s_mul_i32 %s, %s, %d", s0, sw, RS)
    a("s_add_u32 %s, %s, %d", s0, s0, L_RING)
    a("s_add_u32 %s, %s, 1024", s1, s0)
    a("v_cndmask_b32 %s, 0, %s, vcc", aB[0], t2)
    a("v_cndmask_b32 %s, 0, %s, vcc", aB[1], t1)
    a("v_add_u32 %s, %s, %s", tb16, s0, l16)
    a("v_lshl_add_u32 %s, %s, 5, %s", tb32, lane, s1)
    a("v_and_b32 %s, 0xf0, %s", t1, l16)
    a("v_add_u32 %s, %s, %s", t1, s0, t1)
    a("v_add_u32 %s, -16, %s", t2, lane)
    a("v_cmp_gt_u32 vcc, 32, %s", t2)
    a("v_mov_b32 %s, %s", t2, hex(LOOR))
    a("v_bfe_u32 %s, %s, 2, 2", t3, lane)
    a("v_cndmask_b32 %s, %s, %s, vcc", bOH, t1, t2)
    a("v_cmp_eq_u32 vcc, 0, %s", lane)
    a("s_lshl_b32 %s, %s, 2", s2_, sw)
    a("v_mov_b32 %s, %s", t1, s2_)
    a("v_cndmask_b32 %s, %s, %s, vcc", vflag, t2, t1)
    a("v_lshl_add_u32 %s, %s, 3, %s", t3, vh, t3)
    a("v_lshlrev_b32 %s, 5, %s", t3, t3)
    a("v_and_b32 %s, 1, %s", t1, lane)
    a("v_lshl_add_u32 %s, %s, 3, %s", t3, t1, t3)
    a("v_and_b32 %s, 16, %s", t2, lane)
    a("v_add_u32 %s, %s, %s", t3, t3, t2)
    a("v_bfe_u32 %s, %s, 1, 1", t0, lane)
    a("v_mul_u32_u24 %s, %d, %s", t0, PS, t0)
    a("v_add3_u32 %s, %s, %s, %s", bS4, t0, t3, s1)
    a("v_lshrrev_b32 %s, 4, %s", t2, t2)
    a("v_lshl_add_u32 %s, %s, 1, %s", t1, t1, t2)
    a("v_mul_u32_u24 %s, 0x5555, %s", isel, t1)
    a("v_bfe_u32 %s, %s, 1, 3", t1, lane)
    a("v_lshlrev_b32 %s, 2, %s", t3, vh)
    a("v_xor_b32 %s, %s, %s", t1, t1, t3)
    for t in range(4):
        a("v_cmp_eq_u32 vcc, %d, %s", t, t1)
        a("s_nop 1")
        a("v_cndmask_b32 %s, 0, %s, vcc", sel[t], one)
    a("s_mov_b32 %s, 0", sJ)
    a("s_mov_b32 %s, %d", sq, QF)
    a("s_mov_b32 %s, 0", srnd)

    def offaddr():
        a("s_lshr_b32 %s, s2, 5", s1)
        a("s_and_b32 %s, s2, 7", s0)
        a("s_lshl_b32 %s, %s, 3", s0, s0)
        a("s_add_u32 %s, %s, %s", s0, s0, s1)
        a("s_mul_i32 %s, %s, %d", s0, s0, OFS)
        a("s_bfe_u32 %s, s2, 0x20003", s1)
        a("s_lshl_b32 %s, %s, 2", s1, s1)
        a("s_add_u32 %s, %s, %s", s0, s0, s1)
        a("s_add_u32 %s, %s, %s", s0, s0, hex(WS_OFF))

    def small():
        a("s_mov_b32 %s, %s", s0, hex(WS_W3))
        a("buffer_load_dwordx2 %s, %s, %s, %s offen", Bop[0].sub(2, 2), l16, rWS, s0)
        a("buffer_load_dwordx2 %s, %s, %s, %s offen offset:8", Bop[1].sub(2, 2), l16, rWS, s0)
        a("buffer_load_dwordx4 %s, %s, %s, %s offen offset:1024", WX, l16, rWS, s0)
    offaddr()
    a("v_lshlrev_b32 %s, 3, %s", t3, lane)
    a("ds_write_b64 %s, %s offset:%d", t3, zero.sub(0, 2), L_HIST)
    a("s_waitcnt lgkmcnt(0)")
    a("s_barrier")
    srd(a, rWS, P["ws"], 0, WS_SIZE)
    srd(a, rH, P["h"], 0, N * 256)
    srd(a, rPOS, P["ws"], POS_BASE, BIAS + N * 16)
    srd(a, rBP, P["ws"], 0, BIAS + N * 256)
    a("s_cmp_lt_u32 %s, 4", sw)
    a("s_cbranch_scc1 K2_G0")
    a("s_setprio 2")
    a("buffer_load_dword %s, %s, %s, %s offen", voff, o16, rWS, s0)
    small()
    if "p0" not in X:
        a("s_setprio 0")
    a("s_waitcnt vmcnt(3)")
    a.label("K2_ROUND")
    ts.stamp(1)
    a("v_lshrrev_b32 %s, 16, %s", vrem, voff)
    a("v_and_b32 %s, 0xffff, %s", t0, voff)
    a("v_subrev_u32 %s, %s, %s", vrem, sJ, vrem)
    a("v_mul_u32_u24 %s, %d, %s", t2, CHB, seg)
    a("v_cmp_lt_i32 %s, %s, %s", sx, sq, vrem)
    a("v_min_i32 %s, %s, %s", vrem, sq, vrem)
    a("v_add_u32 %s, %s, %s", t0, sJ, t0)
    a("v_lshl_add_u32 %s, %s, 3, %s", vea, t0, t2)
    a("s_mov_b32 %s, %s", s0, hex(WS_ENT))
    for i in range(QF // 2):
        a("v_cmpx_lt_i32 vcc, %d, %s", 2 * i, vrem)
        a("s_cbranch_execz K2_R1")
        a("buffer_load_dwordx4 %s, %s, %s, %s offen offset:%d", ent.sub(4 * i, 4), vea, rWS, s0, 16 * i)
        if "ent%d," % (i + 1) in X:
            a("s_mov_b64 exec, -1")
            a("s_waitcnt vmcnt(0)")
            ts.stamp(2)
    a.label("K2_R1")
    a("s_mov_b64 exec, -1")
    a("v_mov_b32 %s, 1", t1)
    if "p1" in X:
        a("s_setprio 2")
    a("s_mov_b64 exec, %s", sx)
    a("s_cbranch_execz K2_R2")
    a("ds_write_b32 %s, %s offset:%d", zero[0], t1, L_HIST + 63 * 4)
    a.label("K2_R2")
    a("s_mov_b64 exec, -1")
    a("s_mov_b32 %s, 0", snr)
    a("s_waitcnt vmcnt(0)")
    if "ent" not in X:
        ts.stamp(2)
    for k in range(QF):
        a("v_cmpx_lt_i32 vcc, %d, %s", k, vrem)
        if k % 2 == 0:
            a("s_cbranch_execz K2_R3")
            a("s_mov_b32 %s, %d", snr, k + 2)
        a("v_and_b32 %s, 0xfc, %s", bn[k], ent[2 * k + 1])
        a("ds_add_rtn_u32 %s, %s, %s offset:%d", rk[k], bn[k], t1, L_HIST)
    a.label("K2_R3")
    a("s_mov_b64 exec, -1")
    a("ds_write_b32 %s, %s offset:%d", vflag, one, L_FLAG + 64)
    a("s_branch K2_R4")

    ar, wa, wa2 = T[16], T[17], T[15]
    PF = OPT["pf"]

    cn, mx, st, l4 = pdst[0], pdst[1], pdst[2], psrc[3]

    def scan_ops():
        o = ["v_readlane_b32 %s, %s, 63" % (smore, cn),
             "v_max_u32 %s, 16, %s\nv_cndmask_b32 %s, 0, %s, %s\nv_mov_b32 %s, %s" % (mx, cn, mx, mx, sx, st, mx)]
        for m_ in ("row_shr:1 row_mask:0xf", "row_shr:2 row_mask:0xf", "row_shr:4 row_mask:0xf", "row_shr:8 row_mask:0xf",
                   "row_bcast:15 row_mask:0xa", "row_bcast:31 row_mask:0xc"):
            o.append("v_add_u32_dpp %s, %s, %s %s bank_mask:0xf" % (st, st, st, m_))
        o.append("v_readlane_b32 %s, %s, 63" % (stot, st))
        return o

    def gemm():
        abuf, nb = R("v", adr.i, 32), 8
        seq = [(t, ks) for t in range(8) for ks in range(8)]
        afb = lambda n: abuf.sub(4 * (n % nb), 4)
        order = []
        sc = [s4, s3]
        wad = [wa, wa2]

        def rdA(n):
            a("ds_read_b128 %s, %s offset:%d", afb(n), ar, (seq[n][0] % 4) * 24 * 272 + 32 * seq[n][1])
            order.append(n)

        def out(t, i):
            q = acc[t % 4]
            a("v_mul_f32 %s, %s, %s", q[2 * i], sc[t // 4], q[2 * i])
            a("v_mul_f32 %s, %s, %s", q[2 * i + 1], sc[t // 4], q[2 * i + 1])
            a("v_cvt_pk_bf16_f32 %s, %s, %s", q[2 * i], q[2 * i], q[2 * i + 1])

        def wr(t, i):
            o, q = (12 * (t % 4) + 4 * (i // 2)) * 2, acc[t % 4]
            if i == 6:
                a("s_mov_b32 exec_hi, 0")
                a("ds_write_b32 %s, %s offset:%d", wad[t // 4], q[12], o * 256)
                a("s_mov_b64 exec, -1")
            else:
                a("ds_write2st64_b32 %s, %s, %s offset0:%d offset1:%d", wad[t // 4], q[2 * i], q[2 * i + 2], o, o + 2)
            order.append("w")
        a("s_mov_b32 %s, %s", s4, hex(LOG2E))
        a("s_mov_b32 %s, %s", s3, hex(f32(1.4426950408889634 / (1 + DELTA))))
        for n in range(nb):
            rdA(n)
        NB = OPT["gb"]
        for n, (t, ks) in enumerate(seq):
            if n % 2 == 0:
                w = "lgkmcnt(%d)" % (len(order) - 1 - order.index(n + 1))
                if t % 4 == 0:
                    w = "vmcnt(%d) " % (6 - ks + (0 if t == 0 else 3)) + w
                a("s_waitcnt " + w)
            a(MF16, acc[t % 4], afb(n), Wf[t // 4].sub(4 * ks, 4), acc[t % 4] if ks else "0")
            if n + nb < 64:
                rdA(n + nb)
            if t > 0 and ks in (4, 6):
                wr(t - 1, ks - 4)
            if t > 1 and ks == 0:
                wr(t - 2, 4)
            if t == 5 and ks == 1:
                wr(3, 6)
            if n == NB:
                late()
            if n == 40:
                pfetch()
            if n in (8, 56):
                a("s_nop %d", 4 if n == 8 else 1)
            if t > 0 and ks >= 2:
                out(t - 1, ks - 2)
            if t == 5 and ks == 0:
                out(3, 6)
        wr(6, 4)
        a("s_nop 7")
        for i in range(7):
            out(7, i)
            if i % 2 == 1 or i == 6:
                wr(7, i & ~1)

    a.label("K2_G0")
    a("s_lshl_b32 %s, %s, 8", s0, snb)
    if "noh" in X:
        a("s_mov_b32 %s, %s", s0, hex(OOR))
    for i in range(7):
        if i:
            a("s_add_u32 %s, %s, %d", s1, s0, 4096 * i)
        if i == 6:
            a("s_cmp_lt_u32 %s, 2", sw)
            a("s_cselect_b32 %s, %s, %s", s1, s1, hex(OOR))
        a("buffer_load_dwordx4 %s, %s, %s, %s offen", hst.sub(4 * i, 4), o16, rH, s1 if i else s0)
    a("s_lshl_b32 %s, %s, 4", s1, snb)
    a("s_add_u32 %s, %s, %s", s1, s1, hex(BIAS))
    a("s_cmp_lt_u32 %s, 2", sw)
    a("s_cselect_b32 %s, %s, %s", s1, s1, hex(OOR))
    a("buffer_load_dwordx4 %s, %s, %s, %s offen", psrc, o16, rPOS, s1)
    a("s_lshl_b32 %s, %s, 13", s2_, sw)
    if "now" in X:
        a("s_mov_b32 %s, %s", s2_, hex(OOR))

    def wload(g):
        a("s_add_u32 %s, %s, %s", s1, s2_, hex(WS_WF + (g >> 1) * 32768 + (g & 1) * 4096))
        for k in range(4):
            a("buffer_load_dwordx4 %s, %s, %s, %s offen offset:%d", Wf[g >> 1].sub(16 * (g & 1) + 4 * k, 4), l16, rWS, s1, k * 1024)
    wload(0)
    wload(1)

    def late():
      wload(2)
      wload(3)
      small()

    def pfetch():
      if PF:
        a("s_lshr_b32 %s, s2, 3", s0)
        a("s_mul_i32 %s, %s, %d", s1, s0, 98 * 128)
        a("s_add_u32 %s, %s, %s", s1, s1, hex(BIAS))
        a("s_cmp_lt_u32 %s, 2", sw)
        a("s_cselect_b32 %s, %s, %s", s1, s1, hex(OOR))
        a("v_lshlrev_b32 %s, 3, %s", t0, o16)
        a("buffer_load_dword %s, %s, %s, %s offen", T[9], t0, rPOS, s1)
        a("s_mul_i32 %s, %s, %d", s1, s0, (PF - 1) * 32768)
        for i in range(PF - 1):
            a("s_add_u32 %s, %s, %s", s0, s1, hex(BIAS + i * 32768))
            a("buffer_load_dword %s, %s, %s, %s offen", T[9], t0, rBP, s0)
    a("v_lshrrev_b32 %s, 4, %s", t0, tid)
    a("v_lshl_add_u32 %s, %s, 4, %s", t0, t0, o16)
    a("v_add_u32 %s, %d, %s", t0, L_H, t0)
    a("v_and_b32 %s, 31, %s", t1, lane)
    a("v_mul_u32_u24 %s, 272, %s", ar, t1)
    a("v_lshl_add_u32 %s, %s, 4, %s", ar, vh, ar)
    a("v_add_u32 %s, %d, %s", ar, L_H, ar)
    a("v_lshlrev_b32 %s, 2, %s", wa, t1)
    a("v_lshl_add_u32 %s, %s, 10, %s", wa, vh, wa)
    a("s_lshl_b32 %s, %s, 7", s0, sw)
    a("v_add_u32 %s, %s, %s", wa, s0, wa)
    a("v_add_u32 %s, %d, %s", wa2, L_GT, wa)
    for i in range(7):
        a("s_waitcnt vmcnt(%d)", 15 - i)
        a("ds_write_b128 %s, %s offset:%d", t0, hst.sub(4 * i, 4), 16 * 272 * i)
    a("ds_write_b32 %s, %s offset:%d", vflag, one, L_FLAG + 64)
    a("s_waitcnt vmcnt(8)")
    ts.stamp(1)
    a("s_cmp_ge_u32 %s, 2", sw)
    a("s_cbranch_scc1 K2_G1")
    a("ds_write_b128 %s, %s offset:%d", o16, psrc, L_POS)
    def wait4(lab, off):
        a.label(lab)
        a("ds_read_b128 %s, %s offset:%d", T.sub(0, 4), zero[0], off)
        a("s_waitcnt lgkmcnt(0)")
        a("v_and_b32 %s, %s, %s", t0, t0, t1)
        a("v_and_b32 %s, %s, %s", t2, t2, t3)
        a("v_and_b32 %s, %s, %s", t0, t0, t2)
        a("v_lshlrev_b32 %s, 2, %s", l4, lane)
        a("v_readfirstlane_b32 %s, %s", s0, t0)
        a("s_cmp_eq_u32 %s, 0", s0)
        a("s_cbranch_scc1 %s", lab)
    wait4("K2_G1", L_FLAG + 64)
    ts.stamp(2)
    gemm()
    wait4("K2_R4", L_FLAG + 80)
    ts.stamp(3)
    a("ds_read_b32 %s, %s offset:%d", cn, l4, L_HIST)
    a("s_mov_b32 %s, -1", sx[0])
    a("s_mov_b32 %s, 0x1ffff", sx[1])
    a("s_waitcnt lgkmcnt(0)")
    for i, o in enumerate(scan_ops()):
        if i >= 2:
            a("s_nop 1")
        a(o)
    a("v_sub_u32 %s, %s, %s", st, st, mx)
    a("v_lshlrev_b32 %s, 2, %s", st, st)
    a("s_cmp_gt_u32 %s, %d", stot, CAP)
    a("s_cbranch_scc1 K2_RETRY")
    a("s_add_u32 %s, %s, 15", sU, stot)
    a("s_lshr_b32 %s, %s, 4", sU, sU)
    a("s_cmp_lt_u32 %s, 4", sw)
    a("s_cbranch_scc1 K2_R7")
    a("ds_write_b32 %s, %s offset:%d", l4, st, L_START)
    for k in range(QF):
        if k % 2 == 0:
            a("s_cmp_le_u32 %s, %d", snr, k)
            a("s_cbranch_scc1 K2_R5")
        a("ds_read_b32 %s, %s offset:%d", stv[k], bn[k], L_START)
    a.label("K2_R5")
    a("v_mov_b32 %s, %s", t2, hex(DUMMY_S))
    a("s_cmp_lt_u32 %s, 6", sw)
    a("s_cbranch_scc1 K2_R6")
    a("s_cmp_eq_u32 %s, 6", sw)
    a("s_cbranch_scc1 K2_R5B")
    a("v_add_lshl_u32 %s, %s, %s, 2", t0, lane, stot)
    a("v_mov_b32 %s, 192", t1)
    a("ds_write2st64_b32 %s, %s, %s offset0:%d offset1:%d", t0, t2, t1, L_S // 256, L_E // 256)
    a("ds_write2st64_b32 %s, %s, %s offset0:%d offset1:%d", t0, t2, t1, L_S // 256 + 1, L_E // 256 + 1)
    a("s_branch K2_R6")
    a.label("K2_R5B")
    a("v_lshl_add_u32 %s, %s, 2, %s", t0, cn, st)
    a("s_mov_b64 exec, %s", sx)
    a.label("K2_R5C")
    a("v_cmpx_gt_u32 vcc, 16, %s", cn)
    a("s_cbranch_execz K2_R6")
    a("ds_write2st64_b32 %s, %s, %s offset0:%d offset1:%d", t0, t2, l4, L_S // 256, L_E // 256)
    a("v_add_u32 %s, 4, %s", t0, t0)
    a("v_add_u32 %s, 1, %s", cn, cn)
    a("s_branch K2_R5C")
    a.label("K2_R6")
    a("s_setprio 2")
    a("s_mov_b64 exec, -1")
    a("s_waitcnt lgkmcnt(0)")
    for k in range(QF):
        a("v_cmpx_lt_i32 vcc, %d, %s", k, vrem)
        if k % 2 == 0:
            a("s_cbranch_execz K2_R7")
        a("v_lshl_add_u32 %s, %s, 2, %s", stv[k], rk[k], stv[k])
        a("ds_write2st64_b32 %s, %s, %s offset0:%d offset1:%d", stv[k], ent[2 * k], ent[2 * k + 1], L_S // 256, L_E // 256)
    a.label("K2_R7")
    a("s_mov_b64 exec, -1")
    if OPT["bias"] == 2:
        a("s_lshr_b32 %s, %s, 2", s0, sU)
        a("s_and_b32 %s, %s, 3", s1, sU)
        a("s_lshr_b32 %s, %s, 3", s2_, sU)
        a("s_add_u32 %s, %s, 1", s2_, s2_)
        a("s_and_b32 %s, %s, 1", s3, s0)
        a("s_mov_b32 %s, 0", su0)
        a("s_cmp_lt_u32 %s, 4", sw)
        a("s_cbranch_scc1 K2_R8")
        a("s_mul_i32 %s, %s, %s", su0, s1, s3)
        a("s_lshl2_add_u32 %s, %s, %s", su0, s2_, su0)
        a("s_sub_u32 %s, %s, %s", s2_, s0, s2_)
        a("s_xor_b32 %s, %s, 1", s3, s3)
        a.label("K2_R8")
        a("s_and_b32 %s, %s, 3", s0, sw)
        a("s_mul_i32 %s, %s, %s", s4, s0, s2_)
        a("s_add_u32 %s, %s, %s", su0, su0, s4)
        a("s_min_u32 %s, %s, %s", s4, s0, s1)
        a("s_mul_i32 %s, %s, %s", s4, s4, s3)
        a("s_add_u32 %s, %s, %s", su0, su0, s4)
        a("s_cmp_lt_u32 %s, %s", s0, s1)
        a("s_cselect_b32 %s, %s, 0", s3, s3)
        a("s_add_u32 %s, %s, %s", snu, s2_, s3)
    else:
        a("s_lshr_b32 %s, %s, 3", s0, sU)
        a("s_and_b32 %s, %s, 7", s1, sU)
        a("s_mul_i32 %s, %s, %s", su0, s0, sw)
        a("s_min_u32 %s, %s, %s", s2_, s1, sw)
        a("s_add_u32 %s, %s, %s", su0, su0, s2_)
        a("s_cmp_lt_u32 %s, %s", sw, s1)
        a("s_addc_u32 %s, %s, 0", snu, s0)
        if OPT["bias"]:
            a("s_sub_u32 %s, 8, %s", s0, sw)
            a("s_min_u32 %s, %s, %s", s0, s0, sw)
            a("s_mul_i32 %s, %s, %d", s0, s0, OPT["bias"])
            a("s_add_u32 %s, %s, %s", su0, su0, s0)
            a("s_cmp_lt_u32 %s, 4", sw)
            a("s_cselect_b32 %s, %d, %d", s0, OPT["bias"], -OPT["bias"])
            a("s_add_u32 %s, %s, %s", snu, snu, s0)
    a("v_add_lshl_u32 %s, %s, %s, 6", t0, lane, su0)
    a("v_add_u32 %s, %d, %s", t0, L_E, t0)
    a("s_lshl_b32 m0, %s, 6", su0)
    a("s_waitcnt lgkmcnt(0)")
    a("s_barrier")
    if "p3" not in X:
        a("s_setprio 1")
    ts.stamp(4)

    def stageA0(off):
        a("ds_read_addtid_b32 %s offset:%d", nS, L_S + off)
        a("ds_read_addtid_b32 %s offset:%d", nE, L_E + off)

    def stageA1(x0):
        a("v_dot2_f32_bf16 %s, %s, %s, %s", x0, nS, sdot, posc)
        a("v_lshlrev_b32_sdwa %s, 3, %s " + SDWA, bP, nE, "BYTE_0")
        a("v_cmp_gt_u32 vcc, %s, %s", hex(DUMMY_S), nS)
        a("v_mov_b32 %s, %s", bE, nE)
        a("buffer_load_dwordx3 %s, %s, %s, 0 offen %s", psrc.sub(0, 3), zero[0] if "nopos" in X else x0, rPOS, OPT["ldp"])
        a("ds_read_b96 %s, %s offset:%d", pdst.sub(0, 3), bP, L_POS)
        a("s_mov_b64 %s, vcc", sval)

    def stageB(first=False):
        x0, x1, x2, x3, row = T[0], T[1], T[2], T[3], T.sub(4, 4)
        if not first:
            a("ds_write_b64 %s, %s", clr, zero.sub(0, 2))
            a("ds_write_b64 %s, %s offset:%d", clr, zero.sub(0, 2), PS)
        for c in range(3):
            a("v_sub_f32 %s, %s, %s", pdst[c], pdst[c], psrc[c])
        a("v_cvt_pk_bf16_f32 %s, %s, %s", x0, pdst[0], pdst[1])
        a("v_cvt_pk_bf16_f32 %s, %s, 0", x1, pdst[2])
        a("v_add_u32_sdwa %s, %s, %s " + SDWA, x3, tb32, bE, "BYTE_1")
        if OPT["exactd"]:
            a("v_lshlrev_b32 %s, 16, %s", pdst[0], x0)
            a("v_and_b32 %s, 0xffff0000, %s", pdst[1], x0)
            a("v_lshlrev_b32 %s, 16, %s", pdst[2], x1)
            for c in range(3):
                a("v_mul_f32 %s, %s, %s", pdst[c], pdst[c], pdst[c])
            a("v_cvt_pk_bf16_f32 %s, %s, %s", pdst[0], pdst[0], pdst[1])
            a("v_cvt_pk_bf16_f32 %s, %s, 0", pdst[2], pdst[2])
            a("s_mov_b32 %s, 0x3f803f80", s4)
            a("v_dot2_f32_bf16 %s, %s, %s, 0", x2, pdst[2], s4)
            a("v_dot2_f32_bf16 %s, %s, %s, %s", x2, pdst[0], s4, x2)
        else:
            a("v_dot2_f32_bf16 %s, %s, %s, 0", x2, x1, x1)
            a("v_dot2_f32_bf16 %s, %s, %s, %s", x2, x0, x0, x2)
        a("v_lshlrev_b64 %s, %s, %s", row.sub(0, 2), bP, c64)
        a("v_and_b32 %s, -8, %s", clr, x3)
        a("s_mov_b64 exec, %s", sval)
        a("ds_write_b16 %s, %s", x3, one)
        a("ds_write_b16 %s, %s offset:4", x3, x0)
        a("ds_write_b16_d16_hi %s, %s offset:%d", x3, x0, PS)
        a("ds_write_b16 %s, %s offset:%d", x3, x1, PS + 4)
        a("s_mov_b64 exec, -1")
        a("v_cvt_pk_bf16_f32 %s, %s, %s", row[2], x2, bE)
        a("v_cvt_pk_bf16_f32 %s, %s, %s", row[3], x2, bE)
        a("ds_write_b128 %s, %s", tb16, row)

    def loadAp(par):
        a("ds_read_addtid_b32 %s offset:%d", Bop[0][par], L_AT)
        a("ds_read_addtid_b32 %s offset:%d", Bop[1][par], L_AT + 256)

    def gld(xy, r):
        if "nogld" in X:
            a("s_nop 0")
            return
        a("buffer_load_dword %s, %s, %s, 0 offen offset:%d %s", ld[xy][r], fbase if "hitgld" in X else adr[r], rBP, 128 * xy, OPT["ldg"])

    def rng(f, xy, r0, r1):
        for r in range(r0, r1):
            f(xy, r)

    ea, eb = T[8], T.sub(10, 2)
    a("ds_read_addtid_b32 %s offset:%d", aA[0], L_S)
    stageA0(0)
    a("ds_read_b32 %s, %s", ea, t0)
    a("ds_read2_b32 %s, %s offset0:15 offset1:16", eb, t0)
    a("s_waitcnt lgkmcnt(4)")
    a(MF8, adr, aA, aB, "0")
    a("ds_read_addtid_b32 %s offset:%d", aA[0], L_S + 64)
    a("s_waitcnt lgkmcnt(3)")
    stageA1(t1)
    stageA0(256)
    a("s_sub_u32 %s, %s, 1", s4, snu)
    rng(gld, 0, 0, 8)
    rng(gld, 1, 0, 8)
    a("s_waitcnt lgkmcnt(0)")
    a(MF8, adr, aA, aB, "0")
    a("v_and_b32 %s, 0xfc, %s", ea, ea)
    a("v_and_b32 %s, 0xfc, %s", eb[1], eb[1])
    a("v_readfirstlane_b32 %s, %s", spa, ea)
    a("v_readlane_b32 %s, %s, %s", sql, eb[0], s4)
    a("v_readlane_b32 %s, %s, %s", sshr, eb[1], s4)
    a("v_cmp_ne_u32 vcc, %s, %s", ea, eb[1])
    for b in range(4):
        a(MF8, Q[b], zero.sub(0, 2), zero.sub(0, 2), "0")
    a(MF8, e[1], zero.sub(0, 2), zero.sub(0, 2), "0")
    a("s_lshl_b32 %s, vcc_lo, 1", sinc)
    a("s_lshr_b32 %s, %s, 2", spa, spa)
    a("s_add_u32 %s, %s, 1", s0, spa)
    a("s_and_b32 %s, %s, -2", s0, s0)
    a("s_lshl_b32 m0, %s, 9", s0)
    a("s_or_b32 %s, %s, 1", s0, spa)
    loadAp(0)
    a("s_lshl_b32 m0, %s, 9", s0)
    a("s_bfe_u32 %s, %s, 0x50003", sql, sql)
    loadAp(1)
    a("s_lshr_b32 %s, %s, 3", sshr, sshr)
    a("s_cmp_eq_u32 %s, %s", sshr, sql)
    a("s_cselect_b32 %s, 1, 0", sshr)
    a("s_cmp_eq_u32 %s, 7", sw)
    a("s_cselect_b32 %s, 0, %s", sshr, sshr)
    a("s_mov_b32 %s, 0", srmw)
    a("s_mov_b32 %s, 0", su)
    a("s_mov_b32 %s, -1", sflu)
    a("s_mov_b32 %s, 0", sret)
    a("s_bfm_b32 %s, %s, 0", s0, snu)
    a("s_and_b32 %s, %s, %s", sinc, sinc, s0)
    a("s_and_b32 %s, %s, 0x11110", sbat, s0)
    a("s_lshl_b32 %s, 3, %s", srare, s4)
    if "dephase" in X:
        a("s_cmp_lt_u32 %s, 4", sw)
        a("s_cselect_b32 %s, 0, 2", s1)
        a("s_lshr_b32 %s, %s, %s", sbat, sbat, s1)
    if "noinc" in X:
        a("s_mov_b32 %s, 0", sinc)
        a("s_mov_b32 %s, 0", sshr)
    if "nobt" in X:
        a("s_mov_b32 %s, 0", sbat)
        a("s_mov_b64 %s, 0", sstep)
    if OPT["a1"]:
        a("s_bitset1_b32 %s, %d", srare, OPT["a1"])
    a("s_or_b32 %s, %s, %s", sev, sinc, sbat)
    a("s_or_b32 %s, %s, %s", sev, sev, srare)
    for i in range(4):
        a("v_mov_b32 %s, 0", S4[i])
    a("v_mov_b32 %s, %s", pp2[0], bS4)
    a("v_add_u32 %s, 256, %s", pp2[1], bOH)
    a("s_lshl_b32 %s, %s, 6", s0, su0)
    a("s_add_u32 m0, %s, 64", s0)
    for o in (1024, 2048, 1024 + PS, 2048 + PS):
        a("ds_write_b128 %s, %s offset:%d", tb16, zero, o)
    ga, ra, rb, pa, pq, pxa, stw, str_ = (T[i] for i in range(12, 20))
    stg, so, idxG = T[21], T[22], T[23]
    col = T[4]
    a("s_lshr_b32 %s, %s, 1", srt, sw)
    a("s_and_b32 %s, %s, 1", s3, sw)
    a("s_mul_i32 %s, %s, 24", s4, srt)
    a("s_add_u32 %s, %s, %s", s0, s4, snb)
    a("s_lshl1_add_u32 %s, %s, %s", s0, s0, s3)
    a("s_lshl_b32 %s, %s, 7", so0, s0)
    a("s_add_u32 %s, %s, 4096", so1, so0)
    a("v_and_b32 %s, 31, %s", col, lane)
    a("v_lshlrev_b32 %s, 2, %s", so, col)
    a("s_lshl_b32 %s, %s, 12", s0, sw)
    a("v_add_u32 %s, %s, %s", stw, s0, so)
    a("v_lshl_add_u32 %s, %s, 9, %s", stw, vh, stw)
    a("v_lshl_add_u32 %s, %s, 4, %s", str_, lane, s0)
    a("v_lshl_add_u32 %s, %s, 10, %s", so, vh, so)
    a("v_lshrrev_b32 %s, 3, %s", t0, lane)
    a("v_lshlrev_b32 %s, 4, %s", t1, lane)
    a("v_lshl_add_u32 %s, %s, 7, %s", stg, t0, t1)
    a("s_mul_i32 %s, %s, %d", s0, s3, 4 * RS)
    a("s_add_u32 %s, %s, %d", s0, s0, L_RING)
    a("v_add_u32 %s, %s, %s", rb, s0, t1)
    a("s_add_u32 %s, %s, %s", s0, s4, s3)
    a("s_lshl_b32 %s, %s, 8", s0, s0)
    a("s_add_u32 %s, %s, %d", s0, s0, L_GT)
    a("v_add_u32 %s, %s, %s", ga, s0, so)
    a("v_add_u32 %s, %s, %s", t0, s4, col)
    a("v_min_u32 %s, 97, %s", t0, t0)
    a("v_lshrrev_b32 %s, 1, %s", t1, t0)
    a("v_and_b32 %s, 1, %s", t0, t0)
    a("v_mul_u32_u24 %s, %d, %s", t1, PB, t1)
    a("v_mul_u32_u24 %s, 272, %s", t0, t0)
    a("v_lshlrev_b32 %s, 4, %s", pa, vh)
    a("v_add_u32 %s, %d, %s", pa, L_MACC, pa)
    a("v_add3_u32 %s, %s, %s, %s", ra, t0, t1, pa)
    a("s_lshl_b32 %s, %s, 5", s0, sw)
    a("v_add_u32 %s, %s, %s", t0, s0, col)
    a("v_mul_u32_u24 %s, 171, %s", t1, t0)
    a("v_lshrrev_b32 %s, 9, %s", t1, t1)
    a("v_cmp_gt_u32 vcc, 147, %s", t0)
    a("v_mad_i32_i24 %s, %s, -3, %s", t0, t1, t0)
    a("s_mov_b32 %s, vcc_lo", spm[0])
    a("s_mov_b32 %s, 0", spm[1])
    a("v_mul_u32_u24 %s, %d, %s", t2, PB, t1)
    a("v_lshl_add_u32 %s, %s, 7, %s", t2, t0, t2)
    a("v_add_u32 %s, %s, %s", pa, pa, t2)
    a("v_lshlrev_b32 %s, 5, %s", pxa, t1)
    a("v_lshl_add_u32 %s, %s, 2, %s", pxa, t0, pxa)
    a("v_add_u32 %s, %d, %s", pxa, L_POS, pxa)
    a("v_mul_u32_u24 %s, 12, %s", pq, t1)
    a("v_lshl_add_u32 %s, %s, 1, %s", pq, t0, pq)
    a("v_lshlrev_b32 %s, 4, %s", t0, col)
    a("v_cmp_gt_u32 vcc, 2, %s", col)
    a("v_lshlrev_b32 %s, %s, %s", t0, t0, one)
    a("v_and_b32 %s, 3, %s", idxG, lane)
    for i in range(4):
        a("v_cndmask_b32 %s, 0, %s, vcc", C4[i], t0)
    a("v_mul_u32_u24 %s, 0x5555, %s", idxG, idxG)
    a("v_bfe_u32 %s, %s, 2, 3", t0, lane)
    a("v_lshlrev_b32 %s, 2, %s", t1, vh)
    a("v_xor_b32 %s, %s, %s", t0, t0, t1)
    for i in range(4):
        a("v_cmp_eq_u32 vcc, %d, %s", (i >> 1) | ((i & 1) << 1), t0)
        a("s_nop 1")
        a("v_cndmask_b32 %s, 0, %s, vcc", selG[i], one)
    a("s_waitcnt vmcnt(16)")
    stageB(True)
    a("ds_read_b128 %s, %s", oh, bOH)
    a("s_waitcnt lgkmcnt(0)")
    a(MF16, y[0], oh, Bop[0], "0")
    a("s_waitcnt vmcnt(8)")
    a(SMF, y[0], sel, ld[0], isel)
    rng(gld, 0, 0, 8)
    if OPT["a1"]:
        a("s_nop 1")
    else:
        stageA1(t1)
        stageA0(448)
    ts.stamp(5)
    a("s_branch K2_ENTRY")

    EXP = lambda xy, r: a("v_exp_f32 %s, -%s", e[xy][r], y[xy][r])
    RCP = lambda xy, r: a("v_rcp_f32 %s, %s", e[xy][r], e[xy][r])
    SEG = lambda b: a(SMF, Q[b], S4, e[b >> 1].sub(8 * (b & 1), 8), iseg)

    def MUL(xy):
        for r in range(0, 16, 2):
            a("v_pk_mul_f32 %s, %s, %s", e[xy].sub(r, 2), e[xy].sub(r, 2), y[xy].sub(r, 2))

    def half(xy, F, x0=None, x1=None):
        a(MF16, y[xy], oh, Bop[xy], "0")
        if x0:
            a(x0)
        rng(F, 1 - xy, 0, 4)
        a("s_waitcnt vmcnt(8)")
        a(SMF, y[xy], sel, ld[xy], isel)
        rng(gld, xy, 0, 4)
        rng(F, 1 - xy, 4, 8)
        SEG(2 * xy)
        rng(gld, xy, 4, 8)
        rng(F, 1 - xy, 8, 12)
        SEG(2 * xy + 1)
        if x1:
            a(x1)
        rng(F, 1 - xy, 12, 16)

    a(".p2align 6")
    a.label("K2_LOOP")
    half(0, RCP, None, "s_setprio 1")
    MUL(1)
    a.label("K2_ENTRY")
    half(1, EXP, "s_add_u32 %s, %s, 1\ns_add_u32 m0, m0, 64" % (su, su),
         "ds_read_b64_tr_b16 %s, %s\nds_read_b64_tr_b16 %s, %s offset:128\ns_bitcmp1_b32 %s, %s" % (
             S4.sub(0, 2), pp2[0], S4.sub(2, 2), pp2[0], sev, su))
    rng(EXP, 1, 0, 2)
    a("s_cbranch_scc1 K2_EVENT")
    a.label("K2_L2")
    a(MF8, e[0], ones, ones, e[0])
    a("ds_read_addtid_b32 %s offset:%d", aA[0], L_S)
    a("ds_read_b128 %s, %s", oh, pp2[1])
    a("s_setprio 0")
    rng(EXP, 1, 2, 16)
    rng(RCP, 0, 0, 2)
    a(MF8, e[1], ones, ones, e[1])
    a("s_setprio 2")
    a("v_lshl_add_u64 %s, %s, 0, %s", pp2, pp2, sstep)
    rng(RCP, 0, 2, 6)
    a("s_waitcnt lgkmcnt(0)")
    a(MF8, adr, aA, aB, "0")
    a("s_cmp_lt_u32 %s, %s", su, snu)
    rng(RCP, 0, 6, 16)
    MUL(0)
    a("s_cbranch_scc1 K2_LOOP")
    ts.stamp(1, 1)
    fa, tt, Rm = T[20], T.sub(0, 6), R("v", psrc.i, 8)
    assert pdst.i == psrc.i + 4
    offs = [nl * 272 + xy * 128 for nl in range(2) for xy in range(2)] + [528 + c * 128 for c in range(3)]
    a("ds_read_b32 %s, %s offset:%d", t0, vflag, L_FLAG + 4)
    a("s_mul_i32 %s, %s, %d", s0, sql, 2 * PB)
    rng(RCP, 1, 0, 2)
    SEG(0)
    a("v_add_u32 %s, %s, %s", fa, s0, fbase)
    rng(RCP, 1, 2, 7)
    SEG(1)
    a("s_cmp_eq_u32 %s, 0", sshr)
    rng(RCP, 1, 7, 16)
    a("s_cbranch_scc1 K2_D3")
    a.label("K2_D2")
    a("s_waitcnt lgkmcnt(0)")
    a("v_readfirstlane_b32 %s, %s", s0, t0)
    a("ds_read_b32 %s, %s offset:%d", t0, vflag, L_FLAG + 4)
    a("s_cmp_eq_u32 %s, 0", s0)
    a("s_cbranch_scc1 K2_D2")
    for i in range(0, 6, 2):
        a("ds_read2_b32 %s, %s offset0:%d offset1:%d", Rm.sub(i, 2), fa, offs[i] // 4, offs[i + 1] // 4)
    a("ds_read_b32 %s, %s offset:%d", Rm[6], fa, offs[6])
    a.label("K2_D3")
    MUL(1)
    a("s_lshr_b32 %s, %s, 1", sfq, spa)
    SEG(2)
    SEG(3)
    ts.stamp(2, 1)
    a("s_waitcnt lgkmcnt(0)")
    a("s_mov_b32 %s, 1", sret)
    a("s_nop 4")
    a("s_cmp_lt_u32 %s, %s", sfq, sql)
    a("s_cbranch_scc1 K2_FLUSH")
    a.label("K2_D1")
    a("s_mov_b32 %s, %s", sfq, sql)
    a("s_mov_b32 %s, 2", sret)
    a("s_mov_b32 %s, %s", srmw, sshr)
    a("s_branch K2_FLUSH")

    a.label("K2_EVENT")
    a("s_setprio 3")
    a("s_cmp_lg_u32 %s, %s", su, sflu)
    a("s_cbranch_scc1 K2_E1")
    a.label("K2_FLUSH")
    a("s_mul_i32 %s, %s, %d", s0, sfq, 2 * PB)
    a("v_add_u32 %s, %s, %s", fa, s0, fbase)
    a("s_bitcmp1_b32 %s, 0", sfq)
    a("s_cbranch_scc1 K2_FLP1")
    for p in range(2):
        o = 8 * p
        a.label("K2_FLP%d" % p)
        a("s_cmp_lg_u32 %s, 0", srmw)
        for b in range(4):
            for c in range(3):
                q = Q[b].sub(o + 2 + 2 * c, 2)
                if b == 0:
                    a("v_pk_mul_f32 %s, %s, %s op_sel_hi:[1,0]", tt.sub(2 * c, 2), q, WX.sub(0, 2))
                else:
                    a("v_pk_fma_f32 %s, %s, %s, %s op_sel:[0,%d,0] op_sel_hi:[1,%d,1]", tt.sub(2 * c, 2), q, WX.sub(b & 2, 2),
                      tt.sub(2 * c, 2), b & 1, b & 1)
        a("s_cbranch_scc1 K2_FLM%d", p)
        a.label("K2_FLN%d" % p)
        ZQ = lambda b, k: a("v_mfma_f32_16x16x16_bf16 %s, %s, %s, 0", Q[b].sub(o + 4 * k, 4), zero.sub(0, 2), zero.sub(0, 2))
        if "zmov" in X:
            ZQ = lambda b, k: a("v_mov_b64 %s, 0\nv_mov_b64 %s, 0", Q[b].sub(o + 4 * k, 2), Q[b].sub(o + 4 * k + 2, 2))
        if "z16" not in X:
            ZQ = lambda b, k: a("v_mfma_f32_4x4x4_16b_bf16 %s, %s, %s, 0", Q[b].sub(o + 4 * k, 4), zero.sub(0, 2), zero.sub(0, 2))
        for xy in range(2):
            ZQ(2 * xy, 1)
            for nl in range(2):
                a("v_cvt_pk_bf16_f32 %s, %s, %s", T[6 + 2 * nl + xy], Q[2 * xy][o + nl], Q[2 * xy + 1][o + nl])
            ZQ(2 * xy + 1, 1)
            a("ds_write2_b32 %s, %s, %s offset0:%d offset1:%d", fa, T[6 + xy], T[8 + xy], offs[xy] // 4, offs[2 + xy] // 4)
        for c in range(3):
            a("v_cvt_pk_bf16_f32 %s, %s, %s", tt[2 * c], tt[2 * c], tt[2 * c + 1])
            ZQ(c, 0)
            if c == 1:
                a("ds_write2_b32 %s, %s, %s offset0:%d offset1:%d", fa, tt[0], tt[2], offs[4] // 4, offs[5] // 4)
        a("ds_write_b32 %s, %s offset:%d", fa, tt[4], offs[6])
        a("ds_write_b32 %s, %s offset:%d", vflag, one, L_FLAG)
        a("s_cmp_lg_u32 %s, 0", sret)
        ZQ(3, 0)
        a("s_cbranch_scc1 K2_FLR")
        if p == 0:
            a("s_branch K2_E1")
    a.label("K2_E1")
    a("s_bitcmp1_b32 %s, %s", sbat, su)
    a("s_cbranch_scc1 K2_BATCH")
    a.label("K2_E2")
    a("s_bitcmp1_b32 %s, %s", srare, su)
    a("s_cbranch_scc1 K2_RARE")
    a.label("K2_E3")
    a("s_bitcmp0_b32 %s, %s", sinc, su)
    a("s_cbranch_scc1 K2_L2")
    a("s_mov_b32 %s, m0", s1)
    a("s_add_u32 %s, %s, 2", s0, spa)
    a("s_lshl_b32 m0, %s, 9", s0)
    a("s_add_u32 %s, %s, 1", spa, spa)
    a("s_bitcmp1_b32 %s, 0", spa)
    a("s_cbranch_scc1 K2_INC1")
    loadAp(1)
    a("s_mov_b32 m0, %s", s1)
    a("s_lshr_b32 %s, %s, 1", sfq, spa)
    a("s_sub_u32 %s, %s, 1", sfq, sfq)
    a("s_add_u32 %s, %s, 1", sflu, su)
    a("s_bitset1_b32 %s, %s", sev, sflu)
    a("s_branch K2_L2")
    a.label("K2_INC1")
    loadAp(0)
    a("s_mov_b32 m0, %s", s1)
    a("s_branch K2_L2")
    a.label("K2_BATCH")
    stageB()
    a("v_lshl_add_u64 %s, %s, 0, %s", pp2, pp2, swrap)
    a("s_add_u32 %s, %s, 4", s0, su)
    a("s_cmp_ge_u32 %s, %s", s0, snu)
    a("s_cbranch_scc1 K2_E2")
    stageA1(T[8])
    stageA0(448)
    a("s_branch K2_E2")
    for p in range(2):
        o = 8 * p
        a.label("K2_FLM%d" % p)
        for nl in range(2):
            for xy in range(2):
                for lh in range(2):
                    q = Q[2 * xy + lh][o + nl]
                    a("v_dot2_f32_bf16 %s, %s, %s, %s", q, Rm[2 * nl + xy], shi if lh else slo, q)
        for c in range(3):
            for nl in range(2):
                a("v_dot2_f32_bf16 %s, %s, %s, %s", tt[2 * c + nl], Rm[4 + c], shi if nl else slo, tt[2 * c + nl])
        a("s_branch K2_FLN%d", p)
    rowof = lambda r: 8 * (r // 4) + r % 4
    a.label("K2_RARE")
    if OPT["a1"]:
        a("s_cmp_lg_u32 %s, %d", su, OPT["a1"])
        a("s_cbranch_scc1 K2_RA1")
        stageA1(T[11])
        stageA0(448 - 64 * OPT["a1"])
        a("s_branch K2_E3")
        a.label("K2_RA1")
    a("s_lshl_b32 m0, %s, 6", sU)
    a("s_cmp_lt_u32 %s, %s", su, snu)
    a("s_cbranch_scc1 K2_E3")
    a("s_cmp_lg_u32 %s, 0", smore)
    a("s_cbranch_scc1 K2_L2")
    a("s_mul_i32 %s, %s, %d", s1, sw, RS)
    a("s_add_u32 m0, %s, %d", s1, L_RING)
    a("s_lshl_b32 %s, %s, 12", s1, sw)
    a("s_add_u32 %s, %s, %s", s1, s1, hex(WS_WF + 65536))
    a("v_lshlrev_b32 %s, 4, %s", T[10], lane)
    a("s_waitcnt lgkmcnt(0)")
    for i in range(4):
        a("buffer_load_dwordx4 %s, %s, %s offen offset:%d lds", T[10], rWS, s1, 1024 * i)
    for r in range(16):
        a("buffer_load_dword %s, %s, %s, %s offen offset:%d", ldall[r], so, rH, so1 if rowof(r) >= 16 else so0, (rowof(r) % 16) * 256)
    a("s_branch K2_L2")

    a.label("K2_RETRY")
    a("s_mov_b32 %s, %d", sq, QS)
    a.label("K2_AGAIN")
    a("s_waitcnt vmcnt(0) lgkmcnt(0)")
    a("s_barrier")
    a("v_lshlrev_b32 %s, 3, %s", t3, lane)
    a("ds_write_b64 %s, %s offset:%d", t3, zero.sub(0, 2), L_HIST)
    a("s_waitcnt lgkmcnt(0)")
    a("s_barrier")
    a("s_cmp_lt_u32 %s, 4", sw)
    a("s_cbranch_scc1 K2_R4")
    offaddr()
    a("v_and_b32 %s, 255, %s", seg, tid)
    a("v_lshlrev_b32 %s, 4, %s", t0, seg)
    a("buffer_load_dword %s, %s, %s, %s offen", voff, t0, rWS, s0)
    a("s_waitcnt vmcnt(0)")
    a("s_branch K2_ROUND")
    a.label("K2_ACC")
    av, ax, la, gv = y[0].sub(0, 8), y[0].sub(8, 8), y[1][4], y[1][5]
    ap = y[1].sub(0, 4)
    a("s_waitcnt vmcnt(0) lgkmcnt(0)")
    a("s_barrier")
    a("v_lshlrev_b32 %s, 4, %s", la, tid)
    a("v_lshlrev_b32 %s, 5, %s", gv, tid)
    a("v_add_u32 %s, %d, %s", la, L_MACC, la)
    a("s_mul_i32 %s, s2, %d", s0, 6 * 16384)
    a("s_add_u32 %s, %s, %s", s0, s0, hex(WS_ACC))
    a("s_add_u32 %s, %s, %d", s1, s0, 6 * 16384)
    a.label("K2_AC1")
    a("ds_read_b128 %s, %s", ap, la)
    for i in range(8):
        a("v_mov_b32 %s, 0", ax[i])
    a("s_cmp_eq_u32 %s, 0", srnd)
    a("s_cbranch_scc1 K2_AC2")
    a("buffer_load_dwordx4 %s, %s, %s, %s offen sc1", ax.sub(0, 4), gv, rWS, s0)
    a("buffer_load_dwordx4 %s, %s, %s, %s offen offset:16 sc1", ax.sub(4, 4), gv, rWS, s0)
    a.label("K2_AC2")
    a("s_waitcnt vmcnt(0) lgkmcnt(0)")
    for i in range(4):
        a("v_lshlrev_b32 %s, 16, %s", av[2 * i], ap[i])
        a("v_and_b32 %s, 0xffff0000, %s", av[2 * i + 1], ap[i])
    for i in range(8):
        a("v_add_f32 %s, %s, %s", av[i], av[i], ax[i])
    a("buffer_store_dwordx4 %s, %s, %s, %s offen sc1", av.sub(0, 4), gv, rWS, s0)
    a("buffer_store_dwordx4 %s, %s, %s, %s offen offset:16 sc1", av.sub(4, 4), gv, rWS, s0)
    for i in range(4):
        a("v_cvt_pk_bf16_f32 %s, %s, %s", ap[i], av[2 * i], av[2 * i + 1])
    a("ds_write_b128 %s, %s", la, ap)
    a("s_add_u32 %s, %s, 16384", s0, s0)
    a("s_waitcnt vmcnt(0) lgkmcnt(0)")
    a("v_add_u32 %s, 8192, %s", la, la)
    a("s_cmp_lt_u32 %s, %s", s0, s1)
    a("s_cbranch_scc1 K2_AC1")
    a("s_cmp_eq_u32 %s, 0", smore)
    a("s_cbranch_scc1 K2_FIN")
    a("s_add_u32 %s, %s, %s", sJ, sJ, sq)
    a("s_mov_b32 %s, %d", sq, QF)
    a("s_mov_b32 %s, 1", srnd)
    a("s_branch K2_AGAIN")

    a.label("K2_FLR")
    a("s_cmp_eq_u32 %s, 1", sret)
    a("s_cbranch_scc1 K2_D1")
    a("s_or_b32 %s, %s, %s", s0, smore, srnd)
    a("s_cbranch_scc1 K2_ACC")
    a.label("K2_FIN")
    ts.stamp(6)
    ts.stamp(3, 1)
    a("s_setprio 0")
    rO, rP = rBP, rPOS
    fac = [y[0], y[1]]
    g = [e[0].sub(0, 8), e[0].sub(8, 8)]
    ht = [Q[2], Q[3]]
    hh = lambda par, r: ht[r // 8].sub(8 * par + r % 8, 2)
    ee = [Q[0], Q[1]]
    px, pD = T.sub(4, 2), e[1]
    a("v_add_u32 %s, 128, %s", t3, ga)
    for par in range(2):
        for ip in range(4):
            a("ds_read2st64_b32 %s, %s offset0:%d offset1:%d", g[par].sub(2 * ip, 2), t3 if par else ga, 8 * ip, 8 * ip + 2 * (ip < 3))
    for i in range(2):
        a(MF8, ht[i], zero.sub(0, 2), zero.sub(0, 2), "0")
        a(MF8, fac[i], zero.sub(0, 2), zero.sub(0, 2), "0")
    a("s_waitcnt vmcnt(0)")
    for i in range(2):
        a(SMF, ht[i], sel, ld[i], isel)
    a("s_waitcnt lgkmcnt(0)")
    if "gpre" in X:
        for par in range(2):
            a(SMF, fac[par], selG, g[par], idxG)
    a("s_barrier")
    ts.stamp(4, 1)
    Af = lambda ks: adr.sub(4 * (ks & 3), 4)
    Bf = lambda ks, par: Qall.sub(8 * (ks & 3) + 4 * par, 4)

    def rdF(ks):
        a("ds_read_b128 %s, %s offset:%d", Af(ks), ra, 32 * ks)
        for par in range(2):
            a("ds_read_b128 %s, %s offset:%d", Bf(ks, par), rb, (2 * par + ks // 4) * RS + (ks % 4) * 1024)
    for ks in range(4):
        rdF(ks)
    if "gpre" not in X:
        for par in range(2):
            a(SMF, fac[par], selG, g[par], idxG)
    srd(a, rO, P["out"], 0, N * 256)
    srd(a, rP, P["out"], N * 256, N * 6)
    a("s_mov_b32 %s, %s", sstep[0], hex(f32(1 + DELTA)))
    a("s_mov_b32 %s, %s", sstep[1], hex(f32(1 + DELTA)))
    a("s_mov_b32 %s, %s", sx[0], hex(LOG2E))
    a("s_mov_b32 %s, %s", sx[1], hex(LOG2E))
    Pf = lambda ks: ldall.sub(4 * ks, 4)
    for ks in range(8):
        a("s_waitcnt lgkmcnt(%d)", (9, 9, 9, 9, 9, 11, 8, 5)[ks])
        for par in range(2):
            a(MF16, fac[par], Af(ks), Bf(ks, par), fac[par])
        if ks < 4:
            rdF(ks + 4)
        if ks == 4:
            for k in range(4):
                a("ds_read_b128 %s, %s offset:%d", Pf(k), pa, 528 + 32 * k)
            a("ds_read2_b32 %s, %s offset0:0 offset1:4", px, pxa)
    ts.stamp(5, 1)
    a("v_add_u32 %s, 128, %s", t3, stw)
    a("s_nop 9")

    def fin(r0, r1):
        for par in range(2):
            for r in range(r0, r1):
                a("v_mul_f32 %s, %s, %s", fac[par][r], sstep[0], fac[par][r])
        n = 0
        for par in range(2):
            for r in range(r0, r1):
                if r0 == 0 and n % 4 == 0 and n < 16:
                    if n == 0:
                        a("s_waitcnt lgkmcnt(0)")
                    a(MF16, pD, C4, Pf(n // 4), pD if n else "0")
                a("v_exp_f32 %s, -%s", ee[par][r], fac[par][r])
                n += 1
        if r0:
            a("s_nop 0")
        for par in range(2):
            for r in range(r0, r1, 2):
                if "fma1" in X:
                    a("v_fma_f32 %s, %s, %s, %s", ee[par][r], ee[par][r], sx[0], sx[0])
                    a("v_fma_f32 %s, %s, %s, %s", ee[par][r + 1], ee[par][r + 1], sx[0], sx[0])
                else:
                    a("v_pk_fma_f32 %s, %s, %s, %s", ee[par].sub(r, 2), ee[par].sub(r, 2), sx, sx)
        for r4 in range(r0, r1, 4):
            rr = range(r4, min(r1, r4 + 4))
            for par in range(2):
                for r in rr:
                    a("v_rcp_f32 %s, %s", ee[par][r], ee[par][r])
            if r4 == 8:
                a("s_waitcnt lgkmcnt(3)")
                sto(0)
            if r0:
                a("s_nop 0")
            for par in range(2):
                for r in rr[::2]:
                    a("v_pk_fma_f32 %s, %s, %s, %s", fac[par].sub(r, 2), fac[par].sub(r, 2), ee[par].sub(r, 2), hh(par, r))
            for q in rr:
                a("v_cvt_pk_bf16_f32 %s, %s, %s", fac[0][q], fac[0][q], fac[1][q])
            if r0:
                a("ds_write_b32 %s, %s offset:%d", stw, fac[0][r4], 256 * r4)
                a("ds_write_b32 %s, %s offset:%d", stw, fac[0][r4 + 1], 256 * r4 + 128)
            else:
                a("ds_write2st64_b32 %s, %s, %s offset0:%d offset1:%d", stw, fac[0][r4], fac[0][r4 + 2], r4, r4 + 1)
                a("ds_write2st64_b32 %s, %s, %s offset0:%d offset1:%d", t3, fac[0][r4 + 1], fac[0][r4 + 3], r4, r4 + 1)
            a("ds_read_b128 %s, %s offset:%d", Af(r4 // 4), str_, 256 * r4)

    def sto(i):
        if "nosto" in X:
            return
        a("buffer_store_dwordx4 %s, %s, %s, %s offen offset:%d %s", Af(i), stg, rO, so1 if i >= 2 else so0,
          (i & 1) * 2048, OPT["st2"])
    fin(0, 12)
    a("s_waitcnt lgkmcnt(3)")
    sto(1)
    a("s_cmp_g%s_u32 %s, %d", "e" if "nopst" in X else "t", sw, 0 if "nopst" in X else 4)
    a("s_cbranch_scc1 K2_F2")
    a("v_add_f32 %s, %s, %s", px[0], px[0], pD[0])
    a("v_add_f32 %s, %s, %s", px[1], px[1], pD[1])
    a("v_cvt_pk_bf16_f32 %s, %s, %s", px[0], px[0], px[1])
    a("s_mul_i32 %s, %s, 6", s0, snb)
    a("s_mov_b64 exec, %s", spm)
    a("buffer_store_short %s, %s, %s, %s offen %s", px[0], pq, rP, s0, OPT["st3"])
    a("buffer_store_short_d16_hi %s, %s, %s, %s offen offset:6 %s", px[0], pq, rP, s0, OPT["st3"])
    a("s_mov_b64 exec, -1")
    a.label("K2_F2")
    a("s_waitcnt lgkmcnt(0)")
    sto(2)
    a("s_cmp_lg_u32 %s, 3", srt)
    a("s_cbranch_scc1 K2_F3")
    fin(12, 14)
    a("s_mov_b64 exec, 0xffff")
    a("s_waitcnt lgkmcnt(0)")
    sto(3)
    a.label("K2_F3")
    ts.stamp(6, 1)
    if OPT["ts"]:
        a("s_waitcnt vmcnt(0)")
        ts.stamp(7)
        ts.dump(P["ws"], sw, t0, t1)
    a.label("K2_END")
    a("s_endpgm")
    return V.hi, S.hi


def gen_probe(a):
    kern, first, cnt, idx, agg, mode = OPT["probe"].split(",")
    kernel_head(a, "egnn_probe_kernel")
    a("s_cmp_ge_u32 s2, 1")
    a("s_cbranch_scc1 K3_END")
    a("s_load_dwordx2 s[4:5], s[0:1], 80")
    a("s_waitcnt lgkmcnt(0)")
    srd(a, R("s", 8, 4), R("s", 4, 2), WS_TS, 0x200000)
    a("v_lshlrev_b32 v1, 9, v0")
    for i in range(8):
        a("s_mov_b32 s3, %d", i * 64 * 512)
        a("buffer_load_dword v%d, v1, s[8:11], s3 offen", 8 + i)
    step = 64 if kern == "1" else 512
    a("v_mul_u32_u24 v1, %d, v0", step)
    for i in range(int(cnt)):
        a("s_mov_b32 s3, %d", int(kern) * 0x100000 + (int(first) + i * 64) * step + 4 * int(idx))
        a("buffer_load_dword v%d, v1, s[8:11], s3 offen", 16 + i)
    a("s_waitcnt vmcnt(0)")
    for i in range(1, 8):
        a("v_min_u32 v8, v8, v%d", 8 + i)
    for i in range(1, int(cnt)):
        a("v_%s_u32 v16, v16, v%d", agg, 16 + i)
    a("s_nop 1")
    a("v_readlane_b32 s12, v8, 0")
    a("v_readlane_b32 s13, v16, 0")
    for l in range(1, 64):
        a("v_readlane_b32 s14, v8, %d", l)
        a("v_readlane_b32 s15, v16, %d", l)
        a("s_min_u32 s12, s12, s14")
        a("s_%s_u32 s13, s13, s15", agg)
    a("s_sub_u32 s13, s13, s12")
    a("s_min_u32 s13, s13, 10000")
    a("s_lshl_b32 s13, s13, 4")
    a("s_add_u32 s13, s13, 5000")
    a("s_mov_b32 s3, 0x1f0000")
    a("v_mov_b32 v1, 0")
    a("buffer_load_dword v2, v1, s[8:11], s3 offen")
    a("s_waitcnt vmcnt(0)")
    a("v_readfirstlane_b32 s14, v2")
    a("v_mov_b32 v2, 0x13572468")
    a("buffer_store_dword v2, v1, s[8:11], s3 offen")
    a("s_cmp_eq_u32 s14, 0x13572468")
    a("s_cselect_b32 s13, %s", "0, s13" if mode == "f" else "s13, 0")
    a("s_memrealtime s[16:17]")
    a("s_waitcnt lgkmcnt(0)")
    a.label("K3_L")
    a("s_memrealtime s[18:19]")
    a("s_waitcnt lgkmcnt(0)")
    a("s_sub_u32 s14, s18, s16")
    a("s_cmp_lt_u32 s14, s13")
    a("s_cbranch_scc1 K3_L")
    a.label("K3_END")
    a("s_endpgm")


def descriptor(name, nv, ns):
    return """.p2align 6
.amdhsa_kernel %s
  .amdhsa_next_free_vgpr %d
  .amdhsa_next_free_sgpr %d
  .amdhsa_accum_offset %d
  .amdhsa_group_segment_fixed_size 0
  .amdhsa_kernarg_size 88
  .amdhsa_user_sgpr_count 2
  .amdhsa_user_sgpr_kernarg_segment_ptr 1
  .amdhsa_system_sgpr_workgroup_id_x 1
.end_amdhsa_kernel
""" % (name, nv, ns, (nv + 3) // 4 * 4)


def build():
    ref = open("standalone__cheap_equivariant_egnn__graph.s.ref").read().split("\n")
    head = [l for l in ref if l.startswith(";") and "@launch" not in l and "Override" not in l and "grid=ceil" not in l]
    head.append("; @launch kernel=egnn_part_kernel grid=(512,1,1) block=(512,1,1) lds=%d" % K1_LDS)
    head.append("; @launch kernel=egnn_main_kernel grid=(256,1,1) block=(512,1,1) lds=%d" % K2_LDS)
    a1, a2, a3 = Asm(), Asm(), Asm()
    if OPT["probe"]:
        head.append("; @launch kernel=egnn_probe_kernel grid=(1,1,1) block=(64,1,1) lds=0")
        gen_probe(a3)
    v1, s1 = gen_k1(a1)
    v2, s2 = gen_k2(a2)
    nb = 0
    for nm, x in (("k1", a1), ("k2", a2)):
        bad, n = check_hazards(x.lines)
        nb += bad
        print("%s: %d instructions, %d hazards" % (nm, n, bad), file=sys.stderr)
    print("k1 v%d s%d lds %d; k2 v%d s%d lds %d" % (v1, s1, K1_LDS, v2, s2, K2_LDS), file=sys.stderr)
    txt = "\n".join(head) + "\n.amdgcn_target \"amdgcn-amd-amdhsa--gfx950\"\n.text\n" + a1.text() + a2.text() + a3.text()
    txt += ".section .rodata,\"a\"\n" + descriptor("egnn_part_kernel", v1, s1) + descriptor("egnn_main_kernel", v2, s2)
    if OPT["probe"]:
        txt += descriptor("egnn_probe_kernel", 64, 32)
    return txt, nb


if __name__ == "__main__":
    out = "standalone__cheap_equivariant_egnn__graph.s"
    for arg in sys.argv[1:]:
        if "=" in arg:
            k, v = arg.split("=", 1)
            if k == "out":
                out = v
            else:
                assert k in OPT, k
                OPT[k] = int(v) if isinstance(OPT[k], int) else v.replace("_", " ")
    txt, nb = build()
    open(out, "w").write(txt)
    sys.exit(1 if nb else 0)
```

```python
def kern(name, seq, partner, prioA=0, prioB=0):
    clob = ','.join('"v%d"' % i for i in range(8, 96))
    return '''
__global__ void __launch_bounds__(512) %s(unsigned* out, int iters, int swap) {
  int w = __builtin_amdgcn_readfirstlane(threadIdx.x >> 8) ^ swap;
  unsigned bad = 0;
  if (w == 0) {
    asm volatile(
      "s_setprio %d\\n v_mov_b32 v8, 0x3f003f00\\n v_mov_b32 v9, 0\\n v_mov_b32 v10, 0\\n v_mov_b32 v11, 0\\n v_mov_b32 v12, 0\\n"
      "v_mov_b32 v13, 0\\n v_mov_b32 v14, 0x3e803e80\\n v_mov_b32 v15, 0x3e803e80\\n v_mov_b32 v80, 0x3e803e80\\n v_mov_b32 v81, 0x3e803e80\\n v_mov_b32 v82, 0x3e803e80\\n v_mov_b32 v83, 0x3e803e80\\n"
      "s_nop 4\\n v_mfma_f32_32x32x8_bf16 v[16:31], v[10:11], v[10:11], 0\\n s_nop 15\\n s_nop 15\\n s_mov_b32 s20, %%1\\n"
      "1:\\n v_add_f32 v13, 1.0, v13\\n s_and_b32 s21, s20, 15\\n"
      "2:\\n s_sub_u32 s21, s21, 1\\n s_cbranch_scc0 2b\\n"
      %s
      "s_nop 15\\n s_nop 15\\n s_nop 15\\n s_nop 15\\n s_nop 15\\n"
      "v_cmp_neq_f32 vcc, v64, v13\\n s_nop 1\\n v_addc_co_u32 %%0, vcc, 0, %%0, vcc\\n"
      "v_cmp_neq_f32 vcc, v65, v13\\n s_nop 1\\n v_addc_co_u32 %%0, vcc, 0, %%0, vcc\\n"
      "s_sub_u32 s20, s20, 1\\n s_cmp_lg_u32 s20, 0\\n s_cbranch_scc1 1b\\n"
      : "+v"(bad) : "s"(iters) : "s20", "s21", "scc", "vcc", %s);
    if (bad) atomicAdd(out, bad);
  } else {
    asm volatile(
      "s_setprio %d\\n v_mov_b32 v10, 0\\n v_mov_b32 v11, 0\\n v_mov_b32 v12, 0\\n v_mov_b32 v13, 0\\n s_mov_b32 s20, %%0\\n s_nop 4\\n"
      "1:\\n"
      %s
      "s_sub_u32 s20, s20, 1\\n s_cmp_lg_u32 s20, 0\\n s_cbranch_scc1 1b\\n"
      :: "s"(iters * 2) : "s20", "scc", %s);
  }
}
''' % (name, prioA, ''.join('"%s\\n"\n' % l for l in seq), clob, prioB, ''.join('"%s\\n"\n' % l for l in partner), clob)
A8 = 'v_mfma_f32_32x32x8_bf16 v[16:31], v[8:9], v[8:9], v[16:31]'
A16 = 'v_mfma_f32_32x32x16_bf16 v[16:31], v[80:83], v[80:83], v[16:31]'
O16 = 'v_mfma_f32_32x32x16_bf16 v[32:47], v[80:83], v[80:83], 0'
RD = ['v_mov_b32 v64, v16', 'v_mov_b32 v65, v31']
RE = ['v_rcp_f32 v64, v16', 'v_rcp_f32 v65, v31', 's_nop 15', 'v_rcp_f32 v64, v64', 'v_rcp_f32 v65, v65', 's_nop 3', 'v_rndne_f32 v64, v64', 'v_rndne_f32 v65, v65']
Z = lambda i: 'v_mfma_f32_32x32x8_bf16 v[%d:%d], v[10:11], v[10:11], 0' % (16 + 16 * i, 31 + 16 * i)
burst = [Z(0), Z(1), Z(2), Z(3), Z(0), Z(1), 's_nop 15', 's_nop 7']
ks = {}
for nm, m in (('k8', A8), ('k16', A16)):
    for n in (7, 9, 11):
        ks['%s_nop%d' % (nm, n + 1)] = ([m, 's_nop %d' % n] + RD, burst)
    ks['%s_seq' % nm] = ([m, 's_nop 7', 's_nop 1', 's_branch 3f', 's_nop 0', '3:', O16, 's_add_u32 s21, s21, 1', 's_add_u32 s21, s21, 1'] + RD, burst)
    ks['%s_seq_tr' % nm] = ([m, 's_nop 7', 's_nop 1', 's_branch 3f', 's_nop 0', '3:', O16, 's_add_u32 s21, s21, 1', 's_add_u32 s21, s21, 1'] + RE, burst)
s = '#include <hip/hip_runtime.h>\n#include <cstdio>\n'
for k, (a, b) in ks.items(): s += kern(k, a, b)
s += 'int main() { unsigned* d; hipMalloc(&d, 64);\n'
for k in ks:
    s += 'for (int sw = 0; sw < 2; sw++) { hipMemset(d, 0, 64); %s<<<256, 512>>>(d, 2000, sw); hipDeviceSynchronize(); unsigned h; hipMemcpy(&h, d, 4, hipMemcpyDeviceToHost); printf("%s swap %%d stale %%u\\n", sw, h); }\n' % (k, k)
s += 'return 0; }\n'
open('hz.cpp', 'w').write(s)
```

```python
from hz import kern
setup = ['v_mov_b32 v70, 0.5', 'v_mov_b32 v71, 0x3e800000', 'v_mov_b32 v72, 0x3e000000', 'v_mov_b32 v73, 0x3e000000'] + ['v_mov_b32 v%d, v13' % r for r in range(16, 40)] + ['v_exp_f32 v60, v13'] * 3 + ['s_branch 4f', 's_nop 0', '4:']
chain = []
for b in range(4):
    for c in range(3):
        q = 16 + 6 * b + 2 * c; t = 64 + 2 * c
        if b == 0: chain.append('v_pk_mul_f32 v[%d:%d], v[%d:%d], v[70:71] op_sel_hi:[1,0]' % (t, t + 1, q, q + 1))
        else: chain.append('v_pk_fma_f32 v[%d:%d], v[%d:%d], v[%d:%d], v[%d:%d] op_sel:[0,%d,0] op_sel_hi:[1,%d,1]' % (t, t + 1, q, q + 1, 70 + (b & 2), 71 + (b & 2), t, t + 1, b & 1, b & 1))
zq = ['v_mfma_f32_4x4x4_16b_bf16 v[%d:%d], v[10:11], v[10:11], 0' % (r, r + 3) for r in range(16, 40, 4)]
fin = ['v_min3_f32 v64, v64, v66, v68', 'v_min3_f32 v65, v65, v67, v69']
fin2 = ['v_max3_f32 v64, v64, v66, v68', 'v_max3_f32 v65, v65, v67, v69']
D16 = 'v_mfma_f32_32x32x16_bf16 v[16:31], v[10:13], v[10:13], v[16:31]'
D0 = 'v_mfma_f32_32x32x16_bf16 v[32:47], v[10:13], v[10:13], 0'
Z8 = 'v_mfma_f32_32x32x8_bf16 v[16:31], v[10:11], v[10:11], 0'
SM = 'v_smfmac_f32_32x32x32_bf16 v[16:31], v[10:13], v[48:55], v10'
parts = {
 'd16': [D16, 's_nop 7', 's_nop 1', D0, 's_nop 15', 's_nop 15', 's_nop 6'],
 'z8': [Z8] * 7 + ['s_nop 15', 's_nop 12'],
 'sm': [SM, 's_nop 15', 's_nop 9', 's_nop 4'],
 'dot': ['v_dot2_f32_bf16 v20, v10, v10, 0', 'v_dot2_f32_bf16 v20, v10, v10, v20', 'v_lshlrev_b64 v[22:23], v10, v[12:13]', 's_nop 9'],
 'mix': [Z8, Z8, 's_nop 5', SM, 'v_dot2_f32_bf16 v60, v10, v10, 0', 's_nop 3', D16, 's_nop 7', D0, 'v_exp_f32 v61, v10', 'v_exp_f32 v61, v10', 's_nop 11'],
}
s = '#include <hip/hip_runtime.h>\n#include <cstdio>\n'
names = []
for pn, p in parts.items():
    for fn, f in (('min', fin), ('max', fin2)):
        for pa in (3, 0):
            nm = 'k_%s_%s_p%d' % (pn, fn, pa); names.append(nm)
            s += kern(nm, setup + chain + ['s_cbranch_scc0 5f', '5:'] + zq + f, p, pa, 1)
s += 'int main() { unsigned* d; hipMalloc(&d, 64);\n'
for k in names:
    s += 'for (int sw = 0; sw < 2; sw++) { hipMemset(d, 0, 64); %s<<<256, 512>>>(d, 3000, sw); hipDeviceSynchronize(); unsigned h; hipMemcpy(&h, d, 4, hipMemcpyDeviceToHost); printf("%s swap %%d bad %%u\\n", sw, h); }\n' % (k, k)
s += 'return 0; }\n'
open('hz2.cpp', 'w').write(s)
```

```python
from hz import kern
import hz2
from hz2 import *
setup2 = ['v_mov_b32 v70, 0.5', 'v_mov_b32 v71, 0.5', 'v_mov_b32 v72, 0x3e800000', 'v_mov_b32 v73, 0x3e800000'] + ['v_mov_b32 v%d, 0x3e000000' % r for r in range(74, 78)] + setup[4:]
chain2 = []
for b in range(4):
    for c in range(3):
        q = 16 + 6 * b + 2 * c; t = 64 + 2 * c
        if b == 0: chain2.append('v_pk_mul_f32 v[%d:%d], v[%d:%d], v[70:71]' % (t, t + 1, q, q + 1))
        else: chain2.append('v_pk_fma_f32 v[%d:%d], v[%d:%d], v[%d:%d], v[%d:%d]' % (t, t + 1, q, q + 1, 70 + 2 * b, 71 + 2 * b, t, t + 1))
setup3 = ['v_mov_b32 v%d, 1.0' % r for r in range(40, 56)] + setup[4:]
chain3 = ['v_pk_mul_f32 v[%d:%d], v[%d:%d], v[%d:%d]' % (r, r + 1, r, r + 1, r + 24, r + 25) for r in range(16, 32, 2)]
fin3 = ['v_min3_f32 v64, v16, v18, v20', 'v_min3_f32 v64, v64, v22, v24', 'v_min3_f32 v64, v64, v26, v28', 'v_min_f32 v64, v64, v30',
        'v_min3_f32 v65, v17, v19, v21', 'v_min3_f32 v65, v65, v23, v25', 'v_min3_f32 v65, v65, v27, v29', 'v_min_f32 v65, v65, v31']
def one(sel):
    return ['v_pk_mul_f32 v[%d:%d], v[%d:%d], v[40:41] %s' % (r, r + 1, r, r + 1, sel) for r in range(16, 32, 2)]
A = {'opsel_zq': setup + chain + zq + fin, 'opsel': setup + chain + fin, 'plain': setup2 + chain2 + fin, 'indep': setup3 + chain3 + fin3,
     'lo_bc': setup3 + one('op_sel_hi:[1,0]') + fin3, 'hi_bc': setup3 + one('op_sel:[0,1] op_sel_hi:[1,1]') + fin3}
pad = ['s_nop 15', 's_nop 9']
B = {'d16c': [D16] + pad, 'd16z': [D0] + pad, 'd16c_exp': [D16] + ['v_exp_f32 v61, v10'] * 4 + pad, 'd16z_exp': [D0] + ['v_exp_f32 v61, v10'] * 4 + pad,
     'k8c': ['v_mfma_f32_32x32x8_bf16 v[16:31], v[10:11], v[10:11], v[16:31]'] + pad, 'sm': [SM] + pad, 'd16c_b2b': [D16] * 8 + pad}
s = '#include <hip/hip_runtime.h>\n#include <cstdio>\n'
names = []
for an, a in A.items():
    for bn, b in B.items():
        nm = 'k_%s_%s' % (an, bn); names.append(nm)
        s += kern(nm, a, b, 3, 1)
s += 'int main() { unsigned* d; hipMalloc(&d, 64);\n'
for k in names:
    s += '{ hipMemset(d, 0, 64); %s<<<256, 512>>>(d, 3000, 0); hipDeviceSynchronize(); unsigned h; hipMemcpy(&h, d, 4, hipMemcpyDeviceToHost); printf("%s bad %%u\\n", h); }\n' % (k, k)
s += 'return 0; }\n'
open('hz3.cpp', 'w').write(s)
```

```python
from hz import kern
from hz3 import *
setup4 = ['v_mov_b32 v70, 0.5', 'v_mov_b32 v72, 0x3e800000', 'v_mov_b32 v74, 0x3e000000', 'v_mov_b32 v76, 0x3e000000'] + ['v_mov_b32 v%d, 0x12345' % r for r in (71, 73, 75, 77)] + setup[4:]
chain4 = []
for b in range(4):
    for c in range(3):
        q = 16 + 6 * b + 2 * c; t = 64 + 2 * c
        if b == 0: chain4.append('v_pk_mul_f32 v[%d:%d], v[%d:%d], v[70:71] op_sel_hi:[1,0]' % (t, t + 1, q, q + 1))
        else: chain4.append('v_pk_fma_f32 v[%d:%d], v[%d:%d], v[%d:%d], v[%d:%d] op_sel_hi:[1,0,1]' % (t, t + 1, q, q + 1, 70 + 2 * b, 71 + 2 * b, t, t + 1))
SD = 'dst_sel:DWORD dst_unused:UNUSED_PAD src0_sel:DWORD src1_sel:'
misc = ['v_mov_b32 v40, 0x00050301', 'v_mov_b32 v41, 0x3f80', 'v_mov_b32 v42, 0', 'v_mov_b32 v43, 0', 'v_mov_b32 v44, 7', 'v_mov_b32 v45, 9'] + setup[4:]
seq_sdwa = []
for r in range(16, 32):
    sel, val = [('BYTE_0', 1), ('BYTE_1', 3), ('WORD_1', 5), ('BYTE_0', 1)][r % 4]
    seq_sdwa.append('v_add_u32_sdwa v%d, v%d, v40 %s%s' % (r, r, SD, sel))
for r in range(16, 32):
    seq_sdwa.append('v_subrev_u32 v%d, %d, v%d' % (r, [1, 3, 5, 1][r % 4], r))
seq_64 = ['v_lshl_add_u64 v[%d:%d], v[%d:%d], 0, v[44:45]' % (r, r + 1, r, r + 1) for r in range(16, 32, 2)] + \
         ['v_lshlrev_b64 v[%d:%d], v42, v[%d:%d]' % (r, r + 1, r, r + 1) for r in range(16, 32, 2)] + \
         ['v_subrev_u32 v%d, %d, v%d' % (r, 9 if r % 2 else 7, r) for r in range(16, 32)]
seq_dot = ['v_dot2_f32_bf16 v%d, v41, v41, v%d' % (r, r) for r in range(16, 32)] + ['s_nop 2'] + ['v_add_f32 v%d, -1.0, v%d' % (r, r) for r in range(16, 32)]
seq_dpp = ['v_add_u32_dpp v%d, v44, v%d row_shr:1 row_mask:0xf bank_mask:0xf' % (r, r) for r in range(16, 32)] + ['v_subrev_u32_dpp v%d, v44, v%d row_shr:1 row_mask:0xf bank_mask:0xf' % (r, r) for r in range(16, 32)]
seq_cvt = ['v_cvt_pk_bf16_f32 v%d, 1.0, 2.0' % (r + 32) for r in range(16, 24)] + ['v_xor_b32 v%d, 0x40003f80, v%d' % (r + 32, r + 32) for r in range(16, 24)] + ['v_xor_b32 v%d, v%d, v%d' % (r, r, r + 32) for r in range(16, 24)]
fin3x = [l.replace('min', 'max') for l in fin3]
A = {'lochain': setup4 + chain4 + zq + fin, 'lochain_max': setup4 + chain4 + zq + fin2}
for nm, q in (('sdwa', seq_sdwa), ('b64', seq_64), ('dot', seq_dot), ('dpp', seq_dpp), ('cvt', seq_cvt)):
    A[nm + '_min'] = misc + q + fin3
    A[nm + '_max'] = misc + q + fin3x
A['hi_bc'] = setup3 + one('op_sel:[0,1] op_sel_hi:[1,1]') + fin3
B = {'d16c': [D16] + pad, 'd16c_b2b': [D16] * 8 + pad, 'd16z_2salu_exp': [D0, 's_add_u32 s22, s22, 1', 's_add_u32 s22, s22, 1'] + ['v_exp_f32 v61, v10'] * 4 + pad,
     'd16z_wait_sm': [D0, 's_waitcnt vmcnt(8)', SM] + pad}
s = '#include <hip/hip_runtime.h>\n#include <cstdio>\n'
names = []
for an, a in A.items():
    for bn, b in B.items():
        nm = 'k_%s_%s' % (an, bn); names.append(nm)
        s += kern(nm, a, b, 3, 1).replace('"s20", "scc"', '"s20", "s22", "scc"')
s += 'int main() { unsigned* d; hipMalloc(&d, 64);\n'
for k in names:
    s += '{ hipMemset(d, 0, 64); %s<<<256, 512>>>(d, 3000, 0); hipDeviceSynchronize(); unsigned h; hipMemcpy(&h, d, 4, hipMemcpyDeviceToHost); printf("%s bad %%u\\n", h); }\n' % (k, k)
s += 'return 0; }\n'
open('hz4.cpp', 'w').write(s)
```
